```python
import torch

def _softmax(x, axis=-1):
    return torch.softmax(x, dim=axis)
def _gelu(x):
    return torch.nn.functional.gelu(x, approximate="tanh")
def _silu(x):
    return torch.nn.functional.silu(x)
def _sigmoid(x):
    return torch.sigmoid(x)
def _layernorm(x, axis=-1, eps=1e-5):
    m = x.mean(dim=axis, keepdim=True)
    v = x.var(dim=axis, keepdim=True, unbiased=False)
    return (x - m) / torch.sqrt(v + eps)
def _scatter_add(tgt, idx, src, axis=0):
    return tgt.clone().index_add_(axis, idx, src)
def _segment_sum(src, seg, n):
    out = torch.zeros((n,) + src.shape[1:], dtype=src.dtype)
    return out.index_add_(0, seg, src)
def _pad(x, pw):
    flat = tuple(v for pair in reversed(pw) for v in pair)
    return torch.nn.functional.pad(x, flat)

kernel_name = 'gated_mix__mha_block__swiglu_ffn__prompt'

def setup_inputs():

    _w = (lambda a: (lambda t: t.to(torch.bfloat16) if t.is_floating_point() else t)(torch.as_tensor(a)))
    def _A_setup():
        B, S, D, H = 1, 2048, 640, 32
        return {
            "x": _w((lambda *s: torch.randn(*s, dtype=torch.bfloat16) * 0.05)(B, S, D)),
            "wqkv": _w((lambda *s: torch.randn(*s, dtype=torch.bfloat16) * 0.8)(D, 3 * D)),
            "wo": _w((lambda *s: torch.randn(*s, dtype=torch.bfloat16) * 0.05)(D, D)),
        }
    _A_in = _A_setup()

    def _B_setup():
        B, S, D, F = 1, 2048, 640, 1536
        return {
            "x": _w((lambda *s: torch.randn(*s, dtype=torch.bfloat16) * 0.05)(B, S, D)),
            "w_gate": _w((lambda *s: torch.randn(*s, dtype=torch.bfloat16) * 0.1)(D, F)),
            "w_up": _w((lambda *s: torch.randn(*s, dtype=torch.bfloat16) * 0.1)(D, F)),
            "w_down": _w((lambda *s: torch.randn(*s, dtype=torch.bfloat16) * 0.1)(F, D)),
        }
    _B_in = _B_setup()

    return {
        "A_x": _A_in["x"],
        "A_wqkv": _A_in["wqkv"],
        "A_wo": _A_in["wo"],
        "B_x": _B_in["x"],
        "B_w_gate": _B_in["w_gate"],
        "B_w_up": _B_in["w_up"],
        "B_w_down": _B_in["w_down"],
        "gate_w": _w((lambda *s: torch.randn(*s, dtype=torch.bfloat16) * 0.05)(640) * 16.0),
    }

def reference(A_x, A_wqkv, A_wo, B_x, B_w_gate, B_w_up, B_w_down, gate_w):
    def _A_ref(x, wqkv, wo):
        B, S, D = x.shape
        H = 32
        Dh = D // H
        qkv = (lambda x, *d: x.permute(*d))((x @ wqkv).reshape(B, S, 3, H, Dh), 2, 0, 3, 1, 4)
        q, k, v = qkv[0], qkv[1], qkv[2]
        scores = torch.einsum("bhqd,bhkd->bhqk", q, k) * (Dh ** -0.5)
        p = _softmax(scores, axis=-1)
        o = torch.einsum("bhqk,bhkd->bhqd", p, v)
        return (lambda x, *d: x.permute(*d))(o, 0, 2, 1, 3).reshape(B, S, D) @ wo

    def _B_ref(x, w_gate, w_up, w_down):
        g = _silu(x @ w_gate)
        u = x @ w_up
        return (g * u) @ w_down

    x = A_x
    g = _sigmoid((x * gate_w).sum(-1, keepdims=True))
    a = _A_ref(x, A_wqkv, A_wo)
    b = _B_ref(x, B_w_gate, B_w_up, B_w_down)
    return g * a + (1 - g) * b
```

```python
import re

class Prog:
    def __init__(self):
        self.lines = []
    def __call__(self, s):
        for ln in s.split("\n"):
            ln = ln.strip()
            if ln:
                self.lines.append("    " + ln)
    def label(self, name):
        self.lines.append(name + ":")
    def raw(self, s):
        self.lines.append(s)
    def comment(self, s):
        self.lines.append("    ; " + s)
    def text(self):
        return "\n".join(self.lines) + "\n"

def vr(a, n=1):
    return f"v{a}" if n == 1 else f"v[{a}:{a+n-1}]"
def sr(a, n=1):
    return f"s{a}" if n == 1 else f"s[{a}:{a+n-1}]"

_REG = re.compile(r"\b([vsa])(\d+)\b|\b([vsa])\[(\d+):(\d+)\]|\b(vcc|exec|m0|scc)\b")
TRANS = ("v_exp_f32", "v_log_f32", "v_rcp_f32", "v_rsq_f32", "v_sqrt_f32", "v_sin_f32", "v_cos_f32", "v_exp_f16", "v_rcp_iflag_f32")

def regs_of(op):
    out = []
    for m in _REG.finditer(op):
        if m.group(1):
            out.append((m.group(1), int(m.group(2))))
        elif m.group(3):
            for i in range(int(m.group(4)), int(m.group(5)) + 1):
                out.append((m.group(3), i))
        else:
            out.append((m.group(6), 0))
    return out

def split_ops(rest):
    ops, cur, depth = [], "", 0
    for ch in rest:
        if ch == "[": depth += 1
        if ch == "]": depth -= 1
        if ch == "," and depth == 0:
            ops.append(cur.strip()); cur = ""
        else:
            cur += ch
    if cur.strip(): ops.append(cur.strip())
    return ops

def mfma_passes(mn):
    if "32x32x4_2b" in mn: return 16
    if "32x32x16" in mn or "32x32x8" in mn: return 8
    if "16x16x32" in mn or "16x16x16" in mn: return 4
    raise ValueError(mn)

class Ins:
    def __init__(self, text, lineno):
        self.text = text; self.lineno = lineno
        t = text.split(";")[0].strip()
        parts = t.split(None, 1)
        self.mn = parts[0]
        rest = parts[1] if len(parts) > 1 else ""
        ops = split_ops(rest)
        self.ops = ops
        mn = self.mn
        self.is_mfma = mn.startswith("v_mfma")
        self.is_valu = mn.startswith("v_") and not self.is_mfma
        self.is_salu = mn.startswith("s_")
        self.is_vmem = mn.startswith(("buffer_", "global_", "flat_"))
        self.is_ds = mn.startswith("ds_")
        self.is_trans = mn.replace("_e32", "").replace("_e64", "") in TRANS
        self.w, self.r = [], []
        self.srcc = []; self.srcab = []
        self.states = 1
        if mn == "s_nop":
            self.states = int(ops[0], 0) + 1
        allr = [regs_of(o) for o in ops]
        if self.is_mfma:
            self.w = allr[0]; self.srcab = allr[1] + allr[2]; self.srcc = allr[3]
            self.r = self.srcab + self.srcc
            self.passes = mfma_passes(mn)
        elif self.is_valu:
            if mn.startswith("v_cmp"):
                self.w = allr[0]; self.r = sum(allr[1:], [])
                if mn.startswith("v_cmpx"): self.w = self.w + [("exec", 0)]
            elif mn.startswith("v_permlane32_swap") or mn.startswith("v_permlane16_swap") or mn.startswith("v_swap"):
                self.w = allr[0] + allr[1]; self.r = allr[0] + allr[1]
            elif mn.startswith(("v_add_co", "v_sub_co", "v_addc_co", "v_subb_co", "v_mad_u64")):
                self.w = allr[0] + allr[1]; self.r = sum(allr[2:], [])
            else:
                self.w = allr[0]; self.r = sum(allr[1:], [])
                if mn.startswith(("v_fmac", "v_dot2c", "v_pk_fmac")) or "dpp" in text or "row_" in text or "sdwa" in mn:
                    self.r = self.r + allr[0]
                if mn.startswith("v_cndmask") and len(ops) == 3:
                    self.r = self.r + [("vcc", 0)]
        elif self.is_vmem:
            lds = re.search(r"\blds\b", t) is not None or "_lds_" in mn
            self.lds_dma = lds
            if "load" in mn and not lds:
                self.w = allr[0]; self.r = sum(allr[1:], [])
            elif "atomic" in mn and "sc0" in t:
                self.w = allr[0]; self.r = sum(allr, [])
            else:
                self.r = sum(allr, [])
            if lds: self.r = self.r + [("m0", 0)]
            self.wide_store = ("store" in mn and ("x3" in mn or "x4" in mn))
            if self.wide_store:
                self.sdata = allr[0] if mn.startswith("buffer") else allr[1]
        elif self.is_ds:
            if mn.startswith(("ds_read", "ds_bpermute", "ds_permute", "ds_swizzle")) or "_rtn" in mn:
                self.w = allr[0]; self.r = sum(allr[1:], [])
            else:
                self.r = sum(allr, [])
        elif self.is_salu:
            if mn.startswith(("s_cmp", "s_waitcnt", "s_barrier", "s_nop", "s_branch", "s_cbranch", "s_endpgm", "s_setprio", "s_sleep", "s_bitcmp")):
                self.r = sum(allr, [])
            else:
                self.w = allr[0] if allr else []
                self.r = sum(allr[1:], [])
                if "saveexec" in mn: self.w = self.w + [("exec", 0)]

def check_hazards(text, loops=()):
    lines = text.split("\n")
    ins = []; labels = {}
    for i, ln in enumerate(lines):
        s = ln.split(";")[0].strip()
        if not s or s.startswith("."): continue
        if s.endswith(":"):
            labels[s[:-1]] = len(ins); continue
        ins.append(Ins(ln.strip(), i + 1))
    probs = []
    def scan(seq):
        for j, c in enumerate(seq):
            dist = 0
            for k in range(j - 1, max(-1, j - 40), -1):
                p = seq[k]
                need = 0; why = ""
                pw = set(p.w)
                def hit(a, b): return bool(set(a) & set(b))
                if p.is_valu:
                    vw = [x for x in p.w if x[0] in "va" and len(x[0]) == 1]
                    sw = [x for x in p.w if x[0] == "s" or x[0] == "vcc"]
                    if c.is_mfma and hit(vw, c.r): need, why = 2, "VALU->MFMA"
                    if p.is_trans and c.is_valu and not c.is_trans and hit(vw, c.r): need, why = max(need, 1), "trans->VALU"
                    if c.mn.startswith(("v_readfirstlane", "v_readlane")) and hit(vw, c.r): need, why = max(need, 1), "VALU->readlane"
                    if c.mn.startswith("v_permlane") and hit(vw, c.r): need, why = max(need, 2), "VALU->permlane"
                    if c.is_valu and ("dpp" in c.text or "row_" in c.text or "quad_perm" in c.text) and hit(vw, c.r): need, why = max(need, 2), "VALU->DPP"
                    if c.is_vmem and hit(sw, c.r): need, why = max(need, 5), "VALU sgpr->VMEM"
                    if c.is_valu and hit(sw, c.r): need, why = max(need, 2), "VALU sgpr->VALU"
                    if ("exec", 0) in pw and c.is_mfma: need, why = max(need, 4), "VALU exec->MFMA"
                    if ("sdwa" in p.mn or "op_sel" in p.text) and c.is_valu and hit(vw, c.r + c.w): need, why = max(need, 1), "sdwa->VALU"
                if p.is_salu and ("m0", 0) in pw and c.is_vmem and getattr(c, "lds_dma", False): need, why = max(need, 1), "m0->DMA"
                if p.is_mfma:
                    n = p.passes
                    if c.is_mfma:
                        if hit(p.w, c.srcc):
                            if not (p.w == c.srcc and c.passes == n): need, why = max(need, {2: 4, 4: 6, 8: 10, 16: 18}[n]), "MFMA->MFMA srcC overlap"
                            elif n == 2: need, why = max(need, 2), "chain"
                        if hit(p.w, c.srcab): need, why = max(need, {2: 5, 4: 8, 8: 12, 16: 20}[n]), "MFMA->MFMA srcAB"
                        if hit(p.w, c.w) and not hit(p.w, c.srcc): need, why = max(need, {2: 5, 4: 8, 8: 12, 16: 20}[n]), "MFMA->MFMA WAW(conservative)"
                    elif c.is_valu or c.is_vmem or c.is_ds:
                        if hit(p.w, c.r + c.w): need, why = max(need, {2: 5, 4: 8, 8: 12, 16: 20}[n]), "MFMA->VALU/mem"
                        if c.is_valu and hit(p.srcc, c.w): need, why = max(need, {2: 1, 4: 3, 8: 7, 16: 15}[n]), "MFMA srcC WAR"
                if p.is_vmem and getattr(p, "wide_store", False) and hit(p.sdata, c.w):
                    need, why = max(need, 2 if c.is_valu else 1), "store WAR"
                if need > dist:
                    probs.append(f"line {c.lineno}: '{c.text}' needs {need} states after line {p.lineno} '{p.text}' ({why}), has {dist}")
                dist += p.states
                if dist >= 21: break
    scan(ins)
    for j, c in enumerate(ins):
        if c.mn.startswith(("s_cbranch", "s_branch")):
            tgt = c.ops[0]
            if tgt in labels:
                t = labels[tgt]
                seq = ins[max(0, j - 30): j + 1] + ins[t: t + 30]
                before = len(probs)
                scan(seq)
    return sorted(set(probs))
```

```python
from common import *
import common

S0 = 16; NM = 80; OO = 112; PP = 144; QA = 160; QB = 164; QT = 168
KM = 172; KT = 180; VV = 188
NVGPR = 224
LTHRESH = f2u(2.0 ** 60)

def m2b(d, a, b, c=None):
    cs = f"v[{d}:{d+31}]" if c is None else c
    return f"v_mfma_f32_32x32x4_2b_bf16 v[{d}:{d+31}], v[{a}:{a+1}], v[{b}:{b+1}], {cs}"

def gen_att_body(p, pre="AT", region=1):
    S = Stamps(p)
    S.stamp()
    S.rt()
    p("s_load_dwordx2 s[10:11], s[0:1], 80")
    p("""
    s_and_b32 s24, s2, 31              ; head
    s_lshr_b32 s25, s2, 5              ; qb
    v_lshrrev_b32 v1, 6, v0
    v_and_b32 v2, 63, v0               ; lane
    v_and_b32 v3, 31, v0               ; l32
    v_readfirstlane_b32 s28, v1        ; wave
    v_bfe_u32 v4, v0, 5, 1             ; hh
    s_mul_i32 s26, s24, 163840
    s_mul_i32 s27, s25, 20480
    s_add_u32 s27, s27, s26
    v_lshlrev_b32 v5, 4, v2
    v_lshlrev_b32 v6, 4, v3            ; l32*16
    s_mul_i32 s29, s28, 5120
    v_add_u32 v8, s29, v5
    v_add_u32 v9, 0x1000, v8
    s_lshl_b32 s30, s28, 11            ; w*2048
    v_add_u32 v10, s30, v5
    s_lshl_b32 s30, s28, 9
    s_add_u32 s30, s30, 8192
    v_lshl_add_u32 v11, v4, 3, v6
    v_add_u32 v11, s30, v11
    s_lshl_b32 s30, s25, 8
    s_lshl_b32 s31, s28, 6
    s_add_u32 s30, s30, s31
    v_add_u32 v12, s30, v3
    v_lshlrev_b32 v12, 2, v12
    s_waitcnt lgkmcnt(0)
    """)
    srd_off(p, 12, 10, 11, "s26", HEAD_STRIDE)
    p(f"s_add_u32 s27, s27, {hex(WS_Q)}")
    srd_off(p, 16, 10, 11, "s27", CHUNK)
    srd_off(p, 20, 10, 11, hex(WS_G), 8192)
    srd_off(p, 32, 10, 11, hex(WS_O), 2048 * 640 * 2)
    p(f"buffer_load_dwordx4 v[{QA}:{QA+3}], v10, s[16:19], 0 offen")
    p(f"buffer_load_dwordx4 v[{QB}:{QB+3}], v10, s[16:19], 0 offen offset:1024")
    p(f"buffer_load_dwordx2 v[{QT}:{QT+1}], v11, s[16:19], 0 offen")
    p("buffer_load_dword v14, v12, s[20:23], 0 offen")
    p("buffer_load_dword v15, v12, s[20:23], 0 offen offset:128")
    p("s_mov_b32 s44, 0")
    p("s_mov_b32 s46, 0x000fffff")
    p("s_mov_b32 s47, 0x000fffff")

    def dma(pp):
        out = [["s_add_u32 m0, s37, s29", "s_nop 0", "buffer_load_dwordx4 v8, s[12:15], s36 offen lds"]]
        for j in (1, 2, 3):
            out.append([f"buffer_load_dwordx4 v8, s[12:15], s36 offen offset:{1024*j} lds"])
        out.append(["s_add_u32 m0, m0, 0x1000", "s_nop 0", "buffer_load_dwordx4 v9, s[12:15], s36 offen lds"])
        return out

    p.label(f"{pre}_pass")
    p("s_mov_b32 s36, 0")
    p("s_mov_b32 s37, 0")
    for g in dma(p):
        for l in g: p(l)
    p("""
    v_lshlrev_b32 v5, 4, v2
    v_add_u32 v7, 8192, v6
    v_mul_u32_u24 v13, 320, v4
    v_add_u32 v13, v13, v6
    v_add_u32 v13, 10240, v13
    v_cmp_lt_u32 vcc, 19, v3
    v_mov_b32 v1, 0x3f803f80
    s_nop 0
    v_cndmask_b32 v1, 0, v1, vcc
    """)
    for i in range(32): p(f"v_mov_b32 v{VV+i}, v1")
    for i in range(32): p(f"v_mov_b32 v{OO+i}, 0")
    for i in range(4): p(f"v_mov_b32 v{PP+12+i}, 0")
    S.stamp()
    p("s_waitcnt vmcnt(0)")
    p("s_barrier")
    S.stamp()
    p("s_mov_b32 s36, 20480")
    p("s_mov_b32 s37, 20480")
    def rd_km(b):
        r = KM + 4 * (b % 2)
        return f"ds_read_b128 v[{r}:{r+3}], v5 offset:{1024*b}"
    def rd_kt(b):
        r = KT + 4 * ((b // 2) % 2)
        return f"ds_read_b128 v[{r}:{r+3}], v7 offset:{512*(b//2)}"
    def rd_v(b):
        out = []
        for g in range(2):
            r = VV + 8 * (b % 4) + 4 * g
            out.append(f"ds_read_b128 v[{r}:{r+3}], v13 offset:{640*(2*b+g)}")
        return out
    p(rd_km(0)); p(rd_kt(0)); p(rd_km(1))
    p("s_mov_b64 exec, s[46:47]")
    for l in rd_v(0) + rd_v(1): p(l)
    p("s_mov_b64 exec, -1")
    for g in dma(p):
        for l in g: p(l)
    p("s_cmp_eq_u32 s44, 1")
    p(f"s_cbranch_scc1 {pre}_havemax")
    p("s_waitcnt lgkmcnt(5)")
    p(m2b(S0, KT, QT, "0"))
    p("s_nop 15"); p("s_nop 1")
    p(mfma32(S0, KM, QA)); p(mfma32(S0 + 16, KM, QB))
    p("s_nop 10")
    for t in range(2):
        b = S0 + 16 * t
        d = NM + 16 * t
        p(f"v_max3_f32 v{d}, v{b}, v{b+1}, v{b+2}")
        for k in range(3, 15, 2):
            p(f"v_max3_f32 v{d}, v{d}, v{b+k}, v{b+k+1}")
        p(f"v_max_f32 v{d}, v{d}, v{b+15}")
        p(f"v_mov_b32 v{d+1}, v{d}")
    p("s_nop 1")
    for t in range(2):
        d = NM + 16 * t
        p(f"v_permlane32_swap_b32 v{d}, v{d+1}")
    for t in range(2):
        d = NM + 16 * t
        p(f"v_max_f32 v{d}, v{d}, v{d+1}")
        p(f"v_sub_f32 v{d}, 0, v{d}")
    for t in range(2):
        d = NM + 16 * t
        for k in range(1, 16): p(f"v_mov_b32 v{d+k}, v{d}")
    p.label(f"{pre}_havemax")
    p("s_waitcnt lgkmcnt(0)")
    p("s_nop 0")
    p(mfma32(S0, KM, QA, NM)); p(mfma32(S0 + 16, KM, QB, NM + 16))
    p("s_nop 9")
    p(m2b(S0, KT, QT))
    p("s_mov_b32 s38, 0")
    p("s_mov_b32 s39, 20480")
    p("s_nop 15"); p("s_nop 1")
    S.stamp()
    p(f"s_branch {pre}_mid")

    def iteration(j):
        i = j - 2
        cur = S0 + 32 * (i % 2); nxt = S0 + 32 * ((i + 1) % 2)
        km = KM + 4 * ((i + 1) % 2)
        kt = KT + 4 * (((i + 1) // 2) % 2) + 2 * ((i + 1) % 2)
        vb = VV + 8 * (i % 4); vprev = VV + 8 * ((i - 1) % 4)
        def E(k, lo, hi):
            for r in range(lo, hi): p(f"v_exp_f32 v{cur+4*k+r}, v{cur+4*k+r}")
        def C(k):
            p(f"v_cvt_pk_bf16_f32 v{PP+2*k}, v{cur+4*k}, v{cur+4*k+1}")
            p(f"v_cvt_pk_bf16_f32 v{PP+2*k+1}, v{cur+4*k+2}, v{cur+4*k+3}")
        E(0, 0, 2)
        p(mfma32(OO + 16, vprev + 4, PP + 12))
        E(0, 2, 4); C(0)
        p("s_waitcnt lgkmcnt(0)")
        p(mfma32(nxt, km, QA, NM))
        E(1, 0, 4); C(1)
        if j % 2 == 0 and not common.OPT.get("nov"):
            p("s_mov_b64 exec, s[46:47]")
            for l in rd_v(j) + rd_v(j + 1): p(l)
            p("s_mov_b64 exec, -1")
        E(2, 0, 2)
        p(mfma32(OO, vb, PP))
        E(2, 2, 4); C(2)
        p(mfma32(nxt + 16, km, QB, NM + 16))
        E(3, 0, 4); C(3)
        if j == 1: dm = dma(p)
        E(4, 0, 2)
        p(mfma32(OO, vb + 4, PP + 4))
        E(4, 2, 4); C(4)
        p(m2b(nxt, kt, QT))
        E(5, 0, 4); C(5)
        p(rd_km(j))
        if j % 2 == 0: p(rd_kt(j))
        E(6, 0, 2)
        p(mfma32(OO + 16, vb, PP + 8))
        E(6, 2, 4); C(6)
        E(7, 0, 4); C(7)

    p.raw(".p2align 6")
    p.label(f"{pre}_loop")
    p("s_waitcnt vmcnt(0) lgkmcnt(0)")
    if not common.OPT.get("nobar"): p("s_barrier")
    p("v_add_u32 v5, s39, v5")
    p("v_add_u32 v7, s39, v7")
    p("v_add_u32 v13, s39, v13")
    p("s_sub_u32 s39, 0, s39")
    p("s_add_u32 s36, s36, 20480")
    p("s_sub_u32 s37, 20480, s37")
    p("s_cmp_ge_u32 s38, %d" % (0 if common.OPT.get("nodma") else 7))
    p(f"s_cbranch_scc1 {pre}_nodma")
    for g in dma(p):
        for l in g: p(l)
    p.label(f"{pre}_nodma")
    iteration(0); iteration(1)
    p("s_cmp_eq_u32 s38, 8")
    p(f"s_cbranch_scc1 {pre}_done")
    p.label(f"{pre}_mid")
    for j in range(2, 8): iteration(j)
    p("s_add_u32 s38, s38, 1")
    p(f"s_branch {pre}_loop")
    p.label(f"{pre}_done")
    S.stamp()
    p("s_nop 0")
    p(mfma32(OO + 16, VV + 8 * 3 + 4, PP + 12))
    p("s_waitcnt lgkmcnt(0)")
    p("""
    s_lshl_b32 s30, s25, 3
    s_lshl_b32 s31, s28, 1
    s_add_u32 s30, s30, s31
    s_mul_i32 s30, s30, 40960
    s_lshl_b32 s31, s24, 10
    s_add_u32 s31, s31, s30
    v_lshlrev_b32 v10, 4, v2
    v_add_u32 v10, s31, v10
    s_lshr_b32 s40, s24, 2
    s_add_u32 s40, s40, 32
    s_lshl_b32 s40, s40, 10
    s_add_u32 s40, s40, s30
    s_and_b32 s41, s24, 1
    s_lshl_b32 s41, s41, 9
    s_add_u32 s40, s40, s41
    s_and_b32 s41, s24, 2
    s_lshl_b32 s41, s41, 2
    s_add_u32 s40, s40, s41
    v_add_u32 v11, s40, v6
    s_mov_b32 s41, 40960
    """)
    p(f"s_mov_b32 s42, {hex(LTHRESH)}")
    p(f"v_cmp_ngt_f32 vcc, s42, v{OO+12}")
    p(f"v_cmp_ngt_f32 s[48:49], s42, v{OO+16+12}")
    p("s_or_b64 vcc, vcc, s[48:49]")
    p("s_cmp_lg_u64 vcc, 0")
    p("s_cselect_b32 s43, 1, 0")
    p("s_cmp_eq_u32 s44, 1")
    p(f"s_cbranch_scc1 {pre}_epi")
    p("""
    v_mov_b32 v1, s43
    s_lshl_b32 s45, s28, 2
    s_add_u32 s45, s45, 40960
    v_mov_b32 v12, s45
    ds_write_b32 v12, v1
    s_waitcnt lgkmcnt(0)
    s_barrier
    v_mov_b32 v12, 40960
    ds_read_b128 v[144:147], v12
    s_waitcnt lgkmcnt(0)
    v_or_b32 v144, v144, v145
    v_or3_b32 v144, v144, v146, v147
    s_nop 0
    v_readfirstlane_b32 s43, v144
    s_cmp_lg_u32 s43, 0
    """)
    p(f"s_cbranch_scc1 {pre}_fallback")
    p.label(f"{pre}_epi")
    for t in range(2):
        o = OO + 16 * t
        p(f"v_rcp_f32 v{o+13}, v{o+12}")
    p("s_nop 0")
    for t in range(2):
        o = OO + 16 * t
        p(f"v_mul_f32 v{o+13}, v{o+13}, v{14+t}")
    for t in range(2):
        o = OO + 16 * t
        for k in range(12): p(f"v_mul_f32 v{o+k}, v{o+k}, v{o+13}")
        for k in range(6): p(f"v_cvt_pk_bf16_f32 v{PP+8*t+k}, v{o+2*k}, v{o+2*k+1}")
        so = "0" if t == 0 else "s41"
        p(f"buffer_store_dwordx4 v[{PP+8*t}:{PP+8*t+3}], v10, s[32:35], {so} offen")
    p("s_mov_b32 exec_hi, 0")
    for t in range(2):
        so = "0" if t == 0 else "s41"
        p(f"buffer_store_dwordx2 v[{PP+8*t+4}:{PP+8*t+5}], v11, s[32:35], {so} offen")
    S.stamp()
    S.rt()
    S.dump(10, 11, 28, region=region, vt=220)
    p("s_endpgm")
    p.label(f"{pre}_fallback")
    p("s_mov_b32 s36, 0")
    p("s_mov_b32 s37, 0")
    p("v_lshlrev_b32 v5, 4, v2")
    p("v_add_u32 v7, 8192, v6")
    p(f"v_mov_b32 v{NM}, 0xff800000")
    p(f"v_mov_b32 v{NM+16}, 0xff800000")
    p.label(f"{pre}_fb_chunk")
    p("s_barrier")
    for g in dma(p):
        for l in g: p(l)
    p("s_waitcnt vmcnt(0)")
    p("s_barrier")
    for b in range(8):
        p(rd_km(b).replace(f"v[{KM+4*(b%2)}:{KM+4*(b%2)+3}]", f"v[{KM}:{KM+3}]"))
        p(rd_kt(b - b % 2).replace(f"v[{KT+4*((b//2)%2)}:{KT+4*((b//2)%2)+3}]", f"v[{KT}:{KT+3}]"))
        p("s_waitcnt lgkmcnt(0)")
        p(m2b(S0, KT + 2 * (b % 2), QT, "0"))
        p("s_nop 15"); p("s_nop 1")
        p(mfma32(S0, KM, QA)); p(mfma32(S0 + 16, KM, QB))
        p("s_nop 11")
        for t in range(2):
            bb = S0 + 16 * t; d = NM + 16 * t
            for k in range(0, 16, 2):
                p(f"v_max3_f32 v{d}, v{d}, v{bb+k}, v{bb+k+1}")
    p("s_add_u32 s36, s36, 20480")
    p("s_cmp_lt_u32 s36, 163840")
    p(f"s_cbranch_scc1 {pre}_fb_chunk")
    for t in range(2):
        d = NM + 16 * t
        p(f"v_mov_b32 v{d+1}, v{d}")
    p("s_nop 1")
    for t in range(2):
        d = NM + 16 * t
        p(f"v_permlane32_swap_b32 v{d}, v{d+1}")
    for t in range(2):
        d = NM + 16 * t
        p(f"v_max_f32 v{d}, v{d}, v{d+1}")
        p(f"v_sub_f32 v{d}, 0, v{d}")
    for t in range(2):
        d = NM + 16 * t
        for k in range(1, 16): p(f"v_mov_b32 v{d+k}, v{d}")
    p("s_mov_b32 s44, 1")
    p("s_barrier")
    p(f"s_branch {pre}_pass")

def gen_att(p):
    name = "k2_att_kernel"
    head(p, name)
    p("s_cmp_ge_u32 s2, 256")
    p("s_cbranch_scc1 AT_exit")
    gen_att_body(p)
    p.label("AT_exit")
    p("s_endpgm")
    return kd(name, NVGPR), f"; @launch kernel={name} grid=(256,1,1) block=(256,1,1) lds=41024"
```

```python
from asmlib import *
import struct, math
WS_KV = 0
WS_Q = 0x500000
WS_G = 0xA00000
WS_H = 0xB00000
WS_O = 0x1100000
WS_B = 0x1400000
WS_SIZE = 0x2000000
HEAD_STRIDE = 163840
CHUNK = 20480
def f2u(x): return struct.unpack("<I", struct.pack("<f", x))[0]
QSCALE = f2u(math.log2(math.e) / math.sqrt(20.0))
LOG2E = f2u(math.log2(math.e))

def kd(name, vgpr, sgpr=102, accum=None):
    accum = accum if accum is not None else ((vgpr + 3) // 4) * 4
    return f""".p2align 6
.amdhsa_kernel {name}
  .amdhsa_next_free_vgpr {vgpr}
  .amdhsa_next_free_sgpr {sgpr}
  .amdhsa_accum_offset {accum}
  .amdhsa_group_segment_fixed_size 0
  .amdhsa_kernarg_size 88
  .amdhsa_user_sgpr_count 2
  .amdhsa_user_sgpr_kernarg_segment_ptr 1
  .amdhsa_system_sgpr_workgroup_id_x 1
.end_amdhsa_kernel
"""

def head(p, name):
    p.raw(f".globl {name}")
    p.raw(".p2align 8")
    p.raw(f".type {name},@function")
    p.label(name)

def srd(p, d, lo, hi, nbytes):
    p(f"s_mov_b32 s{d}, s{lo}")
    p(f"s_mov_b32 s{d+1}, s{hi}")
    p(f"s_mov_b32 s{d+2}, {hex(nbytes)}")
    p(f"s_mov_b32 s{d+3}, 0x00020000")

def srd_off(p, d, lo, hi, off, nbytes):
    p(f"s_add_u32 s{d}, s{lo}, {off}")
    p(f"s_addc_u32 s{d+1}, s{hi}, 0")
    p(f"s_mov_b32 s{d+2}, {hex(nbytes)}")
    p(f"s_mov_b32 s{d+3}, 0x00020000")

def mfma32(d, a, b, c=None):
    cs = "0" if c == 0 and c is not None and isinstance(c, int) and False else None
    if c == "0": cstr = "0"
    else:
        c = d if c is None else c
        cstr = f"v[{c}:{c+15}]"
    return f"v_mfma_f32_32x32x16_bf16 v[{d}:{d+15}], v[{a}:{a+3}], v[{b}:{b+3}], {cstr}"

WS_DBG = 0x1E00000
STAMP = False
OPT = {}
class Stamps:
    def __init__(self, p, base=64):
        self.p = p; self.base = base; self.n = 0
    def stamp(self):
        if not globals()['STAMP']: return
        r = self.base + 2 * self.n
        self.p(f"s_memtime s[{r}:{r+1}]")
        self.n += 1
    def rt(self):
        if not globals()['STAMP']: return
        r = self.base + 2 * self.n
        self.p(f"s_memrealtime s[{r}:{r+1}]")
        self.n += 1
    def dump(self, wslo, wshi, wave_s, region=0, vt=250):
        if not globals()['STAMP']: return
        p = self.p
        p("s_waitcnt lgkmcnt(0)")
        p(f"s_add_u32 s96, s{wslo}, {hex(WS_DBG + region * 0x40000)}")
        p(f"s_addc_u32 s97, s{wshi}, 0")
        p("s_mov_b32 s98, 0x40000")
        p("s_mov_b32 s99, 0x00020000")
        p("s_lshl_b32 s94, s2, 9")
        p(f"s_lshl_b32 s95, s{wave_s}, 6")
        p("s_add_u32 s94, s94, s95")
        p("s_mov_b64 exec, 1")
        p(f"v_mov_b32 v{vt}, s94")
        for i in range(self.n):
            p(f"v_mov_b32 v{vt+1}, s{self.base+2*i}")
            p(f"buffer_store_dword v{vt+1}, v{vt}, s[96:99], 0 offen offset:{4*i}")
            p("s_nop 1")
```

```python
from common import *
import common

def ids_common(p):
    p("""
    v_lshrrev_b32 v1, 6, v0
    v_and_b32 v2, 63, v0               ; lane
    v_and_b32 v3, 31, v0               ; l32
    v_readfirstlane_b32 s28, v1        ; wave
    v_bfe_u32 v4, v0, 5, 1             ; hh
    """)

def gen_ffn1_body(p, wg="s2", region=2, end=True, sc1=False):
    S = Stamps(p)
    S.stamp(); S.rt()
    p("s_load_dwordx2 s[4:5], s[0:1], 0")
    p("s_load_dwordx4 s[52:55], s[0:1], 32")
    p("s_load_dwordx2 s[10:11], s[0:1], 80")
    ids_common(p)
    p(f"""
    s_and_b32 s24, {wg}, 7
    s_lshr_b32 s25, {wg}, 3
    s_and_b32 s26, s24, 3
    s_lshl_b32 s26, s26, 2
    s_and_b32 s27, s25, 3
    s_add_u32 s26, s26, s27            ; r
    s_lshr_b32 s27, s24, 2
    s_lshl_b32 s27, s27, 3
    s_lshr_b32 s29, s25, 2
    s_add_u32 s27, s27, s29            ; f
    s_and_b32 s35, s28, 1
    s_lshr_b32 s36, s28, 1
    v_lshrrev_b32 v6, 2, v2            ; i/4
    v_and_b32 v7, 3, v2                ; slot
    v_lshrrev_b32 v8, 4, v2
    v_xor_b32 v8, v8, v7               ; chunk
    s_lshl_b32 s29, s26, 7
    s_lshl_b32 s30, s28, 5
    s_add_u32 s29, s29, s30
    v_add_u32 v9, s29, v6
    v_mul_u32_u24 v9, 1280, v9
    v_lshl_add_u32 v5, v8, 4, v9
    s_lshl_b32 s29, s35, 4
    v_add_u32 v9, s29, v6
    v_mul_u32_u24 v9, 3072, v9
    s_lshl_b32 s29, s36, 1
    v_xor_b32 v8, s29, v7
    s_mul_i32 s29, s27, 192
    v_lshl_add_u32 v9, v8, 4, v9
    v_add_u32 v6, s29, v9
    s_lshl_b32 s31, s28, 11
    s_mul_i32 s32, s28, 3072
    s_add_u32 s32, s32, 8192
    s_waitcnt lgkmcnt(0)
    s_cmp_eq_u32 s36, 0
    s_cselect_b32 s6, s52, s54
    s_cselect_b32 s7, s53, s55
    """)
    srd(p, 12, 4, 5, 2048 * 640 * 2)
    srd(p, 16, 6, 7, 640 * 1536 * 2)
    NST = 20
    def dma_list(st):
        slot = (st % 4) * 20480
        g = []
        for pc in range(2):
            g.append([f"s_add_u32 m0, s31, {slot + pc*1024}", f"s_mov_b32 s33, {st*64 + pc*20480}",
                      "buffer_load_dwordx4 v5, s[12:15], s33 offen lds"])
        for j in range(3):
            off = f" offset:{64*j}" if j else ""
            g.append([f"s_add_u32 m0, s32, {slot + j*960}", (f"s_mov_b32 s34, {st*98304}" if j == 0 else "s_nop 0"),
                      f"buffer_load_dwordx4 v6, s[16:19], s34 offen{off} lds"])
        return g
    for st in range(4):
        for g in dma_list(st):
            for l in g: p(l)
    srd_off(p, 20, 10, 11, hex(WS_G), 8192)
    srd_off(p, 40, 10, 11, hex(WS_H), 2048 * 1536 * 2)
    p("""
    s_lshl_b32 s29, s26, 7
    s_lshl_b32 s30, s35, 6
    s_add_u32 s29, s29, s30
    v_add_u32 v8, s29, v3
    v_lshlrev_b32 v8, 2, v8
    buffer_load_dword v30, v8, s[20:23], 0 offen
    buffer_load_dword v31, v8, s[20:23], 0 offen offset:128
    v_bfe_u32 v8, v3, 2, 2
    v_xor_b32 v8, v8, v4
    v_lshlrev_b32 v8, 4, v8
    v_lshl_add_u32 v8, v3, 6, v8
    s_lshl_b32 s29, s35, 12
    v_add_u32 v10, s29, v8
    v_xor_b32 v11, 32, v10
    v_and_b32 v7, 3, v2                ; c
    v_lshlrev_b32 v7, 3, v7
    v_bfe_u32 v9, v2, 2, 2             ; r
    v_lshl_add_u32 v7, v9, 6, v7
    v_lshl_add_u32 v7, v4, 9, v7       ; + hh*8*64
    v_bfe_u32 v9, v2, 4, 1             ; cg
    v_mul_u32_u24 v8, 6144, v9
    v_add_u32 v7, v7, v8
    v_lshlrev_b32 v9, 5, v9            ; cg*32
    v_add_u32 v7, 8192, v7
    """)
    for tn in range(3):
        p(f"""
        s_mul_i32 s29, s36, 3
        s_add_u32 s29, s29, {tn}           ; t
        s_lshr_b32 s30, s29, 1
        s_lshl_b32 s30, s30, 10            ; j*1024
        s_and_b32 s29, s29, 1
        s_lshl_b32 s29, s29, 5             ; half*32
        v_xor_b32 v8, s29, v9
        v_add3_u32 v{12+tn}, v7, v8, s30
        """)
    for i in range(5):
        p(f"v_add_u32 v{15+i}, 40960, v{10+i}")
    p("""
    s_lshl_b32 s29, s26, 2
    s_lshl_b32 s30, s35, 1
    s_add_u32 s29, s29, s30
    s_mul_i32 s29, s29, 96
    s_mul_i32 s30, s27, 6
    s_add_u32 s29, s29, s30
    s_mul_i32 s30, s36, 3
    s_add_u32 s29, s29, s30
    s_lshl_b32 s29, s29, 10
    v_lshlrev_b32 v20, 4, v2
    v_add_u32 v20, s29, v20
    s_mov_b32 s37, 98304
    """)
    FR = 32
    ACC = 72
    def reads(t):
        st, ks = divmod(t, 2)
        slot = st % 4
        k = slot // 2; so = (slot % 2) * 20480
        b = FR + 20 * (t % 2)
        out = []
        for tm in range(2):
            out.append(f"ds_read_b128 v[{b+4*tm}:{b+4*tm+3}], v{10+5*k+ks} offset:{so + tm*2048}")
        for tn in range(3):
            for a in range(2):
                r = b + 8 + 4 * tn + 2 * a
                out.append(f"ds_read_b64_tr_b16 v[{r}:{r+1}], v{12+5*k+tn} offset:{so + ks*3072 + a*256}")
        return out
    def mfmas(t):
        b = FR + 20 * (t % 2)
        out = []
        for tn in range(3):
            for tm in range(2):
                d = ACC + 16 * (3 * tm + tn)
                out.append(mfma32(d, b + 8 + 4 * tn, b + 4 * tm, "0" if t == 0 else None))
        return out
    S.stamp()
    p("s_waitcnt vmcnt(17)")
    p("s_barrier")
    S.stamp()
    for l in reads(0): p(l)
    T = 2 * NST
    for t in range(T):
        st, ks = divmod(t, 2)
        mf = mfmas(t)
        fill = []
        if t == T - 1:
            p("s_waitcnt lgkmcnt(0)")
        elif ks == 0:
            p("s_waitcnt lgkmcnt(0)")
            rd = reads(t + 1)
            fill = [rd[0:2], rd[2:4], rd[4:6], rd[6:8]]
        else:
            n = 5 * (min(st + 3, NST - 1) - (st + 1))
            if st < 3: n += 2 if False else 0
            p(f"s_waitcnt vmcnt({n}) lgkmcnt(0)")
            p("s_barrier")
            rd = reads(t + 1)
            fill = [rd[0:3], rd[3:6], rd[6:8]]
            if st + 4 < NST:
                g = dma_list(st + 4)
                fill[2] = fill[2] + g[0]
                fill += [g[1] + g[2], g[3] + g[4]]
        for i, m in enumerate(mf):
            p(m)
            if i < len(fill):
                for l in fill[i]: p(l)
    S.stamp()
    p(f"s_mov_b32 s44, {hex(f2u(-math.log2(math.e)))}")
    p(f"s_mov_b32 s45, {hex(f2u(-math.log2(math.e)))}")
    p("v_sub_f32 v22, 1.0, v30")
    p("v_sub_f32 v24, 1.0, v31")
    p("v_mov_b32 v23, v22")
    p("v_mov_b32 v25, v24")
    p("s_nop 5")
    T0 = FR
    order = [(tm, tn) for tn in range(3) for tm in range(2)]
    for idx, (tm, tn) in enumerate(order):
        d = ACC + 16 * (3 * tm + tn)
        t = T0 + 12 * (idx % 2)
        for i in range(4): p(f"v_pk_mul_f32 v[{t+2*i}:{t+2*i+1}], v[{d+2*i}:{d+2*i+1}], s[44:45]")
        for i in range(8): p(f"v_exp_f32 v{t+i}, v{t+i}")
        for i in range(4): p(f"v_pk_mul_f32 v[{d+2*i}:{d+2*i+1}], v[{d+2*i}:{d+2*i+1}], v[{d+8+2*i}:{d+9+2*i}]")
        for i in range(4): p(f"v_pk_add_f32 v[{t+2*i}:{t+2*i+1}], v[{t+2*i}:{t+2*i+1}], 1.0 op_sel_hi:[1,0]")
        for i in range(8): p(f"v_rcp_f32 v{t+i}, v{t+i}")
        for i in range(4): p(f"v_pk_mul_f32 v[{d+2*i}:{d+2*i+1}], v[{d+2*i}:{d+2*i+1}], v[{22+2*tm}:{23+2*tm}]")
        for i in range(4): p(f"v_pk_mul_f32 v[{d+2*i}:{d+2*i+1}], v[{d+2*i}:{d+2*i+1}], v[{t+2*i}:{t+2*i+1}]")
        for i in range(4): p(f"v_cvt_pk_bf16_f32 v{t+8+i}, v{d+2*i}, v{d+2*i+1}")
        so = "0" if tm == 0 else "s37"
        p(f"buffer_store_dwordx4 v[{t+8}:{t+11}], v20, s[40:43], {so} offen offset:{1024*tn}" + (" sc1" if sc1 else ""))
    S.stamp(); S.rt()
    if end:
        S.dump(10, 11, 28, region=region, vt=170)
        p("s_endpgm")
    return S

def gen_ffn1(p):
    name = "k3_ffn1_kernel"
    head(p, name)
    p("s_cmp_ge_u32 s2, 256")
    p("s_cbranch_scc1 F1_exit")
    gen_ffn1_body(p)
    p.label("F1_exit")
    p("s_endpgm")
    return kd(name, 176), f"; @launch kernel={name} grid=(256,1,1) block=(256,1,1) lds=81920"

def gen_ffn2_body(p, wg="s2", region=3, S=None, sc1=False, wait=None):
    if S is None:
        S = Stamps(p); S.stamp(); S.rt()
    p("s_load_dwordx2 s[6:7], s[0:1], 48")
    p("s_load_dwordx2 s[10:11], s[0:1], 80")
    ids_common(p)
    p(f"""
    s_and_b32 s24, {wg}, 7
    s_lshr_b32 s25, {wg}, 3
    s_and_b32 s26, s24, 3
    s_lshl_b32 s26, s26, 3
    s_and_b32 s27, s25, 7
    s_add_u32 s26, s26, s27            ; mb
    s_lshr_b32 s27, s25, 3             ; cb
    s_lshr_b32 s24, s24, 2             ; kh
    s_and_b32 s35, s28, 1
    s_lshr_b32 s36, s28, 1             ; kq
    s_mul_i32 s29, s24, 768
    s_mul_i32 s30, s36, 384
    s_add_u32 s29, s29, s30
    s_lshl_b32 s30, s35, 4
    s_add_u32 s30, s30, s29
    v_lshrrev_b32 v6, 2, v2
    v_add_u32 v6, s30, v6
    v_mul_u32_u24 v6, 1280, v6
    v_and_b32 v7, 3, v2
    v_lshl_add_u32 v6, v7, 4, v6
    s_mul_i32 s30, s27, 320
    v_add_u32 v6, s30, v6
    s_mul_i32 s32, s28, 5120
    s_lshl_b32 s30, s26, 1
    s_add_u32 s30, s30, s35
    s_mul_i32 s31, s30, 96
    s_lshr_b32 s29, s29, 4
    s_add_u32 s31, s31, s29
    s_lshl_b32 s31, s31, 10
    v_lshlrev_b32 v5, 4, v2
    v_add_u32 v5, s31, v5
    s_waitcnt lgkmcnt(0)
    """)
    srd(p, 16, 6, 7, 1536 * 640 * 2)
    srd_off(p, 12, 10, 11, hex(WS_H), 2048 * 1536 * 2)
    NST = 12
    XR = 32
    WF = 64
    ACC = 104
    scs = " sc1" if sc1 else ""
    def w_list(st):
        slot = (st % 4) * 20480
        g = []
        for j in range(5):
            off = f" offset:{64*j}" if j else ""
            g.append([f"s_add_u32 m0, s32, {slot + j*960}", (f"s_mov_b32 s34, {st*32*1280}" if j == 0 else "s_nop 0"),
                      f"buffer_load_dwordx4 v6, s[16:19], s34 offen{off} lds"])
        return g
    def x_list(st):
        g = []
        for ks in range(2):
            r = XR + 4 * ((2 * st + ks) % 8)
            pre = [f"s_mov_b32 s33, {st*2048}"] if ks == 0 else []
            g.append(pre + [f"buffer_load_dwordx4 v[{r}:{r+3}], v5, s[12:15], s33 offen offset:{1024*ks}{scs}"])
        return g
    if wait is None:
        for st in range(4):
            for g in w_list(st) + x_list(st):
                for l in g: p(l)
    else:
        for st in range(4):
            for g in w_list(st):
                for l in g: p(l)
    p("""
    v_and_b32 v7, 3, v2
    v_lshlrev_b32 v7, 3, v7
    v_bfe_u32 v9, v2, 2, 2
    v_lshl_add_u32 v7, v9, 6, v7
    v_lshl_add_u32 v7, v4, 8, v7
    v_bfe_u32 v9, v2, 4, 1
    v_lshl_add_u32 v7, v9, 5, v7
    s_mul_i32 s29, s36, 10240
    v_add_u32 v10, s29, v7
    v_add_u32 v11, 40960, v10
    """)
    p(f"""
    s_mul_i32 s29, s24, {2048*640*4}
    s_add_u32 s29, s29, {hex(WS_B)}
    """)
    srd_off(p, 40, 10, 11, "s29", 2048 * 640 * 4)
    p("""
    s_mul_i32 s29, s30, 81920
    s_mul_i32 s31, s27, 20480
    s_add_u32 s29, s29, s31
    s_mul_i32 s31, s36, 10240
    s_add_u32 s29, s29, s31
    v_lshlrev_b32 v12, 4, v2
    v_add_u32 v13, s29, v12
    s_mul_i32 s29, s28, 10240
    v_add_u32 v14, s29, v12
    s_xor_b32 s29, s28, 2
    s_mul_i32 s29, s29, 10240
    v_add_u32 v15, s29, v12
    """)
    if wait is not None:
        wait(p)
        for st in range(4):
            for g in x_list(st):
                for l in g: p(l)
    def reads(t):
        st, ks = divmod(t, 2)
        slot = st % 4
        k = slot // 2; so = (slot % 2) * 20480
        b = WF + 20 * (t % 2)
        out = []
        for j in range(5):
            for a in range(2):
                r = b + 4 * j + 2 * a
                out.append(f"ds_read_b64_tr_b16 v[{r}:{r+1}], v{10+k} offset:{so + ks*5120 + j*1024 + a*512}")
        return out
    def mfmas(t):
        b = WF + 20 * (t % 2)
        x = XR + 4 * (t % 8)
        return [mfma32(ACC + 16 * j, b + 4 * j, x, "0" if t == 0 else None) for j in range(5)]
    S.stamp()
    p("s_waitcnt vmcnt(%d)" % (21 if wait is None else 6))
    p("s_barrier")
    S.stamp()
    for l in reads(0): p(l)
    T = 2 * NST
    for t in range(T):
        st, ks = divmod(t, 2)
        mf = mfmas(t)
        fill = []
        post = []
        if t == T - 1:
            p("s_waitcnt lgkmcnt(0)")
        elif ks == 0:
            p("s_waitcnt lgkmcnt(0)")
            rd = reads(t + 1)
            fill = [rd[0:3], rd[3:6], rd[6:8], rd[8:10]]
        else:
            n = 7 * (min(st + 3, NST - 1) - (st + 1))
            if wait is not None and st < 3:
                n = 2 * (3 - (st + 1)) + 7 * st
            p(f"s_waitcnt vmcnt({n}) lgkmcnt(0)")
            p("s_barrier")
            rd = reads(t + 1)
            fill = [rd[0:4], rd[4:8], rd[8:10]]
            if st + 4 < NST:
                g = w_list(st + 4)
                fill[2] = fill[2] + g[0]
                fill += [g[1] + g[2], g[3] + g[4]]
                post = sum(x_list(st + 4), [])
        for i, m in enumerate(mf):
            p(m)
            if i < len(fill):
                for l in fill[i]: p(l)
        for l in post: p(l)
    S.stamp()
    p("s_barrier")
    p("s_cmp_eq_u32 s36, 0")
    p("s_cbranch_scc1 F2_kq0")
    for kq in (1, 0):
        if kq == 0: p.label("F2_kq0")
        p("s_nop 9")
        send = range(0, 10) if kq == 1 else range(10, 20)
        keep = range(10, 20) if kq == 1 else range(0, 10)
        for i, g in enumerate(send):
            p(f"ds_write_b128 v14, v[{ACC+4*g}:{ACC+4*g+3}] offset:{1024*i}")
        p("s_waitcnt lgkmcnt(0)")
        p("s_barrier")
        for i in range(10):
            p(f"ds_read_b128 v[{32+4*i}:{35+4*i}], v15 offset:{1024*i}")
        for i, g in enumerate(keep):
            p(f"s_waitcnt lgkmcnt({9-i})")
            r = ACC + 4 * g
            p(f"v_pk_add_f32 v[{r}:{r+1}], v[{r}:{r+1}], v[{32+4*i}:{33+4*i}]")
            p(f"v_pk_add_f32 v[{r+2}:{r+3}], v[{r+2}:{r+3}], v[{34+4*i}:{35+4*i}]")
            if i % 4 == 0: p(f"s_mov_b32 s33, {1024*i}")
            p(f"buffer_store_dwordx4 v[{r}:{r+3}], v13, s[40:43], s33 offen offset:{1024*(i%4)}")
        n0 = S.n
        S.stamp(); S.rt()
        S.dump(10, 11, 28, region=region, vt=20)
        S.n = n0
        p("s_endpgm")

def gen_ffn2(p):
    name = "k4_ffn2_kernel"
    head(p, name)
    p("s_cmp_ge_u32 s2, 256")
    p("s_cbranch_scc1 F2_exit")
    gen_ffn2_body(p)
    p.label("F2_exit")
    p("s_endpgm")
    return kd(name, 184), f"; @launch kernel={name} grid=(256,1,1) block=(256,1,1) lds=81920"

def gen_out(p):
    name = "k5_out_kernel"
    head(p, name)
    p("s_cmp_ge_u32 s2, 256")
    p("s_cbranch_scc1 K5_exit")
    S = Stamps(p); S.stamp(); S.rt()
    p("s_load_dwordx2 s[6:7], s[0:1], 16")
    p("s_load_dwordx2 s[8:9], s[0:1], 64")
    p("s_load_dwordx2 s[10:11], s[0:1], 80")
    p("""
    v_lshrrev_b32 v1, 6, v0
    v_and_b32 v2, 63, v0
    v_and_b32 v3, 15, v0               ; m16 / i
    v_readfirstlane_b32 s28, v1
    v_bfe_u32 v4, v0, 4, 2             ; q
    s_and_b32 s24, s2, 7
    s_lshr_b32 s25, s2, 3
    s_lshl_b32 s26, s24, 2
    s_and_b32 s27, s25, 3
    s_add_u32 s26, s26, s27            ; mb
    s_lshr_b32 s27, s25, 2             ; cb
    s_mul_i32 s29, s27, 160
    s_lshl_b32 s30, s28, 6
    v_add_u32 v5, s30, v2              ; 64w + lane
    """)
    for k in range(5):
        p(f"""
        v_add_u32 v6, {256*k}, v5
        v_mul_u32_u24 v7, 6554, v6
        v_lshrrev_b32 v7, 16, v7
        v_mul_u32_u24 v8, 10, v7
        v_sub_u32 v8, v6, v8
        v_mul_u32_u24 v7, 1280, v7
        v_lshl_add_u32 v7, v8, 4, v7
        v_add_u32 v{10+k}, s29, v7
        """)
    p("""
    s_lshl_b32 s30, s26, 1
    s_lshr_b32 s31, s28, 1
    s_add_u32 s30, s30, s31            ; mtile
    s_and_b32 s31, s28, 1
    s_lshl_b32 s31, s31, 8             ; 16 rows * 16B
    v_lshlrev_b32 v6, 4, v3
    v_lshl_add_u32 v6, v4, 9, v6
    v_add_u32 v6, s31, v6              ; q*512 + m32*16
    s_mul_i32 s32, s30, 40960
    v_add_u32 v15, s32, v6
    s_mul_i32 s32, s30, 81920
    s_mul_i32 s33, s27, 10240
    s_add_u32 s32, s32, s33
    v_add_u32 v16, s32, v6
    s_lshl_b32 s31, s28, 10
    s_waitcnt lgkmcnt(0)
    """)
    srd(p, 16, 6, 7, 640 * 640 * 2)
    srd_off(p, 12, 10, 11, hex(WS_O), 2048 * 640 * 2)
    srd_off(p, 20, 10, 11, hex(WS_B), 2 * 2048 * 640 * 4)
    srd(p, 40, 8, 9, 2048 * 640 * 2)
    sched = [[("m", 0), ("m", 1), ("m", 2)], [("m", 3), ("m", 4), ("m", 5), ("t", 0)], [("m", 6), ("m", 7), ("m", 8), ("t", 1)],
             [("m", 9), ("m", 10), ("m", 11), ("t", 2)], [("m", 12), ("m", 13), ("m", 14), ("m", 15), ("t", 3)]]
    XR = 32; PB = 112; WF = 152; ACC = 192
    steps = [s for st in sched for s in st]
    xreg = {s: XR + 4 * i for i, s in enumerate(steps)}
    cnt = []
    for sg in range(5):
        p(f"s_mov_b32 s34, {sg*128*1280}")
        for k in range(5):
            p(f"s_add_u32 m0, s31, {sg*20480 + 4096*k}")
            p("s_nop 0")
            p(f"buffer_load_dwordx4 v{10+k}, s[16:19], s34 offen lds")
        for s in sched[sg]:
            ks = 2 * s[1] if s[0] == "m" else 32 + 2 * s[1]
            r = xreg[s]
            p(f"s_mov_b32 s33, {ks*1024}")
            p(f"buffer_load_dwordx4 v[{r}:{r+3}], v15, s[12:15], s33 offen")
        cnt.append(5 + len(sched[sg]))
    for h in range(2):
        for u in range(5):
            r = PB + 4 * (5 * h + u)
            if u % 2 == 0: p(f"s_mov_b32 s33, {h*2048*640*4 + 2048*u}")
            p(f"buffer_load_dwordx4 v[{r}:{r+3}], v16, s[20:23], s33 offen offset:{2048*(u%2)}")
    p("""
    v_lshrrev_b32 v6, 1, v4            ; q/2
    v_and_b32 v7, 1, v4                ; q%2
    v_lshrrev_b32 v8, 2, v3            ; r
    v_mul_u32_u24 v9, 20, v6
    v_lshl_add_u32 v9, v7, 2, v9
    v_add_u32 v9, v9, v8
    v_mul_u32_u24 v17, 160, v9
    v_mul_u32_u24 v9, 80, v6
    v_mul_u32_u24 v19, 20, v7
    v_add3_u32 v9, v9, v19, v8
    v_add_u32 v9, 16, v9
    v_mul_u32_u24 v18, 160, v9
    v_and_b32 v8, 3, v3
    v_lshl_add_u32 v17, v8, 3, v17
    v_lshl_add_u32 v18, v8, 3, v18
    v_add_u32 v19, 51200, v17
    v_add_u32 v20, 51200, v18
    s_lshl_b32 s32, s26, 6
    s_lshl_b32 s33, s28, 4
    s_add_u32 s32, s32, s33
    v_add_u32 v21, s32, v3
    v_mul_u32_u24 v21, 1280, v21
    v_lshl_add_u32 v21, v4, 3, v21
    v_add_u32 v21, s29, v21
    """)
    def reads(i):
        s = steps[i]
        b = WF + 20 * (i % 2)
        if s[0] == "m":
            row0 = 40 * s[1]; astep = 8 * 160; reg = 17
        else:
            row0 = 160 * s[1]; astep = 40 * 160; reg = 18
        off = row0 * 160
        if off >= 51200: off -= 51200; reg += 2
        out = []
        for u in range(5):
            for a in range(2):
                r = b + 4 * u + 2 * a
                out.append(f"ds_read_b64_tr_b16 v[{r}:{r+1}], v{reg} offset:{off + a*astep + u*32}")
        return out
    def mfmas(i):
        b = WF + 20 * (i % 2); x = xreg[steps[i]]
        out = []
        for u in range(5):
            d = ACC + 4 * u
            c = "0" if i == 0 else f"v[{d}:{d+3}]"
            out.append(f"v_mfma_f32_16x16x32_bf16 v[{d}:{d+3}], v[{b+4*u}:{b+4*u+3}], v[{x}:{x+3}], {c}")
        return out
    rem = sum(cnt) + 10
    stage_of = [sg for sg in range(5) for _ in sched[sg]]
    S.stamp()
    rem -= cnt[0]
    p(f"s_waitcnt vmcnt({rem})")
    p("s_barrier")
    S.stamp()
    for l in reads(0): p(l)
    for i in range(20):
        if i + 1 < 20:
            if stage_of[i + 1] != stage_of[i]:
                rem -= cnt[stage_of[i + 1]]
                p(f"s_waitcnt vmcnt({rem})")
                p("s_barrier")
            for l in reads(i + 1): p(l)
            p("s_waitcnt lgkmcnt(10)")
        else:
            p("s_waitcnt lgkmcnt(0)")
        for m in mfmas(i): p(m)
    S.stamp()
    p("s_waitcnt vmcnt(0)")
    for u in range(5):
        a = PB + 4 * u; b = PB + 20 + 4 * u
        p(f"v_pk_add_f32 v[{a}:{a+1}], v[{a}:{a+1}], v[{b}:{b+1}]")
        p(f"v_pk_add_f32 v[{a+2}:{a+3}], v[{a+2}:{a+3}], v[{b+2}:{b+3}]")
    for u in range(5):
        a = PB + 4 * u; d = ACC + 4 * u
        p(f"v_pk_add_f32 v[{a}:{a+1}], v[{a}:{a+1}], v[{d}:{d+1}]")
        p(f"v_pk_add_f32 v[{a+2}:{a+3}], v[{a+2}:{a+3}], v[{d+2}:{d+3}]")
        p(f"v_cvt_pk_bf16_f32 v{a}, v{a}, v{a+1}")
        p(f"v_cvt_pk_bf16_f32 v{a+1}, v{a+2}, v{a+3}")
        p(f"buffer_store_dwordx2 v[{a}:{a+1}], v21, s[40:43], 0 offen offset:{32*u}")
    S.stamp(); S.rt()
    S.dump(10, 11, 28, region=2, vt=24)
    p.label("K5_exit")
    p("s_endpgm")
    return kd(name, 212), f"; @launch kernel={name} grid=(256,1,1) block=(256,1,1) lds=102400"
```

```python
from common import *
import common

def gen_k1(p):
    name = "k1_qkv_kernel"
    head(p, name)
    p("s_cmp_ge_u32 s2, 256")
    p("s_cbranch_scc1 K1_end")
    S = Stamps(p)
    S.stamp()
    p("s_load_dwordx4 s[4:7], s[0:1], 0")
    p("s_load_dwordx2 s[8:9], s[0:1], 56")
    p("s_load_dwordx2 s[10:11], s[0:1], 80")
    p("""
    s_and_b32 s24, s2, 7
    s_lshr_b32 s25, s2, 3
    s_and_b32 s26, s24, 3
    s_lshl_b32 s26, s26, 2
    s_and_b32 s27, s25, 3
    s_add_u32 s26, s26, s27
    s_lshr_b32 s27, s24, 2
    s_lshl_b32 s27, s27, 3
    s_lshr_b32 s28, s25, 2
    s_add_u32 s27, s27, s28
    v_lshrrev_b32 v1, 6, v0
    v_and_b32 v2, 63, v0
    s_nop 0
    v_readfirstlane_b32 s28, v1
    """)
    p("""
    v_lshrrev_b32 v5, 3, v2            ; r8
    v_and_b32 v6, 7, v2                ; slot
    v_lshrrev_b32 v7, 1, v5            ; r8>>1
    v_xor_b32 v6, v6, v7               ; chunk
    v_lshlrev_b32 v6, 4, v6
    s_lshl_b32 s29, s26, 7             ; m0 = 128*mt
    s_lshl_b32 s30, s28, 5             ; 32*w
    s_add_u32 s30, s30, s29
    v_add_u32 v5, s30, v5              ; row
    v_mul_u32_u24 v5, 1280, v5
    v_add_u32 v3, v5, v6
    v_xor_b32 v4, 64, v3
    v_add_u32 v4, 10240, v4
    s_lshl_b32 s31, s28, 12            ; w*4096
    """)
    p("s_waitcnt lgkmcnt(0)")
    srd(p, 12, 4, 5, 2048 * 640 * 2)
    p("s_cmp_eq_u32 s27, 15")
    p("s_cbranch_scc1 K1_gate")
    srd(p, 16, 6, 7, 640 * 1920 * 2)
    p("""
    v_lshrrev_b32 v5, 2, v2            ; i/4
    s_lshl_b32 s32, s28, 4
    v_add_u32 v5, s32, v5              ; 16w + i/4
    v_mul_u32_u24 v5, 3840, v5
    v_and_b32 v6, 3, v2
    v_lshlrev_b32 v6, 4, v6
    s_lshl_b32 s32, s27, 8             ; nt*256
    v_add3_u32 v8, v5, v6, s32
    """)
    def dma_list(stage):
        slot = (stage % 5) * 32768
        g = []
        for pc in range(4):
            pre = []
            if pc == 0: pre.append(f"s_mov_b32 s33, {stage*128}")
            if pc == 2: pre.append(f"s_mov_b32 s33, {stage*128+20480}")
            g.append([f"s_add_u32 m0, s31, {slot + pc*1024}"] + (pre if pre else ["s_nop 0"]) +
                     [f"buffer_load_dwordx4 v{3 + pc % 2}, s[12:15], s33 offen lds"])
        for j in range(4):
            pre = []
            if j == 0: pre.append(f"s_mov_b32 s34, {stage*245760}")
            off = f" offset:{64*j}" if j else ""
            g.append([f"s_add_u32 m0, s31, {slot + 16384 + j*960}"] + (pre if pre else ["s_nop 0"]) +
                     [f"buffer_load_dwordx4 v8, s[16:19], s34 offen{off} lds"])
        return g
    for st in range(5):
        for g in dma_list(st):
            for l in g: p(l)
    S.stamp()
    p("""
    s_and_b32 s35, s28, 1              ; wm
    s_lshr_b32 s36, s28, 1             ; wn
    v_and_b32 v5, 31, v2               ; l32
    v_lshrrev_b32 v6, 5, v2            ; hh
    v_lshrrev_b32 v7, 1, v5
    v_and_b32 v7, 7, v7                ; sw
    v_xor_b32 v7, v7, v6
    v_lshlrev_b32 v7, 4, v7
    s_lshl_b32 s37, s35, 13            ; 64*wm*128
    v_lshlrev_b32 v9, 7, v5
    v_add3_u32 v10, v9, v7, s37
    v_xor_b32 v11, 32, v10
    v_xor_b32 v12, 64, v10
    v_xor_b32 v13, 96, v10
    v_and_b32 v7, 3, v2                ; c
    v_lshlrev_b32 v7, 3, v7
    v_bfe_u32 v9, v2, 2, 2             ; r
    v_lshl_add_u32 v7, v9, 6, v7
    v_bfe_u32 v9, v2, 4, 1             ; cg
    v_lshl_add_u32 v7, v9, 5, v7
    v_lshl_add_u32 v7, v6, 9, v7       ; + hh*8*64
    s_lshl_b32 s37, s36, 11
    s_add_u32 s37, s37, 16384
    v_add_u32 v14, s37, v7
    """)
    for k in (1, 2):
        for i in range(5):
            p(f"v_add_u32 v{10+5*k+i}, {65536*k}, v{10+i}")
    p("""
    s_cmp_ge_u32 s27, 5
    s_cselect_b32 s39, 1, 0
    s_cmp_ge_u32 s27, 10
    s_cselect_b32 s39, 2, s39
    s_mul_i32 s38, s39, 5
    s_sub_u32 s38, s27, s38
    s_lshl_b32 s40, s38, 7
    s_lshl_b32 s41, s36, 6
    s_add_u32 s40, s40, s41            ; nbase = 128nt' + 64wn
    s_lshr_b32 s41, s26, 1             ; chunk
    s_mul_i32 s41, s41, 20480
    s_and_b32 s42, s26, 1              ; mt%2
    s_lshl_b32 s42, s42, 1
    s_add_u32 s42, s42, s35            ; pair = 2(mt%2)+wm
    s_cmp_eq_u32 s39, 0
    s_cselect_b32 s43, {WS_Q}, {WS_KV}
    s_mov_b32 s44, 163840
    """.replace("{WS_Q}", hex(WS_Q)).replace("{WS_KV}", hex(WS_KV)))
    srd_off(p, 20, 10, 11, "s43", 32 * HEAD_STRIDE)
    p("s_cmp_eq_u32 s39, 2")
    p("s_cbranch_scc1 K1_vpath")
    ACC = 64
    FR = 32
    OFF = 128

    def reads(t):
        st, ks = divmod(t, 4)
        slot = st % 5
        k = slot // 2; so = (slot % 2) * 32768
        b = FR + 16 * (t % 2)
        out = []
        for tm in range(2):
            out.append(f"ds_read_b128 v[{b+4*tm}:{b+4*tm+3}], v{10+5*k+ks} offset:{so + tm*4096}")
        for tn in range(2):
            for a in range(2):
                r = b + 8 + 4 * tn + 2 * a
                out.append(f"ds_read_b64_tr_b16 v[{r}:{r+1}], v{14+5*k} offset:{so + ks*4096 + tn*1024 + a*256}")
        return out
    def mfmas(t, vrole):
        b = FR + 16 * (t % 2)
        out = []
        for tm in range(2):
            for tn in range(2):
                d = ACC + 16 * (2 * tm + tn)
                x = b + 4 * tm; w = b + 8 + 4 * tn
                a_, b_ = (x, w) if vrole else (w, x)
                out.append(mfma32(d, a_, b_, "0" if t == 0 else None))
        return out
    def mainloop(vrole):
        n0 = S.n
        S.stamp()
        p("s_waitcnt vmcnt(32)")
        p("s_barrier")
        S.stamp()
        for l in reads(0): p(l)
        for t in range(40):
            st, ks = divmod(t, 4)
            mf = mfmas(t, vrole)
            if t == 39:
                p("s_waitcnt lgkmcnt(0)")
                for m in mf: p(m)
            elif ks < 3:
                for l in reads(t + 1): p(l)
                p("s_waitcnt lgkmcnt(6)")
                for m in mf: p(m)
            else:
                n = 8 * (min(st + 4, 9) - (st + 1))
                p(f"s_waitcnt vmcnt({n}) lgkmcnt(0)")
                p("s_barrier")
                if st in (1, 4, 7): S.stamp()
                for l in reads(t + 1): p(l)
                if st + 5 <= 9:
                    g = dma_list(st + 5)
                    for i in range(4):
                        p(mf[i])
                        for l in g[2 * i]: p(l)
                        for l in g[2 * i + 1]: p(l)
                else:
                    for m in mf: p(m)

    p("""
    v_lshlrev_b32 v26, 4, v5
    v_add_u32 v26, s41, v26
    s_lshl_b32 s45, s42, 11
    s_lshl_b32 s46, s42, 9
    s_add_u32 s46, s46, 8192
    v_lshl_add_u32 v27, v6, 2, s40
    v_mov_b32 v144, 8
    v_mov_b32 v145, 0x400
    """)
    for tn in range(2):
        for g in range(4):
            o = OFF + 2 * (4 * tn + g)
            p(f"""
            v_add_u32 v28, {32*tn+8*g}, v27
            v_mul_u32_u24 v29, 3277, v28
            v_lshrrev_b32 v29, 16, v29          ; head
            v_mul_u32_u24 v30, 20, v29
            v_sub_u32 v30, v28, v30             ; d0
            v_mul_lo_u32 v29, v29, s44
            v_add_u32 v29, v29, v26
            v_lshrrev_b32 v31, 3, v30
            v_lshlrev_b32 v31, 9, v31
            v_and_b32 v28, 7, v30
            v_lshl_add_u32 v31, v28, 1, v31
            v_add_u32 v31, s45, v31
            v_cmp_eq_u32 vcc, 16, v30
            v_mov_b32 v28, s46
            s_nop 0
            v_cndmask_b32 v31, v31, v28, vcc
            v_cndmask_b32 v28, v145, v144, vcc
            v_add_u32 v{o}, v29, v31
            v_add_u32 v{o+1}, v{o}, v28
            """)
    mainloop(False)
    S.stamp()
    p("s_cmp_lg_u32 s39, 0")
    p("s_cbranch_scc1 K1_noscale")
    p(f"s_mov_b32 s48, {hex(QSCALE)}")
    p(f"s_mov_b32 s49, {hex(QSCALE)}")
    p("s_nop 7")
    for i in range(32):
        p(f"v_pk_mul_f32 v[{ACC+2*i}:{ACC+2*i+1}], v[{ACC+2*i}:{ACC+2*i+1}], s[48:49]")
    p.label("K1_noscale")
    p("s_nop 7")
    p("s_nop 3")
    for tm in range(2):
        for tn in range(2):
            d = ACC + 16 * (2 * tm + tn)
            for g in range(4):
                t0 = FR + 2 * ((4 * tn + g) + 8 * tm)
                p(f"v_cvt_pk_bf16_f32 v{t0}, v{d+4*g}, v{d+4*g+1}")
                p(f"v_cvt_pk_bf16_f32 v{t0+1}, v{d+4*g+2}, v{d+4*g+3}")
                p(f"buffer_store_dwordx2 v[{t0}:{t0+1}], v{OFF + 2*(4*tn+g) + tm}, s[20:23], 0 offen")
    S.stamp()
    if common.STAMP: p("s_waitcnt vmcnt(0)")
    S.stamp()
    S.dump(10, 11, 28, vt=200)
    S.n = 2
    p("s_endpgm")
    p.label("K1_vpath")
    p("""
    s_mul_i32 s45, s42, 2560
    s_add_u32 s45, s45, s41
    s_add_u32 s45, s45, 10240
    v_mul_u32_u24 v26, 320, v6
    v_add_u32 v26, s45, v26
    v_add_u32 v27, s40, v5             ; n (tn=0)
    """)
    for tn in range(2):
        p(f"""
        v_add_u32 v28, {32*tn}, v27
        v_mul_u32_u24 v29, 3277, v28
        v_lshrrev_b32 v29, 16, v29
        v_mul_u32_u24 v30, 20, v29
        v_sub_u32 v30, v28, v30
        v_mul_lo_u32 v29, v29, s44
        v_lshl_add_u32 v30, v30, 4, v26
        v_add_u32 v{OFF+tn}, v29, v30
        """)
    mainloop(True)
    S.stamp()
    p("s_nop 7")
    p("s_nop 3")
    for tm in range(2):
        for tn in range(2):
            d = ACC + 16 * (2 * tm + tn)
            for half in range(2):
                t0 = FR + 4 * (4 * tm + 2 * tn + half)
                for i in range(4):
                    p(f"v_cvt_pk_bf16_f32 v{t0+i}, v{d+8*half+2*i}, v{d+8*half+2*i+1}")
                p(f"buffer_store_dwordx4 v[{t0}:{t0+3}], v{OFF+tn}, s[20:23], 0 offen offset:{(2*tm+half)*640}")
    S.stamp()
    if common.STAMP: p("s_waitcnt vmcnt(0)")
    S.stamp()
    S.dump(10, 11, 28, vt=200)
    p("s_endpgm")
    p.label("K1_gate")
    srd(p, 16, 8, 9, 1280)
    srd_off(p, 20, 10, 11, hex(WS_G), 8192)
    p("""
    v_and_b32 v5, 15, v2               ; c
    v_lshrrev_b32 v6, 4, v2            ; rsub
    v_lshlrev_b32 v7, 4, v5            ; c*16
    v_add_u32 v8, s30, v6
    v_mul_u32_u24 v9, 1280, v8
    v_add_u32 v9, v9, v7
    v_lshlrev_b32 v8, 2, v8
    """)
    GW = 12
    for j in range(5):
        p(f"buffer_load_dwordx4 v[{GW+4*j}:{GW+4*j+3}], v7, s[16:19], 0 offen offset:{256*j}")
    XR = 32
    for rg in range(8):
        p(f"s_mov_b32 s33, {rg*4*1280}")
        for j in range(5):
            r = XR + 20 * rg + 4 * j
            p(f"buffer_load_dwordx4 v[{r}:{r+3}], v9, s[12:15], s33 offen offset:{256*j}")
    Z = 200
    for rg in range(8):
        p(f"v_mov_b32 v{Z+rg}, 0")
    for rg in range(8):
        p(f"s_waitcnt vmcnt({5*(7-rg)})")
        for j in range(20):
            p(f"v_dot2_f32_bf16 v{Z+rg}, v{XR+20*rg+j}, v{GW+j}, v{Z+rg}")
    p("s_nop 3")
    for sh in (8, 4, 2, 1):
        for rg in range(8):
            p(f"v_add_f32_dpp v{Z+rg}, v{Z+rg}, v{Z+rg} row_ror:{sh} row_mask:0xf bank_mask:0xf")
    p(f"s_mov_b32 s34, {hex(f2u(-math.log2(math.e)))}")
    for rg in range(8): p(f"v_mul_f32 v{Z+rg}, s34, v{Z+rg}")
    for rg in range(8): p(f"v_exp_f32 v{Z+rg}, v{Z+rg}")
    for rg in range(8): p(f"v_add_f32 v{Z+rg}, 1.0, v{Z+rg}")
    for rg in range(8): p(f"v_rcp_f32 v{Z+rg}, v{Z+rg}")
    p("v_cmp_eq_u32 vcc, 0, v5")
    p("s_and_saveexec_b64 s[50:51], vcc")
    for rg in range(8):
        p(f"buffer_store_dword v{Z+rg}, v8, s[20:23], 0 offen offset:{16*rg}")
    p.label("K1_end")
    p("s_endpgm")
    return kd(name, 208), f"; @launch kernel={name} grid=(256,1,1) block=(256,1,1) lds=163840"
```

```python
import sys
from common import *
import k1, att, ffn
HDR = open("gated_mix__mha_block__swiglu_ffn__prompt.s.ref").read().split("\n")
hdr = [l for l in HDR if l.startswith(";") and "@launch" not in l and "Override launch" not in l and "grid=ceil" not in l]
def build(gens, path):
    p = Prog()
    kds, launches = [], []
    for g in gens:
        k, l = g(p)
        if k: kds.append(k)
        launches += l if isinstance(l, list) else [l]
    body = p.text()
    probs = check_hazards(body)
    for x in probs: print("HAZARD:", x)
    out = "\n".join(hdr) + "\n" + "\n".join(launches) + "\n"
    out += '.amdgcn_target "amdgcn-amd-amdhsa--gfx950"\n.text\n' + body
    out += '.section .rodata,"a"\n' + "".join(kds)
    open(path, "w").write(out)
    print("wrote", path, len(out), "bytes", len(probs), "hazards")
GENS = [k1.gen_k1, att.gen_att, ffn.gen_ffn1, ffn.gen_ffn2, ffn.gen_out]
if __name__ == "__main__":
    import common
    if len(sys.argv) > 1 and sys.argv[1] == "stamp":
        common.STAMP = True
        for o in sys.argv[3:]: common.OPT[o.split("=")[0]] = (o.split("=") + ["1"])[1]
        build(GENS, "gen/" + (sys.argv[2] if len(sys.argv) > 2 else "stamp.s"))
        sys.exit(0)
    build(GENS, "gated_mix__mha_block__swiglu_ffn__prompt.s")
```

```python
from common import *
import gen, k1, att, ffn
def e1(p):
    head(p, "e1_kernel"); p("s_endpgm")
    return kd("e1_kernel", 32), ["; @launch kernel=e1_kernel grid=(256,1,1) block=(256,1,1) lds=0"] * 3
def twice(g):
    def f(p):
        k, l = g(p)
        return k, [l, l]
    return f
G = gen.GENS
gen.build(G + [e1], "vB.s")
gen.build([e1] + G, "vC.s")
gen.build([twice(G[0])] + G[1:], "vD.s")
gen.build([G[0], twice(G[1])] + G[2:], "vE.s")
gen.build(G[:2] + [twice(G[2]), twice(G[3]), twice(G[4])], "vF.s")
```

```python
from common import *
import common, att, ffn

def gen_k2(p):
    name = "k2_mix_kernel"
    head(p, name)
    p("s_cmp_ge_u32 s2, 512")
    p("s_cbranch_scc1 K2_exit")
    p("s_cmp_ge_u32 s2, 256")
    p("s_cbranch_scc1 K2_ffn")
    pa = common.OPT.get("prio_att"); pf = common.OPT.get("prio_ffn")
    if pa: p(f"s_setprio {pa}")
    att.gen_att_body(p, region=1)
    p.raw(".p2align 6")
    p.label("K2_ffn")
    if pf: p(f"s_setprio {pf}")
    p("s_sub_u32 s3, s2, 256")
    p("s_load_dwordx2 s[56:57], s[0:1], 72")
    S = ffn.gen_ffn1_body(p, wg="s3", region=1, end=False, sc1=True)
    srd(p, 60, 56, 57, 256)
    p("""
    s_lshr_b32 s29, s27, 3
    s_lshl_b32 s30, s26, 1
    s_add_u32 s29, s29, s30
    s_lshl_b32 s29, s29, 2
    v_mov_b32 v8, s29
    v_mov_b32 v9, 1
    s_waitcnt vmcnt(0)
    s_barrier
    s_cmp_lg_u32 s28, 0
    s_cbranch_scc1 K2_nosig
    s_mov_b64 exec, 1
    buffer_atomic_add v9, v8, s[60:63], 0 offen sc1
    s_mov_b64 exec, -1
    """)
    p.label("K2_nosig")
    def wait(p):
        p("""
        s_lshr_b32 s29, s26, 1
        s_lshl_b32 s29, s29, 1
        s_add_u32 s29, s29, s24
        s_lshl_b32 s29, s29, 2
        v_mov_b32 v8, s29
        s_cmp_lg_u32 s28, 0
        s_cbranch_scc1 K2_polled
        """)
        p.label("K2_poll")
        p("""
        buffer_load_dword v9, v8, s[60:63], 0 offen sc1
        s_waitcnt vmcnt(0)
        v_readfirstlane_b32 s29, v9
        s_cmp_ge_u32 s29, 8
        s_cbranch_scc1 K2_polled
        s_sleep 8
        s_branch K2_poll
        """)
        p.label("K2_polled")
        p("s_barrier")
        S.stamp()
    ffn.gen_ffn2_body(p, wg="s3", region=1, S=S, sc1=True, wait=wait)
    p.label("K2_exit")
    p("s_endpgm")
    return kd(name, att.NVGPR), f"; @launch kernel={name} grid=(512,1,1) block=(256,1,1) lds=81920"
```

```python
import sys
from common import *
import k1, att, ffn, k2, fused
HDR = open("gated_mix__mha_block__swiglu_ffn__prompt.s.ref").read().split("\n")
hdr = [l for l in HDR if l.startswith(";") and "@launch" not in l and "Override launch" not in l and "grid=ceil" not in l]
def build(gens, path):
    p = Prog()
    kds, launches = [], []
    for g in gens:
        k, l = g(p)
        if k: kds.append(k)
        launches += l if isinstance(l, list) else [l]
    p.label("CODE_END")
    p("s_endpgm")
    body = p.text()
    probs = check_hazards(body)
    for x in probs: print("HAZARD:", x)
    out = "\n".join(hdr) + "\n" + "\n".join(launches) + "\n"
    out += '.amdgcn_target "amdgcn-amd-amdhsa--gfx950"\n.text\n' + body
    out += '.section .rodata,"a"\n' + "".join(kds)
    open(path, "w").write(out)
    print("wrote", path, len(out), "bytes", len(probs), "hazards")
GENS = [fused.gen_fused]
if __name__ == "__main__":
    import common
    if len(sys.argv) > 1 and sys.argv[1] == "stamp":
        common.STAMP = True
        for o in sys.argv[3:]: common.OPT[o.split("=")[0]] = (o.split("=") + ["1"])[1]
        build(GENS, "gen/" + (sys.argv[2] if len(sys.argv) > 2 else "stamp.s"))
        sys.exit(0)
    if len(sys.argv) > 2 and sys.argv[1] == "var":
        for o in sys.argv[3:]: common.OPT[o.split("=")[0]] = (o.split("=") + ["1"])[1]
        build(GENS, "gen/" + sys.argv[2])
        sys.exit(0)
    common.OPT["plain"] = "1"
    build(GENS, "gated_mix__mha_block__swiglu_ffn__prompt.s")
```

```python
from common import *
import common

S0 = 16; NM = 80; OO = 112; PP = 144; QA = 160; QB = 164; QT = 168
KM = 172; KT = 180; VV = 188
NVGPR = 224
LTHRESH = f2u(2.0 ** 60)
BIG = 40960

def m2b(d, a, b, c=None):
    cs = f"v[{d}:{d+31}]" if c is None else c
    return f"v_mfma_f32_32x32x4_2b_bf16 v[{d}:{d+31}], v[{a}:{a+1}], v[{b}:{b+1}], {cs}"

def gen_att_body(p, pre="AT", region=1, publish=None):
    S = Stamps(p)
    S.stamp(); S.rt()
    sc = " sc1" if publish else ""
    p("s_setprio %s" % common.OPT.get("ph", "1"))
    p("s_load_dwordx4 s[8:11], s[0:1], 72")
    p("""
    s_and_b32 s24, s2, 31              ; head
    s_lshr_b32 s25, s2, 5              ; qb
    v_lshrrev_b32 v1, 6, v0
    v_and_b32 v2, 63, v0               ; lane
    v_and_b32 v3, 31, v0               ; l32
    v_readfirstlane_b32 s28, v1        ; wave
    v_bfe_u32 v4, v0, 5, 1             ; hh
    s_mul_i32 s26, s24, 163840
    s_mul_i32 s27, s25, 20480
    s_add_u32 s27, s27, s26
    v_lshlrev_b32 v5, 4, v2
    v_lshlrev_b32 v6, 4, v3            ; l32*16
    s_mul_i32 s29, s28, 5120
    v_add_u32 v8, s29, v5
    v_add_u32 v9, 0x1000, v8
    s_lshl_b32 s30, s28, 11
    v_add_u32 v10, s30, v5
    s_lshl_b32 s30, s28, 9
    s_add_u32 s30, s30, 8192
    v_lshl_add_u32 v11, v4, 3, v6
    v_add_u32 v11, s30, v11
    s_lshl_b32 s30, s25, 8
    s_lshl_b32 s31, s28, 6
    s_add_u32 s30, s30, s31
    v_add_u32 v12, s30, v3
    v_lshlrev_b32 v12, 2, v12
    s_mov_b32 s44, 0
    s_mov_b32 s46, 0x000fffff
    s_mov_b32 s47, 0x000fffff
    """)
    p(f"s_add_u32 s27, s27, {hex(WS_Q)}")
    p("s_waitcnt lgkmcnt(0)")
    srd_off(p, 16, 10, 11, "s27", CHUNK)
    p(f"buffer_load_dwordx4 v[{QA}:{QA+3}], v10, s[16:19], 0 offen")
    p(f"buffer_load_dwordx4 v[{QB}:{QB+3}], v10, s[16:19], 0 offen offset:1024")
    p(f"buffer_load_dwordx2 v[{QT}:{QT+1}], v11, s[16:19], 0 offen")
    srd_off(p, 12, 10, 11, "s26", HEAD_STRIDE)

    def dma_half(h):
        out = []
        if h == 0:
            out.append(["s_add_u32 m0, s37, s29", "s_nop 0", "buffer_load_dwordx4 v8, s[12:15], s36 offen lds"])
            so = "s36"
        else:
            out.append([f"s_add_u32 m0, m0, {20480-4096}", "s_add_u32 s45, s36, 20480", "buffer_load_dwordx4 v8, s[12:15], s45 offen lds"])
            so = "s45"
        for j in (1, 2, 3):
            out.append([f"buffer_load_dwordx4 v8, s[12:15], {so} offen offset:{1024*j} lds"])
        out.append(["s_add_u32 m0, m0, 0x1000", "s_nop 0", f"buffer_load_dwordx4 v9, s[12:15], {so} offen lds"])
        return out
    def emit(gs):
        for g in gs:
            for l in g: p(l)

    p.label(f"{pre}_pass")
    p("s_mov_b32 s36, 0")
    p("s_mov_b32 s37, 0")
    emit(dma_half(0) + dma_half(1))
    srd_off(p, 20, 10, 11, hex(WS_G), 8192)
    p("buffer_load_dword v14, v12, s[20:23], 0 offen")
    p("buffer_load_dword v15, v12, s[20:23], 0 offen offset:128")
    srd_off(p, 32, 10, 11, hex(WS_O), 2048 * 640 * 2)
    p("""
    v_lshlrev_b32 v5, 4, v2
    v_add_u32 v7, 8192, v6
    v_mul_u32_u24 v13, 320, v4
    v_add_u32 v13, v13, v6
    v_add_u32 v13, 10240, v13
    v_or_b32 v1, 4, v3
    v_cmp_eq_u32 vcc, 28, v1
    v_mov_b32 v1, 0x3f803f80
    s_nop 0
    v_cndmask_b32 v1, 0, v1, vcc
    """)
    for i in range(32): p(f"v_mov_b32 v{VV+i}, v1")
    for i in range(32): p(f"v_mov_b32 v{OO+i}, 0")
    for i in range(4): p(f"v_mov_b32 v{S0+32+28+i}, 0")
    for i in range(2): p(f"v_mov_b32 v{PP+12+i}, 0")
    S.stamp()
    p("s_waitcnt vmcnt(7)")
    p("s_barrier")
    S.stamp()
    def hb(b): return 20480 * (b // 8)
    def rd_km(b):
        r = KM + 4 * (b % 2)
        return f"ds_read_b128 v[{r}:{r+3}], v5 offset:{hb(b) + 1024*(b%8)}"
    def rd_kt(b):
        r = KT + 4 * ((b // 2) % 2)
        return f"ds_read_b128 v[{r}:{r+3}], v7 offset:{hb(b) + 512*((b%8)//2)}"
    def rd_v(b):
        out = []
        for g in range(2):
            r = VV + 8 * (b % 4) + 4 * g
            out.append(f"ds_read_b128 v[{r}:{r+3}], v13 offset:{hb(b) + 640*(2*(b%8)+g)}")
        return out
    p(rd_kt(0)); p(rd_km(0)); p(rd_km(1))
    p("s_mov_b64 exec, s[46:47]")
    for l in rd_v(0) + rd_v(1): p(l)
    p("s_mov_b64 exec, -1")
    p(f"s_mov_b32 s36, {BIG}")
    p(f"s_mov_b32 s37, {BIG}")
    p("s_cmp_eq_u32 s44, 1")
    p(f"s_cbranch_scc1 {pre}_havemax")
    p("s_waitcnt lgkmcnt(5)")
    p(mfma32(S0, KM, QA, "0")); p(mfma32(S0 + 16, KM, QB, "0"))
    p("s_nop 9")
    p(m2b(S0, KT, QT))
    p("s_nop 15"); p("s_nop 3")
    def finish_max():
        for t in range(2):
            d = NM + 16 * t
            p(f"v_mov_b32 v{d+1}, v{d}")
        p("s_nop 1")
        for t in range(2):
            d = NM + 16 * t
            p(f"v_permlane32_swap_b32 v{d}, v{d+1}")
        for t in range(2):
            d = NM + 16 * t
            p(f"v_max_f32 v{d}, v{d}, v{d+1}")
            p(f"v_sub_f32 v{d}, 0, v{d}")
        for k in range(1, 16):
            for t in range(2): p(f"v_mov_b32 v{NM+16*t+k}, v{NM+16*t}")
    for t in range(2):
        b = S0 + 16 * t; d = NM + 16 * t
        p(f"v_max3_f32 v{d}, v{b}, v{b+1}, v{b+2}")
        for k in range(3, 15, 2):
            p(f"v_max3_f32 v{d}, v{d}, v{b+k}, v{b+k+1}")
        p(f"v_max_f32 v{d}, v{d}, v{b+15}")
    finish_max()
    p.label(f"{pre}_havemax")
    p("s_waitcnt lgkmcnt(0)")
    p("s_nop 0")
    p(mfma32(S0, KM, QA, NM)); p(mfma32(S0 + 16, KM, QB, NM + 16))
    p("s_mov_b32 s38, 0")
    p(f"s_mov_b32 s39, {BIG}")
    p("s_waitcnt vmcnt(0)")
    p("s_barrier")
    p("s_nop 5")
    p(m2b(S0, KT, QT))
    p("s_nop 15"); p("s_nop 2")
    S.stamp()
    p(f"s_branch {pre}_mid")

    def iteration(j):
        i = j - 2
        cur = S0 + 32 * (i % 2); nxt = S0 + 32 * ((i + 1) % 2)
        km = KM + 4 * ((i + 1) % 2)
        kt = KT + 4 * (((i + 1) // 2) % 2) + 2 * ((i + 1) % 2)
        vb = VV + 8 * (i % 4); vprev = VV + 8 * ((i - 1) % 4)
        def E(k, lo=0, hi=4):
            for r in range(lo, hi): p(f"v_exp_f32 v{cur+4*k+r}, v{cur+4*k+r}")
        def C(k, base=cur):
            p(f"v_cvt_pk_bf16_f32 v{PP+2*k}, v{base+4*k}, v{base+4*k+1}")
            p(f"v_cvt_pk_bf16_f32 v{PP+2*k+1}, v{base+4*k+2}, v{base+4*k+3}")
        E(0); C(7, nxt)
        p("s_waitcnt lgkmcnt(0)")
        p(mfma32(nxt, km, QA, NM))
        E(1); C(0)
        p(mfma32(OO + 16, vprev + 4, PP + 12))
        E(2); C(1)
        p(mfma32(nxt + 16, km, QB, NM + 16))
        if j % 2 == 0:
            p("s_mov_b64 exec, s[46:47]")
            for l in rd_v(j) + rd_v(j + 1): p(l)
            p("s_mov_b64 exec, -1")
        E(3); C(2)
        g = (dma_half(0) + dma_half(1))[j - 2] if 2 <= j < 12 else []
        for l in g[:-1]:
            if l != "s_nop 0": p(l)
        p(mfma32(OO, vb, PP))
        for l in g[-1:]: p(l)
        E(4); C(3)
        p(m2b(nxt, kt, QT))
        p(rd_km(j))
        if j % 2 == 0: p(rd_kt(j))
        E(5); C(4); E(6, 0, 2)
        p(mfma32(OO, vb + 4, PP + 4))
        E(6, 2, 4); C(5); E(7, 0, 2)
        p(mfma32(OO + 16, vb, PP + 8))
        E(7, 2, 4); C(6)

    p.raw(".p2align 6")
    p.label(f"{pre}_loop")
    if common.STAMP:
        b0 = S.base + 2 * S.n
        for k in range(3): p(f"s_mov_b32 s{b0+2*k}, s{b0+2*k+2}")
        p(f"s_memtime s[{b0+6}:{b0+7}]")
        S.n += 4
    p("s_waitcnt vmcnt(0) lgkmcnt(0)")
    p("s_barrier")
    if common.STAMP:
        b0 = S.base + 2 * S.n
        for k in range(3): p(f"s_mov_b32 s{b0+2*k}, s{b0+2*k+2}")
        p(f"s_memtime s[{b0+6}:{b0+7}]")
        S.n += 4
    p("v_add_u32 v5, s39, v5")
    p("v_add_u32 v7, s39, v7")
    p("v_add_u32 v13, s39, v13")
    p("s_sub_u32 s39, 0, s39")
    p(f"s_add_u32 s36, s36, {BIG}")
    p(f"s_sub_u32 s37, {BIG}, s37")
    iteration(0); iteration(1)
    p("s_cmp_eq_u32 s38, 4")
    p(f"s_cbranch_scc1 {pre}_done")
    p.label(f"{pre}_mid")
    for j in range(2, 16): iteration(j)
    p("s_add_u32 s38, s38, 1")
    p(f"s_branch {pre}_loop")
    p.label(f"{pre}_done")
    S.stamp()
    cur = S0 + 32
    p(f"v_cvt_pk_bf16_f32 v{PP+14}, v{cur+28}, v{cur+29}")
    p(f"v_cvt_pk_bf16_f32 v{PP+15}, v{cur+30}, v{cur+31}")
    p("""
    s_lshl_b32 s30, s25, 3
    s_lshl_b32 s31, s28, 1
    """)
    p(mfma32(OO + 16, VV + 8 * 3 + 4, PP + 12))
    p("""
    s_add_u32 s30, s30, s31
    s_mul_i32 s30, s30, 40960
    s_lshl_b32 s31, s24, 10
    s_add_u32 s31, s31, s30
    v_lshlrev_b32 v10, 4, v2
    v_add_u32 v10, s31, v10
    s_lshr_b32 s40, s24, 2
    s_add_u32 s40, s40, 32
    s_lshl_b32 s40, s40, 10
    s_add_u32 s40, s40, s30
    s_and_b32 s41, s24, 1
    s_lshl_b32 s41, s41, 9
    s_add_u32 s40, s40, s41
    s_and_b32 s41, s24, 2
    s_lshl_b32 s41, s41, 2
    s_add_u32 s40, s40, s41
    v_add_u32 v11, s40, v6
    s_mov_b32 s41, 40960
    s_waitcnt lgkmcnt(0)
    """)
    p(f"s_mov_b32 s42, {hex(LTHRESH)}")
    p(f"v_cmp_ngt_f32 vcc, s42, v{OO+12}")
    p(f"v_cmp_ngt_f32 s[48:49], s42, v{OO+16+12}")
    for t in range(2):
        o = OO + 16 * t
        p(f"v_rcp_f32 v{o+13}, v{o+12}")
    p("s_or_b64 vcc, vcc, s[48:49]")
    p("s_cmp_lg_u64 vcc, 0")
    p("s_cselect_b32 s43, 1, 0")
    p("s_cmp_eq_u32 s44, 1")
    p("s_cselect_b32 s43, 0, s43")
    p("""
    v_mov_b32 v1, s43
    s_lshl_b32 s45, s28, 2
    v_mov_b32 v12, s45
    ds_write_b32 v12, v1
    """)
    for t in range(2):
        o = OO + 16 * t
        p(f"v_mul_f32 v{o+13}, v{o+13}, v{14+t}")
    for t in range(2):
        o = OO + 16 * t
        for k in range(12): p(f"v_mul_f32 v{o+k}, v{o+k}, v{o+13}")
        for k in range(6): p(f"v_cvt_pk_bf16_f32 v{PP+8*t+k}, v{o+2*k}, v{o+2*k+1}")
        so = "0" if t == 0 else "s41"
        p(f"buffer_store_dwordx4 v[{PP+8*t}:{PP+8*t+3}], v10, s[32:35], {so} offen{sc}")
    p("s_mov_b32 exec_hi, 0")
    for t in range(2):
        so = "0" if t == 0 else "s41"
        p(f"buffer_store_dwordx2 v[{PP+8*t+4}:{PP+8*t+5}], v11, s[32:35], {so} offen{sc}")
    p("s_mov_b64 exec, -1")
    p("""
    v_mov_b32 v12, 0
    s_waitcnt vmcnt(0) lgkmcnt(0)
    s_barrier
    ds_read_b128 v[172:175], v12
    s_waitcnt lgkmcnt(0)
    v_or_b32 v172, v172, v173
    v_or3_b32 v172, v172, v174, v175
    s_nop 0
    v_readfirstlane_b32 s43, v172
    s_cmp_lg_u32 s43, 0
    """)
    p(f"s_cbranch_scc1 {pre}_fallback")
    if publish: publish(p)
    S.stamp(); S.rt()
    S.dump(10, 11, 28, region=region, vt=220)
    p("s_endpgm")
    p.label(f"{pre}_fallback")
    p("s_mov_b32 s36, 0")
    p("s_mov_b32 s37, 0")
    p("v_lshlrev_b32 v5, 4, v2")
    p("v_add_u32 v7, 8192, v6")
    p("""
    s_lshl_b32 s30, s25, 8
    s_lshl_b32 s31, s28, 6
    s_add_u32 s30, s30, s31
    v_add_u32 v12, s30, v3
    v_lshlrev_b32 v12, 2, v12
    """)
    p(f"v_mov_b32 v{NM}, 0xff800000")
    p(f"v_mov_b32 v{NM+16}, 0xff800000")
    p.label(f"{pre}_fb_chunk")
    p("s_barrier")
    emit(dma_half(0))
    p("s_waitcnt vmcnt(0)")
    p("s_barrier")
    for b in range(8):
        p(f"ds_read_b128 v[{KM}:{KM+3}], v5 offset:{1024*b}")
        p(f"ds_read_b128 v[{KT}:{KT+3}], v7 offset:{512*(b//2)}")
        p("s_waitcnt lgkmcnt(0)")
        p(mfma32(S0, KM, QA, "0")); p(mfma32(S0 + 16, KM, QB, "0"))
        p("s_nop 9")
        p(m2b(S0, KT + 2 * (b % 2), QT))
        p("s_nop 15"); p("s_nop 3")
        for t in range(2):
            bb = S0 + 16 * t; d = NM + 16 * t
            for k in range(0, 16, 2):
                p(f"v_max3_f32 v{d}, v{d}, v{bb+k}, v{bb+k+1}")
    p("s_add_u32 s36, s36, 20480")
    p("s_cmp_lt_u32 s36, 163840")
    p(f"s_cbranch_scc1 {pre}_fb_chunk")
    finish_max()
    p("s_mov_b32 s44, 1")
    p("s_barrier")
    p(f"s_branch {pre}_pass")
```

```python
from asmlib import *
import struct, math
WS_KV = 0
WS_Q = 0x500000
WS_G = 0xA00000
WS_H = 0xB00000
WS_O = 0x1100000
WS_B = 0x1400000
WS_W = 0x1400000
WP_CB = 17 * 20480
WS_F = 0x1800000
WS_SIZE = 0x2000000
HEAD_STRIDE = 163840
CHUNK = 20480
def f2u(x): return struct.unpack("<I", struct.pack("<f", x))[0]
QSCALE = f2u(math.log2(math.e) / math.sqrt(20.0))
LOG2E = f2u(math.log2(math.e))

def kd(name, vgpr, sgpr=102, accum=None):
    accum = accum if accum is not None else ((vgpr + 3) // 4) * 4
    return f""".p2align 6
.amdhsa_kernel {name}
  .amdhsa_next_free_vgpr {vgpr}
  .amdhsa_next_free_sgpr {sgpr}
  .amdhsa_accum_offset {accum}
  .amdhsa_group_segment_fixed_size 0
  .amdhsa_kernarg_size 88
  .amdhsa_user_sgpr_count 2
  .amdhsa_user_sgpr_kernarg_segment_ptr 1
  .amdhsa_system_sgpr_workgroup_id_x 1
.end_amdhsa_kernel
"""

def head(p, name):
    p.raw(f".globl {name}")
    p.raw(".p2align 8")
    p.raw(f".type {name},@function")
    p.label(name)

def srd(p, d, lo, hi, nbytes):
    p(f"s_mov_b32 s{d}, s{lo}")
    p(f"s_mov_b32 s{d+1}, s{hi}")
    p(f"s_mov_b32 s{d+2}, {hex(nbytes)}")
    p(f"s_mov_b32 s{d+3}, 0x00020000")

def srd_off(p, d, lo, hi, off, nbytes):
    p(f"s_add_u32 s{d}, s{lo}, {off}")
    p(f"s_addc_u32 s{d+1}, s{hi}, 0")
    p(f"s_mov_b32 s{d+2}, {hex(nbytes)}")
    p(f"s_mov_b32 s{d+3}, 0x00020000")

def mfma32(d, a, b, c=None):
    cs = "0" if c == 0 and c is not None and isinstance(c, int) and False else None
    if c == "0": cstr = "0"
    else:
        c = d if c is None else c
        cstr = f"v[{c}:{c+15}]"
    return f"v_mfma_f32_32x32x16_bf16 v[{d}:{d+15}], v[{a}:{a+3}], v[{b}:{b+3}], {cstr}"

WS_DBG = 0x1E00000
STAMP = False
OPT = {}
class Stamps:
    def __init__(self, p, base=64):
        self.p = p; self.base = base; self.n = 0; self.off = False
    def stamp(self):
        if not globals()['STAMP'] or self.off: return
        r = self.base + 2 * self.n
        self.p(f"s_mem{'real' if OPT.get('rt') else ''}time s[{r}:{r+1}]")
        self.n += 1
    def rt(self):
        if not globals()['STAMP']: return
        r = self.base + 2 * self.n
        self.p(f"s_memrealtime s[{r}:{r+1}]")
        self.n += 1
    def dump(self, wslo, wshi, wave_s, region=0, vt=250):
        if not globals()['STAMP']: return
        p = self.p
        p("s_waitcnt lgkmcnt(0)")
        p(f"s_add_u32 s96, s{wslo}, {hex(WS_DBG + region * 0x40000)}")
        p(f"s_addc_u32 s97, s{wshi}, 0")
        p("s_mov_b32 s98, 0x40000")
        p("s_mov_b32 s99, 0x00020000")
        p("s_lshl_b32 s100, s2, 9")
        p(f"s_lshl_b32 s101, s{wave_s}, 6")
        p("s_add_u32 s100, s100, s101")
        p("s_mov_b64 exec, 1")
        p(f"v_mov_b32 v{vt}, s100")
        for i in range(self.n):
            p(f"v_mov_b32 v{vt+1}, s{self.base+2*i}")
            p(f"buffer_store_dword v{vt+1}, v{vt}, s[96:99], 0 offen offset:{4*i}")
            p("s_nop 1")
```

```python
from common import *
import common
from ffn import ids_common

NST = 12
def w2_setup(p, wg):
    p(f"""
    s_lshr_b32 s57, {wg}, 3            ; j
    s_lshr_b32 s58, s57, 2             ; cb
    s_mul_i32 s54, s28, 5120
    v_lshlrev_b32 v21, 4, v2
    v_add_u32 v21, s54, v21
    v_add_u32 v1, 0x1000, v21
    s_add_u32 s55, s57, s58
    s_and_b32 s55, s55, 3
    s_mul_i32 s55, s55, 3
    s_mul_i32 s57, s58, {WP_CB}
    s_add_u32 s57, s57, {hex(WS_W)}
    """)
    srd_off(p, 48, 10, 11, "s57", WP_CB)
def w2_touch(i):
    if common.OPT.get("notouch") or not 0 <= i < 8: return []
    out = []
    for n in (2 * i, 2 * i + 1):
        if n >= 15: continue
        st, k = divmod(n, 5)
        out += ["s_mul_i32 s56, s55, 20480", f"s_add_u32 s56, s56, {st*20480 + 1024*k}", "buffer_load_dwordx4 v[26:29], v21, s[48:51], s56 offen"]
    return out
def w_list(st):
    slot = (st % 4) * 20480
    if st < NST:
        h = ["s_mul_i32 s56, s55, 20480"]; t = ["s_add_u32 s55, s55, 1", "s_cmp_eq_u32 s55, 12", "s_cselect_b32 s55, 0, s55"]
    else:
        h = ["s_mul_i32 s56, s52, 20480", f"s_add_u32 s56, s56, {12*20480}"]; t = ["s_add_u32 s52, s52, 1", "s_cmp_eq_u32 s52, 5", "s_cselect_b32 s52, 0, s52"]
    g = [[f"s_add_u32 m0, s54, {slot}"] + h + ["buffer_load_dwordx4 v21, s[48:51], s56 offen lds"]]
    for k in (1, 2, 3):
        g.append([f"buffer_load_dwordx4 v21, s[48:51], s56 offen offset:{1024*k} lds"])
    g.append([f"s_add_u32 m0, s54, {slot + 4096}"] + t + ["buffer_load_dwordx4 v1, s[48:51], s56 offen lds"])
    return g

def gen_f2o_body(p, wg, S, wait_h, wait_o, region=1, hiprio=0):
    p("s_load_dwordx2 s[8:9], s[0:1], 64")
    p(f"""
    s_and_b32 s24, {wg}, 7             ; qb
    s_lshr_b32 s25, {wg}, 3
    s_lshl_b32 s26, s24, 2
    s_and_b32 s27, s25, 3
    s_add_u32 s26, s26, s27            ; mb
    s_lshr_b32 s27, s25, 2             ; cb
    s_and_b32 s35, s28, 1              ; wm
    s_lshr_b32 s36, s28, 1             ; kq
    s_mul_i32 s29, s27, 160
    v_lshlrev_b32 v9, 4, v2
    ; rotated stage 3*((mb_local + cb) % 4) ; O-phase rotation cb % 5
    s_add_u32 s39, s25, s27
    s_and_b32 s39, s39, 3
    s_mul_i32 s39, s39, 3
    s_cmp_ge_u32 s27, 5
    s_cselect_b32 s52, 5, 0
    s_sub_u32 s52, s27, s52
    s_mov_b32 s53, s52
    s_lshl_b32 s30, s26, 1
    s_add_u32 s30, s30, s35
    s_mul_i32 s32, s30, 96
    s_lshl_b32 s33, s36, 2
    s_add_u32 s32, s32, s33
    s_lshl_b32 s32, s32, 10
    v_add_u32 v25, s32, v9
    """)
    srd_off(p, 12, 10, 11, hex(WS_H), 2048 * 1536 * 2)
    XR = 32
    WF = 96
    ACC = 120
    def x_list(st):
        g = []
        for ks in range(4):
            r = XR + 4 * ((4 * st + ks) % 16)
            pre = {0: ["s_lshl_b32 s33, s39, 13"], 1: ["s_add_u32 s39, s39, 1"], 2: ["s_cmp_eq_u32 s39, 12", "s_cselect_b32 s39, 0, s39"]}.get(ks, [])
            g.append(pre + [f"buffer_load_dwordx4 v[{r}:{r+3}], v25, s[12:15], s33 offen offset:{1024*ks} sc1"])
        return g
    def emit(gs):
        for g in gs:
            for l in g: p(l)
    p("""
    v_and_b32 v6, 15, v2
    v_lshlrev_b32 v6, 4, v6
    v_lshl_add_u32 v6, v4, 8, v6
    s_mul_i32 s32, s36, 10240
    v_add_u32 v28, s32, v6
    v_bfe_u32 v7, v2, 4, 1
    v_lshl_add_u32 v26, v7, 9, v28
    v_add_u32 v27, 40960, v26
    v_add_u32 v29, 40960, v28
    """)
    if hiprio: p("s_setprio %s" % common.OPT.get("mp2", "0"))
    wait_h(p, lambda: emit(w_list(3)))
    for st in range(4): emit(x_list(st))
    def reads(t):
        st, ks = divmod(t, 4)
        slot = st % 4
        k = slot // 2; so = (slot % 2) * 20480
        b = WF + 12 * (t % 2)
        out = []
        for j in range(3):
            r = b + 4 * j
            reg = (26 if j < 2 else 28) + k
            out.append(f"ds_read_b128 v[{r}:{r+3}], v{reg} offset:{so + ks*2560 + j*1024}")
        return out
    def mfmas(t):
        b = WF + 12 * (t % 2)
        x = XR + 4 * (t % 16)
        return [mfma32(ACC + 16 * j, b + 4 * j, x, "0" if t == 0 else None) for j in range(3)]
    if not common.OPT.get("fine"): S.stamp()
    p("s_waitcnt vmcnt(12)")
    p("s_barrier")
    S.stamp()
    for l in reads(0): p(l)
    T = 4 * NST
    log = [("w", s) for s in range(4) for _ in range(5)] + [("x", s) for s in range(4) for _ in range(4)]
    def younger_than(stage):
        last = max(i for i, e in enumerate(log) if e[1] == stage)
        return len(log) - 1 - last
    for t in range(T):
        st, ks = divmod(t, 4)
        mf = mfmas(t)
        post = []
        rd = reads(t + 1) if t < T - 1 else []
        fill = [rd[0:3], [], []]
        if ks == 3 and t < T - 1:
            p(f"s_waitcnt vmcnt({younger_than(st + 1)}) lgkmcnt(0)")
            p("s_barrier")
            if st + 4 < NST + 2:
                post = sum(w_list(st + 4), []); log += [("w", st + 4)] * 5
            if st + 4 < NST:
                post += sum(x_list(st + 4), []); log += [("x", st + 4)] * 4
        else:
            p("s_waitcnt lgkmcnt(0)")
        for i, m in enumerate(mf):
            p(m)
            for l in fill[i]: p(l)
        for l in post: p(l)
    S.stamp()
    if hiprio: p(f"s_setprio {hiprio}")
    p("""
    v_and_b32 v3, 15, v0               ; m16
    v_bfe_u32 v4, v0, 4, 2             ; q
    s_mul_i32 s32, s28, 10240
    s_add_u32 s32, s32, 40960
    v_add_u32 v30, s32, v9
    s_lshl_b32 s33, s35, 8             ; 16 rows*16B * (w%2)
    v_lshlrev_b32 v6, 4, v3
    v_lshl_add_u32 v6, v4, 9, v6
    v_add_u32 v6, s33, v6              ; q*512 + m32*16
    s_mul_i32 s32, s36, 10240
    s_add_u32 s32, s32, 40960
    v_add_u32 v31, s32, v6
    s_barrier
    """)
    for g in range(10):
        p(f"ds_write_b128 v30, v[{ACC+4*g}:{ACC+4*g+3}] offset:{1024*g}")
    p("""
    s_lshl_b32 s30, s26, 1
    s_add_u32 s30, s30, s36
    s_mul_i32 s32, s30, 40960
    v_add_u32 v25, s32, v6             ; O' offset
    v_lshrrev_b32 v7, 1, v4
    v_mul_u32_u24 v7, 2560, v7
    v_and_b32 v8, 1, v4
    v_lshl_add_u32 v7, v8, 8, v7
    v_lshl_add_u32 v26, v3, 4, v7
    v_add_u32 v27, 40960, v26
    s_lshl_b32 s32, s26, 6
    s_lshl_b32 s33, s28, 4
    s_add_u32 s32, s32, s33
    v_add_u32 v28, s32, v3
    v_mul_u32_u24 v28, 1280, v28
    v_lshl_add_u32 v28, v4, 3, v28
    v_add_u32 v28, s29, v28
    """)
    srd_off(p, 12, 10, 11, hex(WS_O), 2048 * 640 * 2)
    p("s_waitcnt vmcnt(0) lgkmcnt(0)")
    srd(p, 40, 8, 9, 2048 * 640 * 2)
    p("s_barrier")
    A2 = 200
    XO = 32
    WR = 112
    for u in range(5):
        p(f"ds_read_b128 v[{A2+4*u}:{A2+4*u+3}], v31 offset:{2048*u}")
        p(f"ds_read_b128 v[{XO+4*u}:{XO+4*u+3}], v31 offset:{20480 + 2048*u}")
    def oreads(i):
        sg, ks = divmod(i, 4)
        slot = sg % 4
        k = slot // 2; so = (slot % 2) * 20480
        b = WR + 20 * (i % 4)
        out = []
        for u in range(5):
            r = b + 4 * u
            out.append(f"ds_read_b128 v[{r}:{r+3}], v{26+k} offset:{so + ks*5120 + u*512}")
        return out
    p("s_waitcnt lgkmcnt(0)")
    for i in range(4):
        for l in oreads(i): p(l)
        if i == 0:
            for u in range(5):
                a = A2 + 4 * u; b = XO + 4 * u
                p(f"v_pk_add_f32 v[{a}:{a+1}], v[{a}:{a+1}], v[{b}:{b+1}]")
                p(f"v_pk_add_f32 v[{a+2}:{a+3}], v[{a+2}:{a+3}], v[{b+2}:{b+3}]")
        if i % 2 == 1: p("s_waitcnt lgkmcnt(0)")
    p("s_barrier")
    if hiprio: p("s_setprio 0")
    S.stamp()
    wait_o(p, lambda: emit(w_list(NST + 2) + w_list(NST + 3) + w_list(NST + 4)))
    if hiprio: p(f"s_setprio {hiprio}")
    for i in range(20):
        if i % 4 == 0:
            p("s_lshl_b32 s33, s53, 13"); p("s_add_u32 s53, s53, 1")
        if i % 4 == 2:
            p("s_add_u32 s33, s33, 4096"); p("s_cmp_eq_u32 s53, 5"); p("s_cselect_b32 s53, 0, s53")
        p(f"buffer_load_dwordx4 v[{XO+4*i}:{XO+4*i+3}], v25, s[12:15], s33 offen offset:{2048*(i%2)} sc1")
    if not common.OPT.get("fine"): S.stamp()
    for i in range(20):
        b = WR + 20 * (i % 4); x = XO + 4 * i
        if i >= 1:
            n = min(5 * (min(i + 3, 19) - i), 10)
            p(f"s_waitcnt vmcnt({19-i}) lgkmcnt({n})")
        else:
            p(f"s_waitcnt vmcnt({19-i})")
        for u in range(5):
            d = A2 + 4 * u
            p(f"v_mfma_f32_16x16x32_bf16 v[{d}:{d+3}], v[{b+4*u}:{b+4*u+3}], v[{x}:{x+3}], v[{d}:{d+3}]")
        if i + 4 < 20:
            for l in oreads(i + 4): p(l)
    if not common.OPT.get("fine"): S.stamp()
    p("s_nop 3")
    for u in range(5):
        d = A2 + 4 * u
        p(f"v_cvt_pk_bf16_f32 v{XO+2*u}, v{d}, v{d+1}")
        p(f"v_cvt_pk_bf16_f32 v{XO+2*u+1}, v{d+2}, v{d+3}")
        p(f"buffer_store_dwordx2 v[{XO+2*u}:{XO+2*u+1}], v28, s[40:43], 0 offen offset:{32*u}")
    S.stamp(); S.rt()
    S.dump(10, 11, 28, region=region, vt=60)
    p("s_endpgm")
```

```python
from common import *
import common

def ids_common(p):
    p("""
    v_lshrrev_b32 v1, 6, v0
    v_and_b32 v2, 63, v0               ; lane
    v_and_b32 v3, 31, v0               ; l32
    v_readfirstlane_b32 s28, v1        ; wave
    v_bfe_u32 v4, v0, 5, 1             ; hh
    """)

def gen_ffn1_body(p, wg="s2", region=2, end=True, sc1=False, hiprio=0, pf=None, pre_epi=None):
    S = Stamps(p)
    S.stamp(); S.rt()
    p("s_load_dwordx2 s[4:5], s[0:1], 0")
    p("s_load_dwordx4 s[52:55], s[0:1], 32")
    p("s_load_dwordx2 s[10:11], s[0:1], 80")
    ids_common(p)
    p(f"""
    s_and_b32 s24, {wg}, 7
    s_lshr_b32 s25, {wg}, 3
    s_and_b32 s26, s24, 3
    s_lshl_b32 s26, s26, 2
    s_and_b32 s27, s25, 3
    s_add_u32 s26, s26, s27            ; r
    s_lshr_b32 s27, s24, 2
    s_lshl_b32 s27, s27, 3
    s_lshr_b32 s29, s25, 2
    s_add_u32 s27, s27, s29            ; f
    s_and_b32 s35, s28, 1
    s_lshr_b32 s36, s28, 1
    v_lshrrev_b32 v6, 2, v2            ; i/4
    v_and_b32 v7, 3, v2                ; slot
    v_lshrrev_b32 v8, 4, v2
    v_xor_b32 v8, v8, v7               ; chunk
    s_lshl_b32 s29, s26, 7
    s_lshl_b32 s30, s28, 5
    s_add_u32 s29, s29, s30
    v_add_u32 v9, s29, v6
    v_mul_u32_u24 v9, 1280, v9
    v_lshl_add_u32 v5, v8, 4, v9
    s_lshl_b32 s29, s35, 4
    v_add_u32 v9, s29, v6
    v_mul_u32_u24 v9, 3072, v9
    s_lshl_b32 s29, s36, 1
    v_xor_b32 v8, s29, v7
    s_mul_i32 s29, s27, 192
    v_lshl_add_u32 v9, v8, 4, v9
    v_add_u32 v6, s29, v9
    s_lshl_b32 s31, s28, 11
    s_mul_i32 s32, s28, 3072
    s_add_u32 s32, s32, 8192
    s_waitcnt lgkmcnt(0)
    s_cmp_eq_u32 s36, 0
    s_cselect_b32 s6, s52, s54
    s_cselect_b32 s7, s53, s55
    """)
    srd(p, 12, 4, 5, 2048 * 640 * 2)
    srd(p, 16, 6, 7, 640 * 1536 * 2)
    NST = 20
    p("""
    s_and_b32 s38, s25, 3
    s_mul_i32 s38, s38, 5
    s_lshr_b32 s39, s25, 2
    s_add_u32 s38, s38, s39
    s_and_b32 s39, s24, 3
    s_add_u32 s38, s38, s39
    s_cmp_ge_u32 s38, 20
    s_cselect_b32 s39, 20, 0
    s_sub_u32 s38, s38, s39
    """)
    if common.OPT.get("norot"): p("s_mov_b32 s38, 0")
    def dma_list(st):
        slot = (st % 4) * 20480
        g = []
        for pc in range(2):
            g.append([f"s_add_u32 m0, s31, {slot + pc*1024}", ("s_lshl_b32 s33, s38, 6" if pc == 0 else "s_add_u32 s33, s33, 20480"),
                      "buffer_load_dwordx4 v5, s[12:15], s33 offen lds"])
        for j in range(3):
            off = f" offset:{64*j}" if j else ""
            mid = ["s_mul_i32 s34, s38, 98304"] if j == 0 else (["s_add_u32 s38, s38, 1"] if j == 1 else [])
            g.append([f"s_add_u32 m0, s32, {slot + j*960}"] + (mid if mid else ["s_cmp_eq_u32 s38, 20", "s_cselect_b32 s38, 0, s38"]) +
                      [f"buffer_load_dwordx4 v6, s[16:19], s34 offen{off} lds"])
        return g
    log = []
    for st in range(2):
        for g in dma_list(st):
            for l in g: p(l)
        log += [st] * 5
    nxt_issue = 2
    log += [-1, -1]
    def younger(stage):
        last = max(i for i, e in enumerate(log) if e == stage)
        return len(log) - 1 - last
    srd_off(p, 20, 10, 11, hex(WS_G), 8192)
    srd_off(p, 40, 10, 11, hex(WS_H), 2048 * 1536 * 2)
    p("""
    s_lshl_b32 s29, s26, 7
    s_lshl_b32 s30, s35, 6
    s_add_u32 s29, s29, s30
    v_add_u32 v8, s29, v3
    v_lshlrev_b32 v8, 2, v8
    buffer_load_dword v30, v8, s[20:23], 0 offen
    buffer_load_dword v31, v8, s[20:23], 0 offen offset:128
    v_bfe_u32 v8, v3, 2, 2
    v_xor_b32 v8, v8, v4
    v_lshlrev_b32 v8, 4, v8
    v_lshl_add_u32 v8, v3, 6, v8
    s_lshl_b32 s29, s35, 12
    v_add_u32 v10, s29, v8
    v_xor_b32 v11, 32, v10
    v_and_b32 v7, 3, v2                ; c
    v_lshlrev_b32 v7, 3, v7
    v_bfe_u32 v9, v2, 2, 2             ; r
    v_lshl_add_u32 v7, v9, 6, v7
    v_lshl_add_u32 v7, v4, 9, v7       ; + hh*8*64
    v_bfe_u32 v9, v2, 4, 1             ; cg
    v_mul_u32_u24 v8, 6144, v9
    v_add_u32 v7, v7, v8
    v_lshlrev_b32 v9, 5, v9            ; cg*32
    v_add_u32 v7, 8192, v7
    """)
    for tn in range(3):
        p(f"""
        s_mul_i32 s29, s36, 3
        s_add_u32 s29, s29, {tn}           ; t
        s_lshr_b32 s30, s29, 1
        s_lshl_b32 s30, s30, 10            ; j*1024
        s_and_b32 s29, s29, 1
        s_lshl_b32 s29, s29, 5             ; half*32
        v_xor_b32 v8, s29, v9
        v_add3_u32 v{12+tn}, v7, v8, s30
        """)
    for i in range(5):
        p(f"v_add_u32 v{15+i}, 40960, v{10+i}")
    p("""
    s_lshl_b32 s29, s26, 2
    s_lshl_b32 s30, s35, 1
    s_add_u32 s29, s29, s30
    s_mul_i32 s29, s29, 96
    s_mul_i32 s30, s27, 6
    s_add_u32 s29, s29, s30
    s_mul_i32 s30, s36, 3
    s_add_u32 s29, s29, s30
    s_lshl_b32 s29, s29, 10
    v_lshlrev_b32 v20, 4, v2
    v_add_u32 v20, s29, v20
    s_mov_b32 s37, 98304
    """)
    FR = 32
    ACC = 72
    def reads(t):
        st, ks = divmod(t, 2)
        slot = st % 4
        k = slot // 2; so = (slot % 2) * 20480
        b = FR + 20 * (t % 2)
        out = []
        for tm in range(2):
            out.append(f"ds_read_b128 v[{b+4*tm}:{b+4*tm+3}], v{10+5*k+ks} offset:{so + tm*2048}")
        for tn in range(3):
            for a in range(2):
                r = b + 8 + 4 * tn + 2 * a
                out.append(f"ds_read_b64_tr_b16 v[{r}:{r+1}], v{12+5*k+tn} offset:{so + ks*3072 + a*256}")
        return out
    def mfmas(t):
        b = FR + 20 * (t % 2)
        out = []
        for tn in range(3):
            for tm in range(2):
                d = ACC + 16 * (3 * tm + tn)
                out.append(mfma32(d, b + 8 + 4 * tn, b + 4 * tm, "0" if t == 0 else None))
        return out
    if pf is not None: pf["setup"](p)
    if hiprio: p("s_setprio %s" % common.OPT.get("mp1", "0"))
    S.stamp()
    p(f"s_waitcnt vmcnt({younger(0)})")
    p("s_barrier")
    S.stamp()
    for l in reads(0): p(l)
    for g in dma_list(2):
        for l in g: p(l)
    log += [2] * 5; nxt_issue = 3
    T = 2 * NST
    for t in range(T):
        st, ks = divmod(t, 2)
        mf = mfmas(t)
        fill = []
        if t == T - 1:
            p("s_waitcnt lgkmcnt(0)")
        elif ks == 0:
            p("s_waitcnt lgkmcnt(0)")
            rd = reads(t + 1)
            fill = [rd[0:2], rd[2:4], rd[4:6], rd[6:8]]
        else:
            p(f"s_waitcnt vmcnt({younger(st + 1)}) lgkmcnt(0)")
            p("s_barrier")
            rd = reads(t + 1)
            fill = [rd[0:3], rd[3:6], rd[6:8], [], [], []]
            cnt = 0
            while nxt_issue <= min(st + 4, NST - 1) and cnt < 2:
                g = dma_list(nxt_issue)
                if cnt == 0:
                    fill[2] = fill[2] + g[0]; fill[3] = g[1] + g[2]; fill[4] = g[3] + g[4]
                else:
                    fill[5] = fill[5] + sum(g, [])
                log += [nxt_issue] * 5; nxt_issue += 1; cnt += 1
            if pf is not None:
                ex = pf["stage"](st)
                fill[5] = fill[5] + ex
                log += [-1] * sum(1 for l in ex if l.startswith("buffer_"))
        for i, m in enumerate(mf):
            p(m)
            if i < len(fill):
                for l in fill[i]: p(l)
    S.stamp()
    if pre_epi is not None: pre_epi(p)
    if hiprio: p(f"s_setprio {hiprio}")
    p(f"s_mov_b32 s44, {hex(f2u(-math.log2(math.e)))}")
    p(f"s_mov_b32 s45, {hex(f2u(-math.log2(math.e)))}")
    p("v_sub_f32 v22, 1.0, v30")
    p("v_sub_f32 v24, 1.0, v31")
    p("v_mov_b32 v23, v22")
    p("v_mov_b32 v25, v24")
    p("s_nop 5")
    T0 = FR
    order = [(tm, tn) for tn in range(3) for tm in range(2)]
    for idx, (tm, tn) in enumerate(order):
        d = ACC + 16 * (3 * tm + tn)
        t = T0 + 12 * (idx % 2)
        for i in range(4): p(f"v_pk_mul_f32 v[{t+2*i}:{t+2*i+1}], v[{d+2*i}:{d+2*i+1}], s[44:45]")
        for i in range(8): p(f"v_exp_f32 v{t+i}, v{t+i}")
        for i in range(4): p(f"v_pk_mul_f32 v[{d+2*i}:{d+2*i+1}], v[{d+2*i}:{d+2*i+1}], v[{d+8+2*i}:{d+9+2*i}]")
        for i in range(4): p(f"v_pk_add_f32 v[{t+2*i}:{t+2*i+1}], v[{t+2*i}:{t+2*i+1}], 1.0 op_sel_hi:[1,0]")
        for i in range(8): p(f"v_rcp_f32 v{t+i}, v{t+i}")
        for i in range(4): p(f"v_pk_mul_f32 v[{d+2*i}:{d+2*i+1}], v[{d+2*i}:{d+2*i+1}], v[{22+2*tm}:{23+2*tm}]")
        for i in range(4): p(f"v_pk_mul_f32 v[{d+2*i}:{d+2*i+1}], v[{d+2*i}:{d+2*i+1}], v[{t+2*i}:{t+2*i+1}]")
        for i in range(4): p(f"v_cvt_pk_bf16_f32 v{t+8+i}, v{d+2*i}, v{d+2*i+1}")
        so = "0" if tm == 0 else "s37"
        p(f"buffer_store_dwordx4 v[{t+8}:{t+11}], v20, s[40:43], {so} offen offset:{1024*tn}" + (" sc1" if sc1 else ""))
    S.stamp(); S.rt()
    if end:
        S.dump(10, 11, 28, region=region, vt=170)
        p("s_endpgm")
    return S

def gen_ffn1(p):
    name = "k3_ffn1_kernel"
    head(p, name)
    p("s_cmp_ge_u32 s2, 256")
    p("s_cbranch_scc1 F1_exit")
    gen_ffn1_body(p)
    p.label("F1_exit")
    p("s_endpgm")
    return kd(name, 176), f"; @launch kernel={name} grid=(256,1,1) block=(256,1,1) lds=81920"

def gen_ffn2_body(p, wg="s2", region=3, S=None, sc1=False, wait=None, hiprio=0):
    if S is None:
        S = Stamps(p); S.stamp(); S.rt()
    p("s_load_dwordx2 s[6:7], s[0:1], 48")
    p("s_load_dwordx2 s[10:11], s[0:1], 80")
    ids_common(p)
    p(f"""
    s_and_b32 s24, {wg}, 7
    s_lshr_b32 s25, {wg}, 3
    s_and_b32 s26, s24, 3
    s_lshl_b32 s26, s26, 3
    s_and_b32 s27, s25, 7
    s_add_u32 s26, s26, s27            ; mb
    s_lshr_b32 s27, s25, 3             ; cb
    s_lshr_b32 s24, s24, 2             ; kh
    s_and_b32 s35, s28, 1
    s_lshr_b32 s36, s28, 1             ; kq
    s_mul_i32 s29, s24, 768
    s_mul_i32 s30, s36, 384
    s_add_u32 s29, s29, s30
    s_lshl_b32 s30, s35, 4
    s_add_u32 s30, s30, s29
    v_lshrrev_b32 v6, 2, v2
    v_add_u32 v6, s30, v6
    v_mul_u32_u24 v6, 1280, v6
    v_and_b32 v7, 3, v2
    v_lshl_add_u32 v6, v7, 4, v6
    s_mul_i32 s30, s27, 320
    v_add_u32 v6, s30, v6
    s_mul_i32 s32, s28, 5120
    s_lshl_b32 s30, s26, 1
    s_add_u32 s30, s30, s35
    s_mul_i32 s31, s30, 96
    s_lshr_b32 s29, s29, 4
    s_add_u32 s31, s31, s29
    s_lshl_b32 s31, s31, 10
    v_lshlrev_b32 v5, 4, v2
    v_add_u32 v5, s31, v5
    s_waitcnt lgkmcnt(0)
    """)
    srd(p, 16, 6, 7, 1536 * 640 * 2)
    srd_off(p, 12, 10, 11, hex(WS_H), 2048 * 1536 * 2)
    NST = 12
    XR = 32
    WF = 64
    ACC = 104
    scs = " sc1" if sc1 else ""
    def w_list(st):
        slot = (st % 4) * 20480
        g = []
        for j in range(5):
            off = f" offset:{64*j}" if j else ""
            mid = {0: ["s_mul_i32 s34, s38, 40960"], 1: ["s_add_u32 s38, s38, 1"], 2: ["s_cmp_eq_u32 s38, 12", "s_cselect_b32 s38, 0, s38"]}.get(j, ["s_nop 0"])
            g.append([f"s_add_u32 m0, s32, {slot + j*960}"] + mid +
                      [f"buffer_load_dwordx4 v6, s[16:19], s34 offen{off} lds"])
        return g
    def x_list(st):
        g = []
        for ks in range(2):
            r = XR + 4 * ((2 * st + ks) % 8)
            pre = ["s_lshl_b32 s33, s39, 11", "s_add_u32 s39, s39, 1"] if ks == 0 else ["s_cmp_eq_u32 s39, 12", "s_cselect_b32 s39, 0, s39"]
            g.append(pre + [f"buffer_load_dwordx4 v[{r}:{r+3}], v5, s[12:15], s33 offen offset:{1024*ks}{scs}"])
        return g
    p("""
    s_and_b32 s38, s25, 7
    s_mul_i32 s38, s38, 3
    s_lshr_b32 s38, s38, 1
    s_mul_i32 s39, s27, 3
    s_add_u32 s38, s38, s39
    s_cmp_ge_u32 s38, 12
    s_cselect_b32 s39, 12, 0
    s_sub_u32 s38, s38, s39
    """)
    if common.OPT.get("norot"): p("s_mov_b32 s38, 0")
    p("s_mov_b32 s39, s38")
    if wait is None:
        for st in range(4):
            for g in w_list(st) + x_list(st):
                for l in g: p(l)
    else:
        for st in range(4):
            for g in w_list(st):
                for l in g: p(l)
    p("""
    v_and_b32 v7, 3, v2
    v_lshlrev_b32 v7, 3, v7
    v_bfe_u32 v9, v2, 2, 2
    v_lshl_add_u32 v7, v9, 6, v7
    v_lshl_add_u32 v7, v4, 8, v7
    v_bfe_u32 v9, v2, 4, 1
    v_lshl_add_u32 v7, v9, 5, v7
    s_mul_i32 s29, s36, 10240
    v_add_u32 v10, s29, v7
    v_add_u32 v11, 40960, v10
    """)
    p(f"""
    s_mul_i32 s29, s24, {2048*640*4}
    s_add_u32 s29, s29, {hex(WS_B)}
    """)
    srd_off(p, 40, 10, 11, "s29", 2048 * 640 * 4)
    p("""
    s_mul_i32 s29, s30, 81920
    s_mul_i32 s31, s27, 20480
    s_add_u32 s29, s29, s31
    s_mul_i32 s31, s36, 10240
    s_add_u32 s29, s29, s31
    v_lshlrev_b32 v12, 4, v2
    v_add_u32 v13, s29, v12
    s_mul_i32 s29, s28, 10240
    v_add_u32 v14, s29, v12
    s_xor_b32 s29, s28, 2
    s_mul_i32 s29, s29, 10240
    v_add_u32 v15, s29, v12
    """)
    if wait is not None:
        wait(p)
        for st in range(4):
            for g in x_list(st):
                for l in g: p(l)
    def reads(t):
        st, ks = divmod(t, 2)
        slot = st % 4
        k = slot // 2; so = (slot % 2) * 20480
        b = WF + 20 * (t % 2)
        out = []
        for j in range(5):
            for a in range(2):
                r = b + 4 * j + 2 * a
                out.append(f"ds_read_b64_tr_b16 v[{r}:{r+1}], v{10+k} offset:{so + ks*5120 + j*1024 + a*512}")
        return out
    def mfmas(t):
        b = WF + 20 * (t % 2)
        x = XR + 4 * (t % 8)
        return [mfma32(ACC + 16 * j, b + 4 * j, x, "0" if t == 0 else None) for j in range(5)]
    if hiprio: p("s_setprio %s" % common.OPT.get("mp2", "0"))
    S.stamp()
    p("s_waitcnt vmcnt(%d)" % (21 if wait is None else 6))
    p("s_barrier")
    S.stamp()
    for l in reads(0): p(l)
    T = 2 * NST
    for t in range(T):
        st, ks = divmod(t, 2)
        mf = mfmas(t)
        fill = []
        post = []
        if t == T - 1:
            p("s_waitcnt lgkmcnt(0)")
        elif ks == 0:
            p("s_waitcnt lgkmcnt(0)")
            rd = reads(t + 1)
            fill = [rd[0:3], rd[3:6], rd[6:8], rd[8:10]]
        else:
            n = 7 * (min(st + 3, NST - 1) - (st + 1))
            if wait is not None and st < 3:
                n = 2 * (3 - (st + 1)) + 7 * st
            p(f"s_waitcnt vmcnt({n}) lgkmcnt(0)")
            p("s_barrier")
            rd = reads(t + 1)
            fill = [rd[0:4], rd[4:8], rd[8:10]]
            if st + 4 < NST:
                g = w_list(st + 4)
                fill[2] = fill[2] + g[0]
                fill += [g[1] + g[2], g[3] + g[4]]
                post = sum(x_list(st + 4), [])
        for i, m in enumerate(mf):
            p(m)
            if i < len(fill):
                for l in fill[i]: p(l)
        for l in post: p(l)
    S.stamp()
    if hiprio: p(f"s_setprio {hiprio}")
    p("s_barrier")
    p("s_cmp_eq_u32 s36, 0")
    p("s_cbranch_scc1 F2_kq0")
    for kq in (1, 0):
        if kq == 0: p.label("F2_kq0")
        p("s_nop 9")
        send = range(0, 10) if kq == 1 else range(10, 20)
        keep = range(10, 20) if kq == 1 else range(0, 10)
        for i, g in enumerate(send):
            p(f"ds_write_b128 v14, v[{ACC+4*g}:{ACC+4*g+3}] offset:{1024*i}")
        p("s_waitcnt lgkmcnt(0)")
        p("s_barrier")
        for i in range(10):
            p(f"ds_read_b128 v[{32+4*i}:{35+4*i}], v15 offset:{1024*i}")
        for i, g in enumerate(keep):
            p(f"s_waitcnt lgkmcnt({9-i})")
            r = ACC + 4 * g
            p(f"v_pk_add_f32 v[{r}:{r+1}], v[{r}:{r+1}], v[{32+4*i}:{33+4*i}]")
            p(f"v_pk_add_f32 v[{r+2}:{r+3}], v[{r+2}:{r+3}], v[{34+4*i}:{35+4*i}]")
            if i % 4 == 0: p(f"s_mov_b32 s33, {1024*i}")
            p(f"buffer_store_dwordx4 v[{r}:{r+3}], v13, s[40:43], s33 offen offset:{1024*(i%4)}")
        n0 = S.n
        S.stamp(); S.rt()
        S.dump(10, 11, 28, region=region, vt=20)
        S.n = n0
        p("s_endpgm")

def gen_ffn2(p):
    name = "k4_ffn2_kernel"
    head(p, name)
    p("s_cmp_ge_u32 s2, 256")
    p("s_cbranch_scc1 F2_exit")
    gen_ffn2_body(p)
    p.label("F2_exit")
    p("s_endpgm")
    return kd(name, 184), f"; @launch kernel={name} grid=(256,1,1) block=(256,1,1) lds=81920"

def gen_out(p):
    name = "k5_out_kernel"
    head(p, name)
    p("s_cmp_ge_u32 s2, 256")
    p("s_cbranch_scc1 K5_exit")
    S = Stamps(p); S.stamp(); S.rt()
    p("s_load_dwordx2 s[6:7], s[0:1], 16")
    p("s_load_dwordx2 s[8:9], s[0:1], 64")
    p("s_load_dwordx2 s[10:11], s[0:1], 80")
    p("""
    v_lshrrev_b32 v1, 6, v0
    v_and_b32 v2, 63, v0
    v_and_b32 v3, 15, v0               ; m16 / i
    v_readfirstlane_b32 s28, v1
    v_bfe_u32 v4, v0, 4, 2             ; q
    s_and_b32 s24, s2, 7
    s_lshr_b32 s25, s2, 3
    s_lshl_b32 s26, s24, 2
    s_and_b32 s27, s25, 3
    s_add_u32 s26, s26, s27            ; mb
    s_lshr_b32 s27, s25, 2             ; cb
    s_mul_i32 s29, s27, 160
    s_lshl_b32 s30, s28, 6
    v_add_u32 v5, s30, v2              ; 64w + lane
    """)
    for k in range(5):
        p(f"""
        v_add_u32 v6, {256*k}, v5
        v_mul_u32_u24 v7, 6554, v6
        v_lshrrev_b32 v7, 16, v7
        v_mul_u32_u24 v8, 10, v7
        v_sub_u32 v8, v6, v8
        v_mul_u32_u24 v7, 1280, v7
        v_lshl_add_u32 v7, v8, 4, v7
        v_add_u32 v{10+k}, s29, v7
        """)
    p("""
    s_lshl_b32 s30, s26, 1
    s_lshr_b32 s31, s28, 1
    s_add_u32 s30, s30, s31            ; mtile
    s_and_b32 s31, s28, 1
    s_lshl_b32 s31, s31, 8             ; 16 rows * 16B
    v_lshlrev_b32 v6, 4, v3
    v_lshl_add_u32 v6, v4, 9, v6
    v_add_u32 v6, s31, v6              ; q*512 + m32*16
    s_mul_i32 s32, s30, 40960
    v_add_u32 v15, s32, v6
    s_mul_i32 s32, s30, 81920
    s_mul_i32 s33, s27, 10240
    s_add_u32 s32, s32, s33
    v_add_u32 v16, s32, v6
    s_lshl_b32 s31, s28, 10
    s_waitcnt lgkmcnt(0)
    """)
    srd(p, 16, 6, 7, 640 * 640 * 2)
    srd_off(p, 12, 10, 11, hex(WS_O), 2048 * 640 * 2)
    srd_off(p, 20, 10, 11, hex(WS_B), 2 * 2048 * 640 * 4)
    srd(p, 40, 8, 9, 2048 * 640 * 2)
    sched = [[("m", 0), ("m", 1), ("m", 2)], [("m", 3), ("m", 4), ("m", 5), ("t", 0)], [("m", 6), ("m", 7), ("m", 8), ("t", 1)],
             [("m", 9), ("m", 10), ("m", 11), ("t", 2)], [("m", 12), ("m", 13), ("m", 14), ("m", 15), ("t", 3)]]
    XR = 32; PB = 112; WF = 152; ACC = 192
    steps = [s for st in sched for s in st]
    xreg = {s: XR + 4 * i for i, s in enumerate(steps)}
    cnt = []
    for sg in range(5):
        p(f"s_mov_b32 s34, {sg*128*1280}")
        for k in range(5):
            p(f"s_add_u32 m0, s31, {sg*20480 + 4096*k}")
            p("s_nop 0")
            p(f"buffer_load_dwordx4 v{10+k}, s[16:19], s34 offen lds")
        for s in sched[sg]:
            ks = 2 * s[1] if s[0] == "m" else 32 + 2 * s[1]
            r = xreg[s]
            p(f"s_mov_b32 s33, {ks*1024}")
            p(f"buffer_load_dwordx4 v[{r}:{r+3}], v15, s[12:15], s33 offen")
        cnt.append(5 + len(sched[sg]))
    for h in range(2):
        for u in range(5):
            r = PB + 4 * (5 * h + u)
            if u % 2 == 0: p(f"s_mov_b32 s33, {h*2048*640*4 + 2048*u}")
            p(f"buffer_load_dwordx4 v[{r}:{r+3}], v16, s[20:23], s33 offen offset:{2048*(u%2)}")
    p("""
    v_lshrrev_b32 v6, 1, v4            ; q/2
    v_and_b32 v7, 1, v4                ; q%2
    v_lshrrev_b32 v8, 2, v3            ; r
    v_mul_u32_u24 v9, 20, v6
    v_lshl_add_u32 v9, v7, 2, v9
    v_add_u32 v9, v9, v8
    v_mul_u32_u24 v17, 160, v9
    v_mul_u32_u24 v9, 80, v6
    v_mul_u32_u24 v19, 20, v7
    v_add3_u32 v9, v9, v19, v8
    v_add_u32 v9, 16, v9
    v_mul_u32_u24 v18, 160, v9
    v_and_b32 v8, 3, v3
    v_lshl_add_u32 v17, v8, 3, v17
    v_lshl_add_u32 v18, v8, 3, v18
    v_add_u32 v19, 51200, v17
    v_add_u32 v20, 51200, v18
    s_lshl_b32 s32, s26, 6
    s_lshl_b32 s33, s28, 4
    s_add_u32 s32, s32, s33
    v_add_u32 v21, s32, v3
    v_mul_u32_u24 v21, 1280, v21
    v_lshl_add_u32 v21, v4, 3, v21
    v_add_u32 v21, s29, v21
    """)
    def reads(i):
        s = steps[i]
        b = WF + 20 * (i % 2)
        if s[0] == "m":
            row0 = 40 * s[1]; astep = 8 * 160; reg = 17
        else:
            row0 = 160 * s[1]; astep = 40 * 160; reg = 18
        off = row0 * 160
        if off >= 51200: off -= 51200; reg += 2
        out = []
        for u in range(5):
            for a in range(2):
                r = b + 4 * u + 2 * a
                out.append(f"ds_read_b64_tr_b16 v[{r}:{r+1}], v{reg} offset:{off + a*astep + u*32}")
        return out
    def mfmas(i):
        b = WF + 20 * (i % 2); x = xreg[steps[i]]
        out = []
        for u in range(5):
            d = ACC + 4 * u
            c = "0" if i == 0 else f"v[{d}:{d+3}]"
            out.append(f"v_mfma_f32_16x16x32_bf16 v[{d}:{d+3}], v[{b+4*u}:{b+4*u+3}], v[{x}:{x+3}], {c}")
        return out
    rem = sum(cnt) + 10
    stage_of = [sg for sg in range(5) for _ in sched[sg]]
    S.stamp()
    rem -= cnt[0]
    p(f"s_waitcnt vmcnt({rem})")
    p("s_barrier")
    S.stamp()
    for l in reads(0): p(l)
    for i in range(20):
        if i + 1 < 20:
            if stage_of[i + 1] != stage_of[i]:
                rem -= cnt[stage_of[i + 1]]
                p(f"s_waitcnt vmcnt({rem})")
                p("s_barrier")
            for l in reads(i + 1): p(l)
            p("s_waitcnt lgkmcnt(10)")
        else:
            p("s_waitcnt lgkmcnt(0)")
        for m in mfmas(i): p(m)
    S.stamp()
    p("s_waitcnt vmcnt(0)")
    for u in range(5):
        a = PB + 4 * u; b = PB + 20 + 4 * u
        p(f"v_pk_add_f32 v[{a}:{a+1}], v[{a}:{a+1}], v[{b}:{b+1}]")
        p(f"v_pk_add_f32 v[{a+2}:{a+3}], v[{a+2}:{a+3}], v[{b+2}:{b+3}]")
    for u in range(5):
        a = PB + 4 * u; d = ACC + 4 * u
        p(f"v_pk_add_f32 v[{a}:{a+1}], v[{a}:{a+1}], v[{d}:{d+1}]")
        p(f"v_pk_add_f32 v[{a+2}:{a+3}], v[{a+2}:{a+3}], v[{d+2}:{d+3}]")
        p(f"v_cvt_pk_bf16_f32 v{a}, v{a}, v{a+1}")
        p(f"v_cvt_pk_bf16_f32 v{a+1}, v{a+2}, v{a+3}")
        p(f"buffer_store_dwordx2 v[{a}:{a+1}], v21, s[40:43], 0 offen offset:{32*u}")
    S.stamp(); S.rt()
    S.dump(10, 11, 28, region=2, vt=24)
    p.label("K5_exit")
    p("s_endpgm")
    return kd(name, 212), f"; @launch kernel={name} grid=(256,1,1) block=(256,1,1) lds=102400"
```

```python
from common import *
import common

NSLOT = 4

NPFS = 2
def ffn_pf_setup(p, w):
    p(f"""
    s_cmp_lt_u32 {w}, 2
    s_cselect_b32 s48, s56, s58
    s_cselect_b32 s49, s57, s59
    s_mov_b32 s50, {640*1536*2}
    s_mov_b32 s51, 0x00020000
    s_and_b32 s40, {w}, 1
    s_lshl_b32 s40, s40, 4
    v_lshrrev_b32 v16, 2, v2
    v_add_u32 v16, s40, v16
    v_mul_u32_u24 v16, 3072, v16
    v_and_b32 v17, 3, v2
    v_lshl_add_u32 v16, v17, 4, v16
    s_mul_i32 s40, s27, 192
    v_add_u32 v16, s40, v16
    s_and_b32 s35, s25, 3
    s_mul_i32 s35, s35, 5
    s_lshr_b32 s40, s25, 2
    s_add_u32 s35, s35, s40
    s_and_b32 s40, s24, 3
    s_add_u32 s35, s35, s40
    s_cmp_ge_u32 s35, 20
    s_cselect_b32 s40, 20, 0
    s_sub_u32 s35, s35, s40
    """)
def ffn_pf_issue(p, r):
    n = int(common.OPT.get("npfs", NPFS))
    for st in range(n):
        p("s_mul_i32 s40, s35, 98304")
        for j in range(3):
            p(f"buffer_load_dwordx4 v[{r}:{r+3}], v16, s[48:51], s40 offen offset:{64*j}")
        p("s_add_u32 s35, s35, 1"); p("s_cmp_eq_u32 s35, 20"); p("s_cselect_b32 s35, 0, s35")
    return 3 * n

def zero_flags(p, lab):
    p(f"""
    s_cmp_lg_u32 s28, 0
    s_cbranch_scc1 {lab}
    s_add_u32 s56, s10, {hex(WS_F)}
    s_addc_u32 s57, s11, 0
    s_mov_b32 s58, 0x20000
    s_mov_b32 s59, 0x00020000
    s_lshl_b32 s60, s2, 8
    v_lshlrev_b32 v30, 16, v2
    v_add_u32 v30, s60, v30
    v_mov_b32 v31, 0
    buffer_store_dword v31, v30, s[56:59], 0 offen
    """)
    p.label(lab)
def gen_k1(p):
    name = "k1_qkv_kernel"
    head(p, name)
    stm = common.OPT.get("k1st", "")
    stm = (" " + stm.replace("+", " ")) if stm else ""
    p("s_cmp_ge_u32 s2, 256")
    p("s_cbranch_scc1 K1_end")
    S = Stamps(p)
    S.stamp(); S.rt()
    p("s_load_dwordx4 s[4:7], s[0:1], 0")
    p("s_load_dwordx2 s[8:9], s[0:1], 56")
    p("s_load_dwordx2 s[10:11], s[0:1], 80")
    p("""
    s_and_b32 s24, s2, 7
    s_lshr_b32 s25, s2, 3
    s_and_b32 s26, s24, 3
    s_lshl_b32 s26, s26, 2
    s_and_b32 s27, s25, 3
    s_add_u32 s26, s26, s27            ; mt
    s_lshr_b32 s27, s24, 2
    s_lshl_b32 s27, s27, 3
    s_lshr_b32 s28, s25, 2
    s_add_u32 s27, s27, s28            ; nt
    v_lshrrev_b32 v1, 6, v0
    v_and_b32 v2, 63, v0
    s_lshl_b32 s29, s26, 7             ; 128*mt
    v_readfirstlane_b32 s28, v1        ; wave 0..7
    s_cmp_gt_u32 s28, 3
    s_cbranch_scc1 K1_nocode
    """)
    if not common.OPT.get("nocode"):
        p("""
        s_getpc_b64 s[12:13]
        s_mov_b32 s14, CODE_END-k1_qkv_kernel-256
        s_mov_b32 s15, 0x00020000
        s_lshl_b32 s30, s25, 11
        v_lshlrev_b32 v3, 3, v0
        v_add_u32 v3, s30, v3
        buffer_load_dwordx2 v[206:207], v3, s[12:15], 0 offen
        """)
    p.label("K1_nocode")
    p("""
    s_cmp_eq_u32 s27, 15
    s_cbranch_scc1 K1_gate
    s_cmp_lt_u32 s28, 4
    s_cbranch_scc1 K1_compute
    """)
    p("""
    s_sub_u32 s47, s28, 4              ; lw
    v_lshrrev_b32 v5, 3, v2            ; r8
    v_and_b32 v6, 7, v2                ; slot
    v_lshrrev_b32 v7, 1, v5
    v_xor_b32 v6, v6, v7               ; chunk
    v_lshlrev_b32 v6, 4, v6
    s_lshl_b32 s30, s47, 5
    s_add_u32 s30, s30, s29
    v_add_u32 v5, s30, v5              ; row
    v_mul_u32_u24 v5, 1280, v5
    v_add_u32 v3, v5, v6
    v_xor_b32 v4, 64, v3
    v_add_u32 v4, 10240, v4
    s_lshl_b32 s31, s47, 12            ; lw*4096
    v_lshrrev_b32 v5, 2, v2
    s_lshl_b32 s32, s47, 4
    v_add_u32 v5, s32, v5
    v_mul_u32_u24 v5, 3840, v5
    v_and_b32 v6, 3, v2
    v_lshlrev_b32 v6, 4, v6
    s_lshl_b32 s32, s27, 8
    v_add3_u32 v8, v5, v6, s32
    ; rotated k-stage s38 = (3*mt_local + nt_local) % 10
    s_and_b32 s38, s25, 3
    s_mul_i32 s38, s38, 3
    s_lshr_b32 s39, s25, 2
    s_add_u32 s38, s38, s39
    s_cmp_ge_u32 s38, 10
    s_cselect_b32 s39, 10, 0
    s_sub_u32 s38, s38, s39
    s_waitcnt lgkmcnt(0)
    """)
    srd(p, 12, 4, 5, 2048 * 640 * 2)
    srd(p, 16, 6, 7, 640 * 1920 * 2)
    def issue(stage):
        slot = (stage % NSLOT) * 32768
        for pc in range(4):
            p(f"s_add_u32 m0, s31, {slot + pc*1024}")
            p({0: "s_lshl_b32 s33, s38, 7", 1: "s_mul_i32 s34, s38, 245760", 2: "s_add_u32 s33, s33, 20480", 3: "s_add_u32 s38, s38, 1"}[pc])
            p(f"buffer_load_dwordx4 v{3 + pc % 2}, s[12:15], s33 offen lds")
        for j in range(4):
            off = f" offset:{64*j}" if j else ""
            p(f"s_add_u32 m0, s31, {slot + 16384 + j*960}")
            if j == 0:
                p("s_cmp_eq_u32 s38, 10"); p("s_cselect_b32 s38, 0, s38")
            else: p("s_nop 0")
            p(f"buffer_load_dwordx4 v8, s[16:19], s34 offen{off} lds")
    LA = int(common.OPT.get("k1la", 2))
    npf = 0
    for st in range(LA): issue(st)
    p("""
    s_load_dwordx2 s[52:53], s[0:1], 16
    s_load_dwordx4 s[56:59], s[0:1], 32
    s_load_dwordx2 s[54:55], s[0:1], 48
    s_waitcnt lgkmcnt(0)
    """)
    for s in range(10):
        issued = min(s + LA - 1, 9)
        p(f"s_waitcnt vmcnt({8*(issued - s) + npf})")
        p("s_barrier")
        if s + LA <= 9: issue(s + LA)
        if s == 0:
            p("""
            s_mul_i32 s40, s2, 3856
            s_lshr_b32 s40, s40, 16
            s_mul_i32 s41, s40, 17
            s_sub_u32 s41, s2, s41             ; stage
            s_lshl_b32 s42, s41, 7
            s_mov_b32 s43, 0                   ; mul*1280
            s_mov_b32 s44, 4                   ; shift
            s_mov_b32 s45, 1966080
            s_cmp_ge_u32 s41, 12
            s_cbranch_scc0 K1_rp_wd
            s_sub_u32 s42, s41, 12
            s_mul_i32 s42, s42, 160
            s_mov_b32 s43, 5120
            s_mov_b32 s54, s52
            s_mov_b32 s55, s53
            s_mov_b32 s45, 819200
            s_cmp_eq_u32 s41, 16
            s_cselect_b32 s42, 16, s42
            s_cselect_b32 s43, 20480, s43
            s_cselect_b32 s44, 2, s44
            """)
            p.label("K1_rp_wd")
            p("""
            s_mov_b32 s20, s54
            s_mov_b32 s21, s55
            s_mov_b32 s22, s45
            s_mov_b32 s23, 0x00020000
            s_mul_i32 s42, s42, 1280
            s_mul_i32 s40, s40, 160
            s_add_u32 s42, s42, s40
            s_mul_i32 s40, s47, 320
            v_add_u32 v9, s40, v2
            """)
            for kk in range(5):
                p(f"""
                v_add_u32 v5, {64*kk}, v9
                v_mul_u32_u24 v6, 6554, v5
                v_lshrrev_b32 v6, 16, v6
                v_mul_u32_u24 v7, 10, v6
                v_sub_u32 v7, v5, v7
                v_mul_u32_u24 v5, 1280, v6
                v_lshl_add_u32 v5, v7, 4, v5
                v_lshrrev_b32 v6, s44, v6
                v_mul_u32_u24 v6, s43, v6
                v_add_u32 v{10+kk}, v5, v6
                """)
            p(f"""
            s_mul_i32 s46, s47, 5120
            s_add_u32 s46, s46, {NSLOT*32768}
            v_lshrrev_b32 v5, 5, v2
            v_bfe_u32 v6, v2, 2, 3             ; 4hh + r
            v_mul_u32_u24 v6, 160, v6
            v_and_b32 v7, 3, v2
            v_lshl_add_u32 v6, v7, 3, v6
            v_add_u32 v6, s46, v6
            """)
            for kk in range(5):
                p(f"""
                v_add_u32 v7, {2*kk}, v5
                v_cmp_lt_u32 vcc, 4, v7
                v_lshlrev_b32 v7, 5, v7
                v_mov_b32 v17, {2560-160}
                v_cndmask_b32 v17, 0, v17, vcc
                v_add3_u32 v{20+kk}, v6, v7, v17
                """)
            p("""
            s_mul_i32 s40, s2, 20480
            v_lshlrev_b32 v15, 4, v9
            v_add_u32 v15, s40, v15
            v_add_u32 v18, 0x1000, v15
            """)
            ffn_pf_setup(p, "s47")
            srd_off(p, 60, 10, 11, hex(WS_W), 8 * WP_CB)
        if s == int(common.OPT.get("k1rp", 8)):
            p("s_cmp_lt_u32 s2, 136")
            p("s_cselect_b32 s22, s22, 0")
            for kk in range(5):
                p(f"s_add_u32 m0, s46, {1024*kk}")
                p("s_nop 0")
                p(f"buffer_load_dwordx4 v{10+kk}, s[20:23], s42 offen lds")
            npf = 5
    n2 = ffn_pf_issue(p, 48)
    p(f"s_waitcnt vmcnt({n2})")
    for kk in range(5):
        for a_ in range(2):
            p(f"ds_read_b64_tr_b16 v[{28+4*kk+2*a_}:{29+4*kk+2*a_}], v{20+kk} offset:{1280*a_}")
    for kk in range(5):
        p(f"s_waitcnt lgkmcnt({8-2*kk})")
        p(f"buffer_store_dwordx4 v[{28+4*kk}:{31+4*kk}], v{15 if kk < 4 else 18}, s[60:63], 0 offen offset:{1024*(kk%4)}")
    p("s_endpgm")

    p.label("K1_compute")
    p("""
    s_and_b32 s35, s28, 1              ; wm
    s_lshr_b32 s36, s28, 1             ; wn
    v_and_b32 v5, 31, v2               ; l32
    v_lshrrev_b32 v6, 5, v2            ; hh
    v_lshrrev_b32 v7, 1, v5
    v_and_b32 v7, 7, v7                ; sw
    v_xor_b32 v7, v7, v6
    v_lshlrev_b32 v7, 4, v7
    s_lshl_b32 s37, s35, 13
    v_lshlrev_b32 v9, 7, v5
    v_add3_u32 v10, v9, v7, s37
    v_xor_b32 v11, 32, v10
    v_xor_b32 v12, 64, v10
    v_xor_b32 v13, 96, v10
    v_bfe_u32 v9, v2, 2, 2             ; r
    v_lshlrev_b32 v7, 6, v9
    v_bfe_u32 v9, v2, 4, 1             ; cg
    v_lshl_add_u32 v7, v9, 5, v7
    v_lshl_add_u32 v7, v6, 9, v7       ; + hh*8*64
    s_lshl_b32 s37, s36, 11
    s_add_u32 s37, s37, 16384
    v_add_u32 v14, s37, v7             ; W read address without the 4-column chunk term
    s_cmp_ge_u32 s27, 5
    s_cselect_b32 s39, 1, 0
    s_cmp_ge_u32 s27, 10
    s_cselect_b32 s39, 2, s39          ; section
    s_mul_i32 s38, s39, 5
    s_sub_u32 s38, s27, s38
    s_lshl_b32 s40, s38, 7
    s_lshl_b32 s41, s36, 6
    s_add_u32 s40, s40, s41            ; nbase
    s_lshr_b32 s41, s26, 1
    s_mul_i32 s41, s41, 20480          ; chunk offset
    s_and_b32 s42, s26, 1
    s_lshl_b32 s42, s42, 1
    s_add_u32 s42, s42, s35            ; pair
    s_cmp_eq_u32 s39, 0
    s_cselect_b32 s43, {WS_Q}, {WS_KV}
    s_mov_b32 s44, 163840
    s_waitcnt lgkmcnt(0)
    """.replace("{WS_Q}", hex(WS_Q)).replace("{WS_KV}", hex(WS_KV)))
    srd_off(p, 20, 10, 11, "s43", 32 * HEAD_STRIDE)
    zero_flags(p, "K1_z1")
    p("s_cmp_eq_u32 s39, 2")
    p("s_cbranch_scc1 K1_vpath")
    ACC = 64; FR = 32; OFF = 128

    def second_set():
        for i in range(5): p(f"v_add_u32 v{15+i}, 0x10000, v{10+i}")
    def reads(t):
        st, ks = divmod(t, 4)
        slot = st % NSLOT
        k = slot // 2; so = (slot % 2) * 32768
        b = FR + 16 * (t % 2)
        out = []
        for tm in range(2):
            out.append(f"ds_read_b128 v[{b+4*tm}:{b+4*tm+3}], v{10+5*k+ks} offset:{so + tm*4096}")
        for tn in range(2):
            for a in range(2):
                r = b + 8 + 4 * tn + 2 * a
                out.append(f"ds_read_b64_tr_b16 v[{r}:{r+1}], v{14+5*k} offset:{so + ks*4096 + tn*1024 + a*256}")
        return out
    def mfmas(t, vrole):
        b = FR + 16 * (t % 2)
        out = []
        for tm in range(2):
            for tn in range(2):
                d = ACC + 16 * (2 * tm + tn)
                x = b + 4 * tm; w = b + 8 + 4 * tn
                a_, b_ = (x, w) if vrole else (w, x)
                out.append(mfma32(d, a_, b_, "0" if t == 0 else None))
        return out
    def mainloop(vrole):
        S.stamp()
        p("s_barrier")
        S.stamp()
        for l in reads(0): p(l)
        for t in range(40):
            st, ks = divmod(t, 4)
            mf = mfmas(t, vrole)
            p("s_waitcnt lgkmcnt(0)")
            if ks == 3 and t < 39:
                p("s_barrier")
                if st in (1, 4, 7): S.stamp()
            rd = reads(t + 1) if t < 39 else []
            fill = [rd[0:3], rd[3:6]] if ks == 3 else [rd[0:2], rd[2:4], rd[4:6]]
            if ks == 3:
                for l in rd[0:2]: p(l)
                fill = [rd[2:4], rd[4:6]]
            for i, m in enumerate(mf):
                p(m)
                if i < len(fill):
                    for l in fill[i]: p(l)
        S.stamp()

    p("""
    v_and_b32 v7, 1, v2
    v_lshl_add_u32 v14, v7, 4, v14
    v_bfe_u32 v7, v2, 1, 1
    v_lshl_add_u32 v14, v7, 3, v14
    """)
    second_set()
    p("""
    v_lshlrev_b32 v26, 4, v5
    v_add_u32 v26, s41, v26
    s_lshl_b32 s45, s42, 11            ; blk(tm=0)*1024
    s_lshl_b32 s46, s42, 9
    s_add_u32 s46, s46, 8192
    s_lshr_b32 s47, s40, 3
    v_add_u32 v27, s47, v6             ; G0 + hh
    v_mov_b32 v144, 0x40000000
    s_lshl_b32 s47, s44, 1             ; 2*HS
    """)
    for k in range(4):
        p(f"""
        v_add_u32 v28, {2*k}, v27           ; G
        v_mul_u32_u24 v29, 13108, v28
        v_lshrrev_b32 v29, 16, v29          ; P = G/5
        v_mul_u32_u24 v30, 5, v29
        v_sub_u32 v30, v28, v30             ; type
        v_mul_lo_u32 v29, v29, s47
        v_add_u32 v29, v29, v26
        v_cmp_lt_u32 vcc, 2, v30
        v_mov_b32 v28, s44
        v_add_u32 v31, 1, v30
        v_cndmask_b32 v28, 0, v28, vcc
        v_cndmask_b32 v31, v30, v31, vcc
        v_and_b32 v31, 1, v31
        v_lshl_add_u32 v28, v31, 9, v28
        v_add3_u32 v28, v28, v29, s45
        v_cmp_eq_u32 s[{50+2*k}:{51+2*k}], 2, v30
        v_add_u32 v29, s46, v29
        s_nop 0
        v_cndmask_b32 v{OFF+k}, v28, v144, s[{50+2*k}:{51+2*k}]
        v_cndmask_b32 v{OFF+4+k}, v144, v29, s[{50+2*k}:{51+2*k}]
        """)
    mainloop(False)
    p("s_cmp_lg_u32 s39, 0")
    p("s_cbranch_scc1 K1_noscale")
    p(f"s_mov_b32 s48, {hex(QSCALE)}")
    p(f"s_mov_b32 s49, {hex(QSCALE)}")
    p("s_nop 7")
    for i in range(32):
        p(f"v_pk_mul_f32 v[{ACC+2*i}:{ACC+2*i+1}], v[{ACC+2*i}:{ACC+2*i+1}], s[48:49]")
    p.label("K1_noscale")
    p("s_nop 7")
    p("s_nop 3")
    for k in range(4):
        tn, half = divmod(k, 2)
        for tm in range(2):
            d = ACC + 16 * (2 * tm + tn) + 8 * half
            t0 = FR + 4 * (2 * k + tm)
            for i in range(4): p(f"v_cvt_pk_bf16_f32 v{t0+i}, v{d+2*i}, v{d+2*i+1}")
            p(f"buffer_store_dwordx4 v[{t0}:{t0+3}], v{OFF+k}, s[20:23], 0 offen offset:{1024*tm}{stm}")
    for k in range(4):
        a = FR + 8 * k; b = a + 4
        t = 148 + 8 * k
        p(f"s_cmp_eq_u64 s[{50+2*k}:{51+2*k}], 0")
        p(f"s_cbranch_scc1 K1_notail{k}")
        for i, src in enumerate((a, a + 1, b, b + 1, a + 2, a + 3, b + 2, b + 3)):
            p(f"v_mov_b32 v{t+i}, v{src}")
        p(f"buffer_store_dwordx4 v[{t}:{t+3}], v{OFF+4+k}, s[20:23], 0 offen{stm}")
        p(f"buffer_store_dwordx4 v[{t+4}:{t+7}], v{OFF+4+k}, s[20:23], s44 offen{stm}")
        p.label(f"K1_notail{k}")
    S.stamp()
    if common.STAMP: p("s_waitcnt vmcnt(0)")
    S.stamp(); S.rt()
    S.dump(10, 11, 28, vt=200)
    S.n = 2
    p("s_endpgm")
    p.label("K1_vpath")
    p("""
    v_and_b32 v7, 3, v2
    v_lshl_add_u32 v14, v7, 3, v14
    """)
    second_set()
    p("""
    s_mul_i32 s45, s42, 2560
    s_add_u32 s45, s45, s41
    s_add_u32 s45, s45, 10240
    v_mul_u32_u24 v26, 320, v6
    v_add_u32 v26, s45, v26
    v_add_u32 v27, s40, v5
    """)
    for tn in range(2):
        p(f"""
        v_add_u32 v28, {32*tn}, v27
        v_mul_u32_u24 v29, 3277, v28
        v_lshrrev_b32 v29, 16, v29
        v_mul_u32_u24 v30, 20, v29
        v_sub_u32 v30, v28, v30
        v_mul_lo_u32 v29, v29, s44
        v_lshl_add_u32 v30, v30, 4, v26
        v_add_u32 v{OFF+tn}, v29, v30
        """)
    mainloop(True)
    p("s_nop 7")
    p("s_nop 3")
    for tm in range(2):
        for tn in range(2):
            d = ACC + 16 * (2 * tm + tn)
            for half in range(2):
                t0 = FR + 4 * (4 * tm + 2 * tn + half)
                for i in range(4):
                    p(f"v_cvt_pk_bf16_f32 v{t0+i}, v{d+8*half+2*i}, v{d+8*half+2*i+1}")
                p(f"buffer_store_dwordx4 v[{t0}:{t0+3}], v{OFF+tn}, s[20:23], 0 offen offset:{(2*tm+half)*640}{stm}")
    S.stamp()
    if common.STAMP: p("s_waitcnt vmcnt(0)")
    S.stamp(); S.rt()
    S.dump(10, 11, 28, vt=200)
    p("s_endpgm")
    p.label("K1_gate")
    p("s_load_dwordx4 s[52:55], s[0:1], 32")
    p("s_waitcnt lgkmcnt(0)")
    srd(p, 12, 4, 5, 2048 * 640 * 2)
    srd(p, 16, 8, 9, 1280)
    srd_off(p, 20, 10, 11, hex(WS_G), 8192)
    zero_flags(p, "K1_z2")
    p("""
    s_lshl_b32 s30, s28, 4
    s_add_u32 s30, s30, s29
    v_and_b32 v5, 15, v2
    v_lshrrev_b32 v6, 4, v2
    v_lshlrev_b32 v7, 4, v5
    v_add_u32 v8, s30, v6
    v_mul_u32_u24 v9, 1280, v8
    v_add_u32 v9, v9, v7
    v_lshlrev_b32 v8, 2, v8
    """)
    GW = 12
    for j in range(5):
        p(f"buffer_load_dwordx4 v[{GW+4*j}:{GW+4*j+3}], v7, s[16:19], 0 offen offset:{256*j}")
    XR = 32; NR = 4
    for rg in range(NR):
        p(f"s_mov_b32 s33, {rg*4*1280}")
        for j in range(5):
            r = XR + 20 * rg + 4 * j
            p(f"buffer_load_dwordx4 v[{r}:{r+3}], v9, s[12:15], s33 offen offset:{256*j}")
    Z = 120
    for rg in range(NR):
        p(f"v_mov_b32 v{Z+rg}, 0")
    for rg in range(NR):
        p(f"s_waitcnt vmcnt({5*(NR-1-rg)})")
        for j in range(20):
            p(f"v_dot2_f32_bf16 v{Z+rg}, v{XR+20*rg+j}, v{GW+j}, v{Z+rg}")
    p("s_nop 3")
    for sh in (8, 4, 2, 1):
        for rg in range(NR):
            p(f"v_add_f32_dpp v{Z+rg}, v{Z+rg}, v{Z+rg} row_ror:{sh} row_mask:0xf bank_mask:0xf")
    p(f"s_mov_b32 s34, {hex(f2u(-math.log2(math.e)))}")
    for rg in range(NR): p(f"v_mul_f32 v{Z+rg}, s34, v{Z+rg}")
    for rg in range(NR): p(f"v_exp_f32 v{Z+rg}, v{Z+rg}")
    for rg in range(NR): p(f"v_add_f32 v{Z+rg}, 1.0, v{Z+rg}")
    for rg in range(NR): p(f"v_rcp_f32 v{Z+rg}, v{Z+rg}")
    p("s_mov_b64 s[56:57], s[52:53]")
    p("s_mov_b64 s[58:59], s[54:55]")
    p("s_and_b32 s47, s28, 3")
    ffn_pf_setup(p, "s47")
    ffn_pf_issue(p, 48)
    p("v_cmp_eq_u32 vcc, 0, v5")
    p("s_and_saveexec_b64 s[62:63], vcc")
    for rg in range(NR):
        p(f"buffer_store_dword v{Z+rg}, v8, s[20:23], 0 offen offset:{16*rg}")
    p.label("K1_end")
    p("s_endpgm")
    return kd(name, 208), f"; @launch kernel={name} grid=(256,1,1) block=(512,1,1) lds={NSLOT*32768 + 20480}"
```

```python
from common import *
import common, att, ffn, f2o

def gen_k2(p):
    name = "k2_mix_kernel"
    head(p, name)
    p("s_cmp_ge_u32 s2, 512")
    p("s_cbranch_scc1 K2_exit")
    p("s_cmp_ge_u32 s2, 256")
    p("s_cbranch_scc1 K2_ffn")
    def flag_srd(p):
        srd_off(p, 60, 10, 11, hex(WS_F), 0x20000)
    def signal(p, mask, lab):
        p(f"""
        s_cmp_lg_u32 s28, 0
        s_cbranch_scc1 {lab}
        v_mov_b32 v9, 1
        s_mov_b32 exec_lo, {mask}
        s_mov_b32 exec_hi, 0
        buffer_atomic_add v9, v8, s[60:63], 0 offen sc1
        s_mov_b64 exec, -1
        """)
        p.label(lab)
    def att_publish(p):
        flag_srd(p)
        p("""
        s_lshl_b32 s30, s25, 8
        s_add_u32 s30, s30, 0x10000
        v_lshlrev_b32 v8, 11, v2
        v_add_u32 v8, s30, v8
        """)
        signal(p, "-1", "K2_att_nosig")
    att.gen_att_body(p, region=1, publish=att_publish)
    p.raw(".p2align 6")
    p.label("K2_ffn")
    if common.OPT.get("noffn"): p("s_endpgm")
    hp = int(common.OPT.get("hiprio", 3))
    p("s_sub_u32 s3, s2, 256")
    pfd = {"setup": lambda p: f2o.w2_setup(p, "s3"),
           "stage": lambda st: sum(f2o.w_list(st - 16), []) if 16 <= st <= 18 else f2o.w2_touch(st - 5)}
    S = ffn.gen_ffn1_body(p, wg="s3", region=1, end=False, sc1=True, hiprio=hp, pf=pfd)
    S.n -= 1 if common.STAMP else 0
    flag_srd(p)
    p("""
    v_lshrrev_b32 v8, 1, v2
    v_lshlrev_b32 v8, 2, v8
    v_and_b32 v9, 1, v2
    v_add_u32 v8, v8, v9
    s_and_b32 s29, s26, 1
    s_lshl_b32 s29, s29, 1
    v_add_u32 v8, s29, v8              ; j
    s_lshr_b32 s29, s26, 1
    s_lshl_b32 s29, s29, 8
    v_lshlrev_b32 v8, 11, v8
    v_add_u32 v8, s29, v8              ; (8j + qb)*256
    """)
    p("s_waitcnt vmcnt(0)")
    p("s_barrier")
    if common.OPT.get("fine"): S.stamp()
    signal(p, "0xffff", "K2_f1_nosig")
    def poll(p, idx_s, target, lab, other):
        other()
        if common.OPT.get("fine"): S.stamp()
        p(f"""
        s_cmp_lg_u32 s28, 0
        s_cbranch_scc1 {lab}_done
        v_mov_b32 v8, {idx_s}
        """)
        p.label(lab)
        p(f"""
        buffer_load_dword v7, v8, s[60:63], 0 offen sc1
        s_waitcnt vmcnt(0)
        v_readfirstlane_b32 s32, v7
        s_cmp_ge_u32 s32, {target}
        s_cbranch_scc1 {lab}_done
        s_sleep 4
        s_branch {lab}
        """)
        p.label(f"{lab}_done")
    def wait_h(p, other):
        p("s_lshl_b32 s37, s3, 8")
        poll(p, "s37", 16, "K2_pollh", other)
        p("s_barrier")
        S.stamp()
    def wait_o(p, other):
        p("s_add_u32 s37, s37, 0x10000")
        poll(p, "s37", 32, "K2_pollo", other)
        p("s_waitcnt vmcnt(0)")
        p("s_barrier")
        S.stamp()
    f2o.gen_f2o_body(p, "s3", S, wait_h, wait_o, region=1, hiprio=hp)
    p.label("K2_exit")
    p("s_endpgm")
    return kd(name, att.NVGPR), f"; @launch kernel={name} grid=(512,1,1) block=(256,1,1) lds=81920"
```

```python
from common import *
import common
from att import S0, NM, OO, PP, QA, QB, QT, KM, KT, VV, NVGPR, LTHRESH, BIG, m2b

O = common.OPT

def emit(p, gs):
    for g in gs:
        for l in g: p(l)

def flag_srd(p):
    srd_off(p, 60, 10, 11, hex(WS_F), 0x20000)

def poll(p, lab, srdn, off_s, imm, cmp, target, sleep=4, limit=1 << 20):
    p(f"""
    s_cmp_lg_u32 s28, 0
    s_cbranch_scc1 {lab}_done
    v_mov_b32 v222, {off_s}
    s_mov_b32 s59, 0
    """)
    p.label(lab)
    p(f"""
    buffer_load_dword v223, v222, s[{srdn}:{srdn+3}], 0 offen offset:{imm} sc1
    s_add_u32 s59, s59, 1
    s_waitcnt vmcnt(0)
    v_readfirstlane_b32 s58, v223
    s_cmp_{cmp}_u32 s58, {target}
    s_cbranch_scc1 {lab}_done
    s_cmp_gt_u32 s59, {limit}
    s_cbranch_scc1 {lab}_done
    s_sleep {sleep}
    s_branch {lab}
    """)
    p.label(f"{lab}_done")

def signal(p, lab, voff, imm=0):
    p(f"""
    s_cmp_lg_u32 s28, 0
    s_cbranch_scc1 {lab}
    v_mov_b32 v223, 1
    buffer_atomic_add v223, {voff}, s[60:63], 0 offen offset:{imm} sc1
    """)
    p.label(lab)

def lanes_to_lines(p, vd, first_s, n):
    p(f"""
    v_add_u32 {vd}, {first_s}, v2
    v_lshlrev_b32 {vd}, 8, {vd}
    v_cmp_gt_u32 vcc, {n}, v2
    v_mov_b32 v223, 0x40000000
    s_nop 0
    v_cndmask_b32 {vd}, v223, {vd}, vcc
    """)
def h_consumers(p, r_s, vd):
    p(f"s_lshl_b32 s58, {r_s}, 1")
    p("s_add_u32 s58, s58, 32")
    lanes_to_lines(p, vd, "s58", 2)


def aux_prefetch(p, lo, hi, idx_s, srdn, vtmp):
    if not O.get("aux"): return
    srd(p, srdn, lo, hi, 640 * 1536 * 2)
    p(f"""
    s_mul_i32 s58, {idx_s}, 122880
    v_lshlrev_b32 v{vtmp}, 4, v0
    v_add_u32 v{vtmp}, s58, v{vtmp}
    """)
    for i in range(30):
        p(f"s_mov_b32 s58, {4096*i}")
        p(f"buffer_load_dwordx4 v[216:219], v{vtmp}, s[{srdn}:{srdn+3}], s58 offen")

def gen_qkv(p, S):
    p("""
    s_and_b32 s24, s2, 7
    s_lshr_b32 s25, s2, 3
    s_and_b32 s26, s24, 3
    s_lshl_b32 s26, s26, 2
    s_and_b32 s27, s25, 3
    s_add_u32 s26, s26, s27            ; mt
    s_lshr_b32 s27, s24, 2
    s_lshl_b32 s27, s27, 3
    s_lshr_b32 s29, s25, 2
    s_add_u32 s27, s27, s29            ; nt
    s_lshl_b32 s29, s26, 7             ; 128*mt
    s_lshl_b32 s30, s28, 5
    s_add_u32 s30, s30, s29
    s_cmp_eq_u32 s27, 15
    s_cbranch_scc1 A_gate
    v_lshrrev_b32 v5, 3, v2
    v_and_b32 v6, 7, v2
    v_lshrrev_b32 v7, 1, v5
    v_xor_b32 v6, v6, v7
    v_lshlrev_b32 v6, 4, v6
    v_add_u32 v5, s30, v5
    v_mul_u32_u24 v5, 1280, v5
    v_add_u32 v3, v5, v6
    v_xor_b32 v4, 64, v3
    v_add_u32 v4, 10240, v4
    s_lshl_b32 s31, s28, 12
    s_and_b32 s35, s28, 1              ; wm
    s_lshr_b32 s36, s28, 1             ; wn
    v_lshrrev_b32 v5, 2, v2
    s_lshl_b32 s32, s36, 4
    v_add_u32 v5, s32, v5
    v_mul_u32_u24 v5, 3840, v5
    v_and_b32 v6, 3, v2
    v_lshlrev_b32 v6, 4, v6
    s_lshl_b32 s32, s27, 8
    s_lshl_b32 s33, s35, 7
    s_add_u32 s32, s32, s33
    v_add3_u32 v8, v5, v6, s32
    s_lshl_b32 s32, s28, 11
    s_add_u32 s32, s32, 49152
    s_and_b32 s38, s25, 3
    s_mul_i32 s38, s38, 3
    s_lshr_b32 s39, s25, 2
    s_add_u32 s38, s38, s39
    s_cmp_ge_u32 s38, 10
    s_cselect_b32 s39, 10, 0
    s_sub_u32 s38, s38, s39
    s_lshl_b32 s37, s38, 1
    s_waitcnt lgkmcnt(0)
    """)
    srd(p, 12, 4, 5, 2048 * 640 * 2)
    srd(p, 16, 6, 7, 640 * 1920 * 2)
    def item(it):
        if it[0] == "x":
            _, sg, hf = it
            base = (sg % 3) * 16384 + hf * 2048
            a = "s_lshl_b32 s33, s38, 7" if hf == 0 else "s_add_u32 s33, s33, 20480"
            b = ["s_nop 0"] if hf == 0 else ["s_add_u32 s38, s38, 1", "s_cmp_eq_u32 s38, 10", "s_cselect_b32 s38, 0, s38"]
            return [[f"s_add_u32 m0, s31, {base}", a, "buffer_load_dwordx4 v3, s[12:15], s33 offen lds"],
                    [f"s_add_u32 m0, s31, {base + 1024}"] + b + ["buffer_load_dwordx4 v4, s[12:15], s33 offen lds"]]
        _, h = it
        base = (h % 4) * 8192
        return [[f"s_add_u32 m0, s32, {base}", "s_mul_i32 s34, s37, 122880", "buffer_load_dwordx4 v8, s[16:19], s34 offen lds"],
                [f"s_add_u32 m0, s32, {base + 960}", "s_add_u32 s37, s37, 1", "s_cmp_eq_u32 s37, 20", "s_cselect_b32 s37, 0, s37",
                 "buffer_load_dwordx4 v8, s[16:19], s34 offen offset:64 lds"]]
    order = []
    for h in range(20):
        if h % 2 == 0: order += [("x", h // 2, 0), ("x", h // 2, 1)]
        order.append(("w", h))
    def need(it): return 2 * it[1] if it[0] == "x" else it[1]
    def free_after(it): return 2 * (it[1] - 3) + 1 if it[0] == "x" else it[1] - 4
    NPRO = int(O.get("qpro", 7))
    for it in order[:NPRO]: emit(p, item(it))
    p("""
    v_and_b32 v5, 31, v2               ; l32
    v_lshrrev_b32 v6, 5, v2            ; hh
    v_lshrrev_b32 v7, 1, v5
    v_and_b32 v7, 7, v7
    v_xor_b32 v7, v7, v6
    v_lshlrev_b32 v7, 4, v7
    s_lshl_b32 s40, s35, 13
    v_lshlrev_b32 v9, 7, v5
    v_add3_u32 v10, v9, v7, s40
    v_xor_b32 v11, 32, v10
    v_xor_b32 v12, 64, v10
    v_xor_b32 v13, 96, v10
    v_bfe_u32 v9, v2, 2, 2
    v_lshlrev_b32 v7, 6, v9
    v_bfe_u32 v9, v2, 4, 1
    v_lshl_add_u32 v7, v9, 5, v7
    v_lshl_add_u32 v7, v6, 9, v7
    s_lshl_b32 s40, s36, 11
    s_add_u32 s40, s40, 49152
    v_add_u32 v14, s40, v7
    s_cmp_ge_u32 s27, 5
    s_cselect_b32 s39, 1, 0
    s_cmp_ge_u32 s27, 10
    s_cselect_b32 s39, 2, s39          ; section
    s_mul_i32 s40, s39, 5
    s_sub_u32 s45, s27, s40            ; nt'
    s_lshl_b32 s40, s45, 7
    s_lshl_b32 s41, s36, 6
    s_add_u32 s40, s40, s41            ; nbase
    s_lshr_b32 s41, s26, 1
    s_mul_i32 s41, s41, 20480
    s_and_b32 s42, s26, 1
    s_lshl_b32 s42, s42, 1
    s_add_u32 s42, s42, s35            ; pair
    s_cmp_eq_u32 s39, 0
    s_cselect_b32 s43, {WS_Q}, {WS_KV}
    s_mov_b32 s44, 163840
    ; consumers of this tile: lane t -> head h0 + t%8, q-block t/8
    s_mul_i32 s46, s45, 6554
    s_lshr_b32 s46, s46, 10            ; h0 = 128nt'/20
    s_mul_i32 s47, s45, 6554
    s_add_u32 s47, s47, 6502
    s_lshr_b32 s47, s47, 10            ; h1 = (128nt'+127)/20
    v_add_u32 v7, s46, v2
    v_lshlrev_b32 v15, 8, v7
    v_mov_b32 v144, 0x40000000
    v_cmp_lt_u32 vcc, s47, v7
    s_lshl_b32 s46, s2, 8
    s_add_u32 s46, s46, 0x10000
    v_cndmask_b32 v15, v15, v144, vcc
    v_mov_b32 v16, s46                 ; partner's line
    v_mov_b32 v17, 1
    v_mov_b32 v18, 0
    """.replace("{WS_Q}", hex(WS_Q)).replace("{WS_KV}", hex(WS_KV)))
    srd_off(p, 20, 10, 11, "s43", 32 * HEAD_STRIDE)
    flag_srd(p)
    p("s_cmp_eq_u32 s39, 2")
    p("s_cbranch_scc1 A_vpath")
    ACC = 64; FR = 32; OFF = 128
    def reads(t):
        h, k2 = divmod(t, 2); sg, ks = divmod(t, 4)
        b = FR + 16 * (t % 2)
        out = []
        for tm in range(2):
            out.append(f"ds_read_b128 v[{b+4*tm}:{b+4*tm+3}], v{10+ks} offset:{(sg % 3)*16384 + tm*4096}")
        for tn in range(2):
            for a in range(2):
                r = b + 8 + 4 * tn + 2 * a
                out.append(f"ds_read_b64_tr_b16 v[{r}:{r+1}], v14 offset:{(h % 4)*8192 + k2*4096 + tn*1024 + a*256}")
        return out
    def mfmas(t, vrole):
        b = FR + 16 * (t % 2)
        out = []
        for tm in range(2):
            for tn in range(2):
                d = ACC + 16 * (2 * tm + tn)
                x = b + 4 * tm; w = b + 8 + 4 * tn
                a_, b_ = (x, w) if vrole else (w, x)
                out.append(mfma32(d, a_, b_, "0" if t == 0 else None))
        return out
    def mainloop(vrole, lab):
        log = [need(it) for it in order[:NPRO] for _ in range(2)]
        nxt = NPRO
        def younger(h):
            last = max(i for i, e in enumerate(log) if e <= h)
            return len(log) - 1 - last
        S.stamp()
        p(f"s_waitcnt vmcnt({younger(0)})")
        p("s_barrier")
        S.stamp()
        for l in reads(0): p(l)
        started = False
        for t in range(40):
            h, k2 = divmod(t, 2)
            mf = mfmas(t, vrole)
            rd = reads(t + 1) if t < 39 else []
            extra = []
            if k2 == 1 and t < 39:
                p(f"s_waitcnt vmcnt({younger(h + 1)}) lgkmcnt(0)")
                p("s_barrier")
                if h in (3, 9): S.stamp()
                done = h
            else:
                p("s_waitcnt lgkmcnt(0)")
                done = h - 1
            cnt = 0
            while nxt < len(order) and free_after(order[nxt]) <= done and cnt < (2 if k2 == 1 else 1):
                extra += item(order[nxt]); log += [need(order[nxt])] * 2; nxt += 1; cnt += 1
            if t == 2 * int(O.get("bstart", 99)):
                extra.append(["s_mov_b64 exec, 1", "buffer_atomic_add v17, v16, s[60:63], 0 offen sc1", "s_mov_b64 exec, -1"])
            for l in rd[0:2]: p(l)
            fill = [rd[2:4], rd[4:6], sum(extra[:2], []), sum(extra[2:], [])]
            for i, m in enumerate(mf):
                p(m)
                for l in fill[i]: p(l)
        S.stamp()
        p("buffer_load_dword v19, v18, s[52:55], 0 offen sc1")
    srd(p, 52, 8, 9, 256)
    p("""
    v_and_b32 v7, 1, v2
    v_lshl_add_u32 v14, v7, 4, v14
    v_bfe_u32 v7, v2, 1, 1
    v_lshl_add_u32 v14, v7, 3, v14
    v_lshlrev_b32 v26, 4, v5
    v_add_u32 v26, s41, v26
    s_lshl_b32 s45, s42, 11
    s_lshl_b32 s46, s42, 9
    s_add_u32 s46, s46, 8192
    s_lshr_b32 s47, s40, 3
    v_add_u32 v27, s47, v6
    s_lshl_b32 s47, s44, 1
    """)
    MK = [40, 42, 48, 50]
    p("s_mov_b32 s56, s45"); p("s_mov_b32 s57, s46")
    for k in range(4):
        m = MK[k]
        p(f"""
        v_add_u32 v28, {2*k}, v27
        v_mul_u32_u24 v29, 13108, v28
        v_lshrrev_b32 v29, 16, v29
        v_mul_u32_u24 v30, 5, v29
        v_sub_u32 v30, v28, v30
        v_mul_lo_u32 v29, v29, s47
        v_add_u32 v29, v29, v26
        v_cmp_lt_u32 vcc, 2, v30
        v_mov_b32 v28, s44
        v_add_u32 v31, 1, v30
        v_cndmask_b32 v28, 0, v28, vcc
        v_cndmask_b32 v31, v30, v31, vcc
        v_and_b32 v31, 1, v31
        v_lshl_add_u32 v28, v31, 9, v28
        v_add3_u32 v28, v28, v29, s56
        v_cmp_eq_u32 s[{m}:{m+1}], 2, v30
        v_add_u32 v29, s57, v29
        s_nop 0
        v_cndmask_b32 v{OFF+k}, v28, v144, s[{m}:{m+1}]
        v_cndmask_b32 v{OFF+4+k}, v144, v29, s[{m}:{m+1}]
        """)
    n0 = S.n
    mainloop(False, "Aq")
    p("s_cmp_lg_u32 s39, 0")
    p("s_cbranch_scc1 A_noscale")
    p(f"s_mov_b32 s56, {hex(QSCALE)}")
    p(f"s_mov_b32 s57, {hex(QSCALE)}")
    p("s_nop 6")
    for i in range(32):
        p(f"v_pk_mul_f32 v[{ACC+2*i}:{ACC+2*i+1}], v[{ACC+2*i}:{ACC+2*i+1}], s[56:57]")
    p.label("A_noscale")
    p("s_nop 7")
    p("s_nop 1")
    for k in range(4):
        tn, half = divmod(k, 2)
        for tm in range(2):
            d = ACC + 16 * (2 * tm + tn) + 8 * half
            t0 = FR + 4 * (2 * k + tm)
            for i in range(4): p(f"v_cvt_pk_bf16_f32 v{t0+i}, v{d+2*i}, v{d+2*i+1}")
            p(f"buffer_store_dwordx4 v[{t0}:{t0+3}], v{OFF+k}, s[20:23], 0 offen offset:{1024*tm} sc1")
    for k in range(4):
        a = FR + 8 * k; b = a + 4
        t = 148 + 8 * k; m = MK[k]
        p(f"s_cmp_eq_u64 s[{m}:{m+1}], 0")
        p(f"s_cbranch_scc1 A_notail{k}")
        for i, src in enumerate((a, a + 1, b, b + 1, a + 2, a + 3, b + 2, b + 3)):
            p(f"v_mov_b32 v{t+i}, v{src}")
        p(f"buffer_store_dwordx4 v[{t}:{t+3}], v{OFF+4+k}, s[20:23], 0 offen sc1")
        p(f"buffer_store_dwordx4 v[{t+4}:{t+7}], v{OFF+4+k}, s[20:23], s44 offen sc1")
        p.label(f"A_notail{k}")
    p("s_branch A_publish")
    p.label("A_vpath")
    srd(p, 52, 8, 9, 256)
    p("""
    v_and_b32 v7, 3, v2
    v_lshl_add_u32 v14, v7, 3, v14
    s_mul_i32 s45, s42, 2560
    s_add_u32 s45, s45, s41
    s_add_u32 s45, s45, 10240
    v_mul_u32_u24 v26, 320, v6
    v_add_u32 v26, s45, v26
    v_add_u32 v27, s40, v5
    """)
    for tn in range(2):
        p(f"""
        v_add_u32 v28, {32*tn}, v27
        v_mul_u32_u24 v29, 3277, v28
        v_lshrrev_b32 v29, 16, v29
        v_mul_u32_u24 v30, 20, v29
        v_sub_u32 v30, v28, v30
        v_mul_lo_u32 v29, v29, s44
        v_lshl_add_u32 v30, v30, 4, v26
        v_add_u32 v{OFF+tn}, v29, v30
        """)
    S.n = n0
    mainloop(True, "Av")
    p("s_nop 7")
    p("s_nop 2")
    for tm in range(2):
        for tn in range(2):
            d = ACC + 16 * (2 * tm + tn)
            for half in range(2):
                t0 = FR + 4 * (4 * tm + 2 * tn + half)
                for i in range(4):
                    p(f"v_cvt_pk_bf16_f32 v{t0+i}, v{d+8*half+2*i}, v{d+8*half+2*i+1}")
                p(f"buffer_store_dwordx4 v[{t0}:{t0+3}], v{OFF+tn}, s[20:23], 0 offen offset:{(2*tm+half)*640} sc1")
    p("s_branch A_publish")
    p.label("A_gate")
    p("s_load_dwordx2 s[34:35], s[0:1], 56")
    p("s_load_dwordx2 s[36:37], s[0:1], 32")
    p("s_waitcnt lgkmcnt(0)")
    aux_prefetch(p, 36, 37, "s26", 40, 10)
    p("s_waitcnt vmcnt(16)")
    srd(p, 12, 4, 5, 2048 * 640 * 2)
    srd(p, 16, 34, 35, 1280)
    srd_off(p, 20, 10, 11, hex(WS_G), 8192)
    flag_srd(p)
    srd(p, 52, 8, 9, 256)
    p("""
    v_and_b32 v5, 15, v2
    v_lshrrev_b32 v6, 4, v2
    v_lshlrev_b32 v7, 4, v5
    v_add_u32 v8, s30, v6
    v_mul_u32_u24 v9, 1280, v8
    v_add_u32 v9, v9, v7
    v_lshlrev_b32 v8, 2, v8
    """)
    GW = 20; XR = 40; NR = 8; Z = 200
    for j in range(5):
        p(f"buffer_load_dwordx4 v[{GW+4*j}:{GW+4*j+3}], v7, s[16:19], 0 offen offset:{256*j}")
    for rg in range(NR):
        p(f"s_mov_b32 s33, {rg*4*1280}")
        for j in range(5):
            r = XR + 20 * rg + 4 * j
            p(f"buffer_load_dwordx4 v[{r}:{r+3}], v9, s[12:15], s33 offen offset:{256*j}")
    p("""
    s_lshl_b32 s46, s2, 8
    s_add_u32 s46, s46, 0x10000
    v_mov_b32 v16, s46
    v_mov_b32 v17, 1
    v_mov_b32 v18, 0
    """)
    h_consumers(p, "s26", "v15")
    for rg in range(NR): p(f"v_mov_b32 v{Z+rg}, 0")
    for rg in range(NR):
        p(f"s_waitcnt vmcnt({5*(NR-1-rg)})")
        for j in range(20):
            p(f"v_dot2_f32_bf16 v{Z+rg}, v{XR+20*rg+j}, v{GW+j}, v{Z+rg}")
    p("buffer_load_dword v19, v18, s[52:55], 0 offen sc1")
    p("s_nop 2")
    for sh in (8, 4, 2, 1):
        for rg in range(NR):
            p(f"v_add_f32_dpp v{Z+rg}, v{Z+rg}, v{Z+rg} row_ror:{sh} row_mask:0xf bank_mask:0xf")
    p(f"s_mov_b32 s34, {hex(f2u(-math.log2(math.e)))}")
    for rg in range(NR): p(f"v_mul_f32 v{Z+rg}, s34, v{Z+rg}")
    for rg in range(NR): p(f"v_exp_f32 v{Z+rg}, v{Z+rg}")
    for rg in range(NR): p(f"v_add_f32 v{Z+rg}, 1.0, v{Z+rg}")
    for rg in range(NR): p(f"v_rcp_f32 v{Z+rg}, v{Z+rg}")
    p("v_cmp_eq_u32 vcc, 0, v5")
    p("s_and_saveexec_b64 s[50:51], vcc")
    for rg in range(NR):
        p(f"buffer_store_dword v{Z+rg}, v8, s[20:23], 0 offen offset:{16*rg} sc1")
    p("s_mov_b64 exec, -1")
    p.label("A_publish")
    if not O.get("late"): p("""
    s_mov_b64 exec, 1
    buffer_atomic_add v17, v16, s[60:63], 0 offen sc1
    s_mov_b64 exec, -1
    """)
    S.stamp()
    p("s_waitcnt vmcnt(0)")
    p("v_readfirstlane_b32 s58, v19")
    p("s_barrier")
    p("s_cmp_lg_u32 s58, 0")
    p("s_cbranch_scc1 A_init_done")
    poll(p, "A_init", 52, "0", 0, "lg", 0)
    signal(p, "A_sig", "v15")
    S.stamp()

def gen_att(p, S):
    pre = "AT"
    p("""
    s_and_b32 s24, s2, 31              ; head
    s_lshr_b32 s25, s2, 5              ; qb
    v_and_b32 v3, 31, v0               ; l32
    v_bfe_u32 v4, v0, 5, 1             ; hh
    s_mul_i32 s26, s24, 163840
    s_mul_i32 s27, s25, 20480
    s_add_u32 s27, s27, s26
    v_lshlrev_b32 v5, 4, v2
    v_lshlrev_b32 v6, 4, v3
    s_mul_i32 s29, s28, 5120
    v_add_u32 v8, s29, v5
    v_add_u32 v9, 0x1000, v8
    s_lshl_b32 s30, s28, 11
    v_add_u32 v10, s30, v5
    s_lshl_b32 s30, s28, 9
    s_add_u32 s30, s30, 8192
    v_lshl_add_u32 v11, v4, 3, v6
    v_add_u32 v11, s30, v11
    s_mov_b32 s44, 0
    s_mov_b32 s46, 0x000fffff
    s_mov_b32 s47, 0x000fffff
    s_bitcmp1_b32 0x02081040, s24
    s_cselect_b32 s45, 96, 48
    s_lshl_b32 s43, s24, 8
    """)
    p(f"s_add_u32 s27, s27, {hex(WS_Q)}")
    srd_off(p, 16, 10, 11, "s27", CHUNK)
    srd_off(p, 12, 10, 11, "s26", HEAD_STRIDE)
    srd_off(p, 32, 10, 11, hex(WS_O), 2048 * 640 * 2)
    def dma_half(h):
        out = []
        if h == 0:
            out.append(["s_add_u32 m0, s37, s29", "s_nop 0", "buffer_load_dwordx4 v8, s[12:15], s36 offen sc1 lds"])
            so = "s36"
        else:
            out.append([f"s_add_u32 m0, m0, {20480-4096}", "s_add_u32 s45, s36, 20480", "buffer_load_dwordx4 v8, s[12:15], s45 offen sc1 lds"])
            so = "s45"
        for j in (1, 2, 3):
            out.append([f"buffer_load_dwordx4 v8, s[12:15], {so} offen offset:{1024*j} sc1 lds"])
        out.append(["s_add_u32 m0, m0, 0x1000", "s_nop 0", f"buffer_load_dwordx4 v9, s[12:15], {so} offen sc1 lds"])
        return out
    p.label(f"{pre}_pass")
    p("""
    v_lshlrev_b32 v5, 4, v2
    v_add_u32 v7, 8192, v6
    v_mul_u32_u24 v13, 320, v4
    v_add_u32 v13, v13, v6
    v_add_u32 v13, 10240, v13
    v_or_b32 v1, 4, v3
    v_cmp_eq_u32 vcc, 28, v1
    v_mov_b32 v1, 0x3f803f80
    s_mov_b32 s36, 0
    v_cndmask_b32 v1, 0, v1, vcc
    s_mov_b32 s37, 0
    """)
    for i in range(32): p(f"v_mov_b32 v{VV+i}, v1")
    for i in range(32): p(f"v_mov_b32 v{OO+i}, 0")
    for i in range(4): p(f"v_mov_b32 v{S0+32+28+i}, 0")
    for i in range(2): p(f"v_mov_b32 v{PP+12+i}, 0")
    p("s_cmp_eq_u32 s44, 1")
    p(f"s_cbranch_scc1 {pre}_nowait")
    poll(p, "AT_poll", 60, "s43", 0, "ge", "s45", sleep=2)
    p("s_barrier")
    S.stamp()
    p(f"buffer_load_dwordx4 v[{QA}:{QA+3}], v10, s[16:19], 0 offen sc1")
    p(f"buffer_load_dwordx4 v[{QB}:{QB+3}], v10, s[16:19], 0 offen offset:1024 sc1")
    p(f"buffer_load_dwordx2 v[{QT}:{QT+1}], v11, s[16:19], 0 offen sc1")
    p.label(f"{pre}_nowait")
    emit(p, dma_half(0) + dma_half(1))
    if O.get("late"): p("""
    s_mov_b64 exec, 1
    buffer_atomic_add v17, v16, s[60:63], 0 offen sc1
    s_mov_b64 exec, -1
    """)
    p("s_waitcnt vmcnt(5)")
    p("s_barrier")
    S.stamp()
    def hb(b): return 20480 * (b // 8)
    def rd_km(b):
        r = KM + 4 * (b % 2)
        return f"ds_read_b128 v[{r}:{r+3}], v5 offset:{hb(b) + 1024*(b%8)}"
    def rd_kt(b):
        r = KT + 4 * ((b // 2) % 2)
        return f"ds_read_b128 v[{r}:{r+3}], v7 offset:{hb(b) + 512*((b%8)//2)}"
    def rd_v(b):
        out = []
        for g in range(2):
            r = VV + 8 * (b % 4) + 4 * g
            out.append(f"ds_read_b128 v[{r}:{r+3}], v13 offset:{hb(b) + 640*(2*(b%8)+g)}")
        return out
    p(rd_kt(0)); p(rd_km(0)); p(rd_km(1))
    p("s_mov_b64 exec, s[46:47]")
    for l in rd_v(0) + rd_v(1): p(l)
    p("s_mov_b64 exec, -1")
    p(f"s_mov_b32 s36, {BIG}")
    p(f"s_mov_b32 s37, {BIG}")
    p("s_cmp_eq_u32 s44, 1")
    p(f"s_cbranch_scc1 {pre}_havemax")
    p("s_waitcnt lgkmcnt(5)")
    p(mfma32(S0, KM, QA, "0")); p(mfma32(S0 + 16, KM, QB, "0"))
    p("s_nop 9")
    p(m2b(S0, KT, QT))
    p("s_nop 15"); p("s_nop 3")
    def finish_max():
        for t in range(2):
            d = NM + 16 * t
            p(f"v_mov_b32 v{d+1}, v{d}")
        p("s_nop 1")
        for t in range(2):
            d = NM + 16 * t
            p(f"v_permlane32_swap_b32 v{d}, v{d+1}")
        for t in range(2):
            d = NM + 16 * t
            p(f"v_max_f32 v{d}, v{d}, v{d+1}")
            p(f"v_sub_f32 v{d}, 0, v{d}")
        for k in range(1, 16):
            for t in range(2): p(f"v_mov_b32 v{NM+16*t+k}, v{NM+16*t}")
    for t in range(2):
        b = S0 + 16 * t; d = NM + 16 * t
        p(f"v_max3_f32 v{d}, v{b}, v{b+1}, v{b+2}")
        for k in range(3, 15, 2):
            p(f"v_max3_f32 v{d}, v{d}, v{b+k}, v{b+k+1}")
        p(f"v_max_f32 v{d}, v{d}, v{b+15}")
    finish_max()
    p.label(f"{pre}_havemax")
    p("s_waitcnt lgkmcnt(0)")
    p("s_nop 0")
    p(mfma32(S0, KM, QA, NM)); p(mfma32(S0 + 16, KM, QB, NM + 16))
    p("s_mov_b32 s38, 0")
    p(f"s_mov_b32 s39, {BIG}")
    p("s_waitcnt vmcnt(0)")
    p("s_barrier")
    p("s_nop 5")
    p(m2b(S0, KT, QT))
    p("s_nop 15"); p("s_nop 2")
    S.stamp()
    p(f"s_branch {pre}_mid")
    def iteration(j):
        i = j - 2
        cur = S0 + 32 * (i % 2); nxt = S0 + 32 * ((i + 1) % 2)
        km = KM + 4 * ((i + 1) % 2)
        kt = KT + 4 * (((i + 1) // 2) % 2) + 2 * ((i + 1) % 2)
        vb = VV + 8 * (i % 4); vprev = VV + 8 * ((i - 1) % 4)
        def E(k, lo=0, hi=4):
            for r in range(lo, hi): p(f"v_exp_f32 v{cur+4*k+r}, v{cur+4*k+r}")
        def C(k, base=cur):
            p(f"v_cvt_pk_bf16_f32 v{PP+2*k}, v{base+4*k}, v{base+4*k+1}")
            p(f"v_cvt_pk_bf16_f32 v{PP+2*k+1}, v{base+4*k+2}, v{base+4*k+3}")
        E(0); C(7, nxt)
        p("s_waitcnt lgkmcnt(0)")
        p(mfma32(nxt, km, QA, NM))
        E(1); C(0)
        p(mfma32(OO + 16, vprev + 4, PP + 12))
        E(2); C(1)
        p(mfma32(nxt + 16, km, QB, NM + 16))
        if j % 2 == 0:
            p("s_mov_b64 exec, s[46:47]")
            for l in rd_v(j) + rd_v(j + 1): p(l)
            p("s_mov_b64 exec, -1")
        E(3); C(2)
        g = (dma_half(0) + dma_half(1))[j - 2] if 2 <= j < 12 else []
        for l in g[:-1]:
            if l != "s_nop 0": p(l)
        p(mfma32(OO, vb, PP))
        for l in g[-1:]: p(l)
        E(4); C(3)
        p(m2b(nxt, kt, QT))
        p(rd_km(j))
        if j % 2 == 0: p(rd_kt(j))
        E(5); C(4); E(6, 0, 2)
        p(mfma32(OO, vb + 4, PP + 4))
        E(6, 2, 4); C(5); E(7, 0, 2)
        p(mfma32(OO + 16, vb, PP + 8))
        E(7, 2, 4); C(6)
    p.raw(".p2align 6")
    p.label(f"{pre}_loop")
    p("s_waitcnt vmcnt(0) lgkmcnt(0)")
    p("s_barrier")
    p("v_add_u32 v5, s39, v5")
    p("v_add_u32 v7, s39, v7")
    p("v_add_u32 v13, s39, v13")
    p("s_sub_u32 s39, 0, s39")
    p(f"s_add_u32 s36, s36, {BIG}")
    p(f"s_sub_u32 s37, {BIG}, s37")
    iteration(0); iteration(1)
    p("s_cmp_eq_u32 s38, 4")
    p(f"s_cbranch_scc1 {pre}_done")
    p.label(f"{pre}_mid")
    for j in range(2, 16): iteration(j)
    p("s_add_u32 s38, s38, 1")
    p(f"s_branch {pre}_loop")
    p.label(f"{pre}_done")
    S.stamp()
    cur = S0 + 32
    p(f"v_cvt_pk_bf16_f32 v{PP+14}, v{cur+28}, v{cur+29}")
    p(f"v_cvt_pk_bf16_f32 v{PP+15}, v{cur+30}, v{cur+31}")
    p("""
    s_lshl_b32 s30, s25, 3
    s_lshl_b32 s31, s28, 1
    """)
    p(mfma32(OO + 16, VV + 8 * 3 + 4, PP + 12))
    p(f"v_rcp_f32 v{OO+13}, v{OO+12}")
    p("""
    s_add_u32 s30, s30, s31
    s_mul_i32 s30, s30, 40960
    s_lshl_b32 s31, s24, 10
    s_add_u32 s31, s31, s30
    v_lshlrev_b32 v14, 4, v2
    v_add_u32 v14, s31, v14
    s_lshr_b32 s40, s24, 2
    s_add_u32 s40, s40, 32
    s_lshl_b32 s40, s40, 10
    s_add_u32 s40, s40, s30
    s_and_b32 s41, s24, 1
    s_lshl_b32 s41, s41, 9
    s_add_u32 s40, s40, s41
    s_and_b32 s41, s24, 2
    s_lshl_b32 s41, s41, 2
    s_add_u32 s40, s40, s41
    v_add_u32 v15, s40, v6
    s_mov_b32 s41, 40960
    """)
    p(f"s_mov_b32 s42, {hex(LTHRESH)}")
    for t in range(2):
        o = OO + 16 * t
        if t == 1: p(f"v_rcp_f32 v{o+13}, v{o+12}"); p("s_nop 0")
        for k in range(12): p(f"v_mul_f32 v{o+k}, v{o+k}, v{o+13}")
        for k in range(6): p(f"v_cvt_pk_bf16_f32 v{S0+8*t+k}, v{o+2*k}, v{o+2*k+1}")
        so = "0" if t == 0 else "s41"
        p(f"buffer_store_dwordx4 v[{S0+8*t}:{S0+8*t+3}], v14, s[32:35], {so} offen sc1")
    p("s_mov_b32 exec_hi, 0")
    for t in range(2):
        so = "0" if t == 0 else "s41"
        p(f"buffer_store_dwordx2 v[{S0+8*t+4}:{S0+8*t+5}], v15, s[32:35], {so} offen sc1")
    p("s_mov_b64 exec, -1")
    p(f"v_cmp_ngt_f32 vcc, s42, v{OO+12}")
    p(f"v_cmp_ngt_f32 s[48:49], s42, v{OO+16+12}")
    p("""
    s_or_b64 vcc, vcc, s[48:49]
    s_cmp_lg_u64 vcc, 0
    s_cselect_b32 s43, 1, 0
    s_cmp_eq_u32 s44, 1
    s_cselect_b32 s43, 0, s43
    v_mov_b32 v1, s43
    s_lshl_b32 s45, s28, 2
    v_mov_b32 v12, s45
    ds_write_b32 v12, v1
    s_lshl_b32 s30, s25, 2
    s_add_u32 s30, s30, 64
    """)
    lanes_to_lines(p, "v14", "s30", 4)
    p("""
    v_mov_b32 v12, 0
    s_waitcnt vmcnt(0) lgkmcnt(0)
    s_barrier
    ds_read_b128 v[172:175], v12
    s_waitcnt lgkmcnt(0)
    v_or_b32 v172, v172, v173
    v_or3_b32 v172, v172, v174, v175
    s_nop 0
    v_readfirstlane_b32 s43, v172
    s_cmp_lg_u32 s43, 0
    """)
    p(f"s_cbranch_scc1 {pre}_fallback")
    signal(p, "AT_sig", "v14", 0)
    S.stamp(); S.rt()
    S.dump(10, 11, 28, region=0, vt=220)
    p("s_endpgm")
    p.label(f"{pre}_fallback")
    p("s_mov_b32 s36, 0")
    p("s_mov_b32 s37, 0")
    p("v_lshlrev_b32 v5, 4, v2")
    p("v_add_u32 v7, 8192, v6")
    p(f"v_mov_b32 v{NM}, 0xff800000")
    p(f"v_mov_b32 v{NM+16}, 0xff800000")
    p.label(f"{pre}_fb_chunk")
    p("s_barrier")
    emit(p, dma_half(0))
    p("s_waitcnt vmcnt(0)")
    p("s_barrier")
    for b in range(8):
        p(f"ds_read_b128 v[{KM}:{KM+3}], v5 offset:{1024*b}")
        p(f"ds_read_b128 v[{KT}:{KT+3}], v7 offset:{512*(b//2)}")
        p("s_waitcnt lgkmcnt(0)")
        p(mfma32(S0, KM, QA, "0")); p(mfma32(S0 + 16, KM, QB, "0"))
        p("s_nop 9")
        p(m2b(S0, KT + 2 * (b % 2), QT))
        p("s_nop 15"); p("s_nop 3")
        for t in range(2):
            bb = S0 + 16 * t; d = NM + 16 * t
            for k in range(0, 16, 2):
                p(f"v_max3_f32 v{d}, v{d}, v{bb+k}, v{bb+k+1}")
    p("s_add_u32 s36, s36, 20480")
    p("s_cmp_lt_u32 s36, 163840")
    p(f"s_cbranch_scc1 {pre}_fb_chunk")
    finish_max()
    p("s_mov_b32 s44, 1")
    p("s_barrier")
    p(f"s_branch {pre}_pass")

NST2 = 12
RS0 = 3
def sl1(st): return (st if st < RS0 + 4 else st + 1) % 4
def sl2(st): return (st + 1) % 4
def w_list(st):
    slot = sl2(st) * 20480
    if st < NST2:
        h = ["s_mul_i32 s56, s55, 20480"]; t = ["s_add_u32 s55, s55, 1", "s_cmp_eq_u32 s55, 12", "s_cselect_b32 s55, 0, s55"]
    else:
        h = ["s_mul_i32 s56, s52, 20480", f"s_add_u32 s56, s56, {12*20480}"]; t = ["s_add_u32 s52, s52, 1", "s_cmp_eq_u32 s52, 5", "s_cselect_b32 s52, 0, s52"]
    g = [[f"s_add_u32 m0, s54, {slot}"] + h + ["buffer_load_dwordx4 v21, s[48:51], s56 offen sc1 lds"]]
    for k in (1, 2, 3):
        g.append([f"buffer_load_dwordx4 v21, s[48:51], s56 offen offset:{1024*k} sc1 lds"])
    g.append([f"s_add_u32 m0, s54, {slot + 4096}"] + t + ["buffer_load_dwordx4 v1, s[48:51], s56 offen sc1 lds"])
    return g

def gen_b(p, S):
    HP = O.get("hiprio", "3")
    p("s_load_dwordx4 s[44:47], s[0:1], 32")
    p("s_load_dwordx2 s[48:49], s[0:1], 16")
    p("s_load_dwordx2 s[50:51], s[0:1], 48")
    p("""
    s_sub_u32 s3, s2, 256
    v_and_b32 v3, 31, v0
    v_bfe_u32 v4, v0, 5, 1
    s_lshl_b32 s57, s2, 8
    v_mov_b32 v22, s57
    s_waitcnt lgkmcnt(0)
    """)
    flag_srd(p)
    srd(p, 20, 8, 9, 256)
    p("buffer_load_dword v23, v22, s[60:63], 0 offen sc1")
    p("""
    s_cmp_lg_u32 s3, 0
    s_cbranch_scc1 B_noclear
    v_lshlrev_b32 v24, 8, v0
    v_mov_b32 v28, 0
    buffer_store_dword v28, v24, s[60:63], 0 offen sc1
    s_waitcnt vmcnt(0)
    s_barrier
    v_mov_b32 v25, 1
    v_lshlrev_b32 v24, 12, v0
    buffer_store_dword v25, v24, s[20:23], 0 offen sc1
    """)
    p.label("B_noclear")
    lin = int(O.get("lin", 0))
    if lin:
        p("""
        s_cmp_lt_u32 s28, 2
        s_cselect_b32 s12, s44, s46
        s_cselect_b32 s13, s45, s47
        s_mov_b32 s14, 1966080
        s_mov_b32 s15, 0x00020000
        s_and_b32 s29, s28, 1
        s_lshl_b32 s30, s3, 1
        s_add_u32 s29, s29, s30
        s_mul_i32 s29, s29, 3840
        v_lshlrev_b32 v24, 4, v2
        """)
        for i in range(4): p(f"buffer_load_dwordx4 v[216:219], v24, s[12:15], s29 offen offset:{1024*i}")
    if lin >= 2:
        p("""
        s_mov_b32 s12, s50
        s_mov_b32 s13, s51
        s_lshl_b32 s30, s3, 2
        s_add_u32 s30, s30, s28
        s_mul_i32 s29, s30, 1920
        buffer_load_dwordx4 v[216:219], v24, s[12:15], s29 offen
        buffer_load_dwordx4 v[216:219], v24, s[12:15], s29 offen offset:1024
        s_mov_b32 s12, s48
        s_mov_b32 s13, s49
        s_mov_b32 s14, 819200
        s_mul_i32 s29, s30, 800
        buffer_load_dwordx4 v[216:219], v24, s[12:15], s29 offen
        """)
    if not O.get("nocode"):
        p("""
        s_getpc_b64 s[12:13]
        BPC:
        s_sub_u32 s12, s12, BPC-fused_kernel
        s_subb_u32 s13, s13, 0
        s_mov_b32 s14, CODE_END-fused_kernel
        s_mov_b32 s15, 0x00020000
        s_lshr_b32 s29, s3, 3
        s_lshl_b32 s29, s29, 11
        v_lshlrev_b32 v24, 3, v0
        v_add_u32 v24, s29, v24
        buffer_load_dwordx2 v[220:221], v24, s[12:15], 0 offen
        """)
    p("""
    s_and_b32 s24, s3, 7
    s_lshr_b32 s25, s3, 3
    s_and_b32 s26, s24, 3
    s_lshl_b32 s26, s26, 2
    s_and_b32 s27, s25, 3
    s_add_u32 s26, s26, s27            ; r
    s_lshr_b32 s27, s24, 2
    s_lshl_b32 s27, s27, 3
    s_lshr_b32 s29, s25, 2
    s_add_u32 s27, s27, s29            ; f
    s_and_b32 s35, s28, 1
    s_lshr_b32 s36, s28, 1
    v_lshrrev_b32 v6, 2, v2
    v_and_b32 v7, 3, v2
    v_lshrrev_b32 v8, 4, v2
    v_xor_b32 v8, v8, v7
    s_lshl_b32 s29, s26, 7
    s_lshl_b32 s30, s28, 5
    s_add_u32 s29, s29, s30
    v_add_u32 v9, s29, v6
    v_mul_u32_u24 v9, 1280, v9
    v_lshl_add_u32 v5, v8, 4, v9
    s_lshl_b32 s29, s35, 4
    v_add_u32 v9, s29, v6
    v_mul_u32_u24 v9, 3072, v9
    s_lshl_b32 s29, s36, 1
    v_xor_b32 v8, s29, v7
    s_mul_i32 s29, s27, 192
    v_lshl_add_u32 v9, v8, 4, v9
    v_add_u32 v6, s29, v9
    s_lshl_b32 s31, s28, 11
    s_mul_i32 s32, s28, 3072
    s_add_u32 s32, s32, 8192
    s_cmp_eq_u32 s36, 0
    s_cselect_b32 s6, s44, s46
    s_cselect_b32 s7, s45, s47
    s_and_b32 s38, s25, 3
    s_mul_i32 s38, s38, 5
    """)
    if O.get("rotf"):
        p("s_lshr_b32 s39, s25, 2"); p("s_add_u32 s38, s38, s39")
    if not O.get("norq"):
        p("s_and_b32 s39, s24, 3"); p("s_add_u32 s38, s38, s39")
    p("""
    s_cmp_ge_u32 s38, 20
    s_cselect_b32 s39, 20, 0
    s_sub_u32 s38, s38, s39
    """)
    p("s_cmp_lg_u32 s27, 15")
    p("s_cbranch_scc1 B_noaux")
    aux_prefetch(p, 46, 47, "s26", 40, 24)
    p.label("B_noaux")
    srd(p, 12, 4, 5, 2048 * 640 * 2)
    srd(p, 16, 6, 7, 640 * 1536 * 2)
    srd_off(p, 40, 10, 11, hex(WS_H), 2048 * 1536 * 2)
    p("""
    v_bfe_u32 v8, v3, 2, 2
    v_xor_b32 v8, v8, v4
    v_lshlrev_b32 v8, 4, v8
    v_lshl_add_u32 v8, v3, 6, v8
    s_lshl_b32 s29, s35, 12
    v_add_u32 v10, s29, v8
    v_xor_b32 v11, 32, v10
    v_and_b32 v7, 3, v2
    v_lshlrev_b32 v7, 3, v7
    v_bfe_u32 v9, v2, 2, 2
    v_lshl_add_u32 v7, v9, 6, v7
    v_lshl_add_u32 v7, v4, 9, v7
    v_bfe_u32 v9, v2, 4, 1
    v_mul_u32_u24 v8, 6144, v9
    v_add_u32 v7, v7, v8
    v_lshlrev_b32 v9, 5, v9
    v_add_u32 v7, 8192, v7
    """)
    for tn in range(3):
        p(f"""
        s_mul_i32 s29, s36, 3
        s_add_u32 s29, s29, {tn}
        s_lshr_b32 s30, s29, 1
        s_lshl_b32 s30, s30, 10
        s_and_b32 s29, s29, 1
        s_lshl_b32 s29, s29, 5
        v_xor_b32 v8, s29, v9
        v_add3_u32 v{12+tn}, v7, v8, s30
        """)
    for i in range(5): p(f"v_add_u32 v{15+i}, 40960, v{10+i}")
    p("""
    s_lshl_b32 s29, s26, 2
    s_lshl_b32 s30, s35, 1
    s_add_u32 s29, s29, s30
    s_mul_i32 s29, s29, 96
    s_mul_i32 s30, s27, 6
    s_add_u32 s29, s29, s30
    s_mul_i32 s30, s36, 3
    s_add_u32 s29, s29, s30
    s_lshl_b32 s29, s29, 10
    v_lshlrev_b32 v20, 4, v2
    v_add_u32 v20, s29, v20
    s_mov_b32 s37, 98304
    """)
    p("""
    s_mul_i32 s29, s3, 3856
    s_lshr_b32 s29, s29, 16
    s_mul_i32 s30, s29, 17
    s_sub_u32 s30, s3, s30             ; stage
    s_lshl_b32 s53, s30, 7
    s_mov_b32 s54, 0
    s_mov_b32 s55, 4
    s_mov_b32 s46, 1966080
    s_cmp_ge_u32 s30, 12
    s_cbranch_scc0 B_rp_wd
    s_sub_u32 s53, s30, 12
    s_mul_i32 s53, s53, 160
    s_mov_b32 s54, 5120
    s_mov_b32 s50, s48
    s_mov_b32 s51, s49
    s_mov_b32 s46, 819200
    s_cmp_eq_u32 s30, 16
    s_cselect_b32 s53, 16, s53
    s_cselect_b32 s54, 20480, s54
    s_cselect_b32 s55, 2, s55
    """)
    p.label("B_rp_wd")
    p("""
    s_mov_b32 s44, s50
    s_mov_b32 s45, s51
    s_mov_b32 s47, 0x00020000
    s_cmp_lt_u32 s3, 136
    s_cselect_b32 s46, s46, 0
    s_mul_i32 s53, s53, 1280
    s_mul_i32 s30, s29, 160
    s_add_u32 s53, s53, s30
    s_mul_i32 s30, s28, 320
    v_add_u32 v9, s30, v2
    s_add_u32 s29, s29, 96
    s_cmp_lt_u32 s3, 136
    s_cselect_b32 s30, 1, 0
    """)
    lanes_to_lines(p, "v182", "s29", "s30")
    for kk in range(5):
        p(f"""
        v_add_u32 v24, {64*kk}, v9
        v_mul_u32_u24 v25, 6554, v24
        v_lshrrev_b32 v25, 16, v25
        v_mul_u32_u24 v7, 10, v25
        v_sub_u32 v7, v24, v7
        v_mul_u32_u24 v24, 1280, v25
        v_lshl_add_u32 v24, v7, 4, v24
        v_lshrrev_b32 v25, s55, v25
        v_mul_u32_u24 v25, s54, v25
        v_add_u32 v{170+kk}, v24, v25
        """)
    p(f"""
    s_mul_i32 s54, s28, 5120
    s_add_u32 s52, s54, {((RS0 + 4) % 4) * 20480}
    v_bfe_u32 v25, v2, 2, 3
    v_mul_u32_u24 v25, 160, v25
    v_and_b32 v7, 3, v2
    v_lshl_add_u32 v25, v7, 3, v25
    v_add_u32 v25, s52, v25
    v_mov_b32 v8, 2400
    """)
    for kk in range(5):
        p(f"""
        v_add_u32 v7, {2*kk}, v4
        v_cmp_lt_u32 vcc, 4, v7
        v_lshlrev_b32 v7, 5, v7
        s_nop 0
        v_cndmask_b32 v24, 0, v8, vcc
        v_add3_u32 v{175+kk}, v25, v7, v24
        """)
    p(f"""
    s_mul_i32 s29, s3, 20480
    v_lshlrev_b32 v180, 4, v9
    v_add_u32 v180, s29, v180
    v_add_u32 v181, 0x1000, v180
    v_lshlrev_b32 v21, 4, v2
    v_add_u32 v21, s54, v21
    v_add_u32 v1, 0x1000, v21
    s_lshr_b32 s29, s25, 2
    s_mul_i32 s29, s29, {WP_CB}
    s_add_u32 s29, s29, {hex(WS_W)}
    """)
    srd_off(p, 4, 10, 11, hex(WS_W), 8 * WP_CB)
    srd_off(p, 48, 10, 11, "s29", WP_CB)
    h_consumers(p, "s26", "v183")
    p("s_waitcnt vmcnt(0)")
    p("v_readfirstlane_b32 s55, v23")
    poll(p, "B_init", 20, "0", 0, "lg", 0, sleep=16)
    p("s_cmp_eq_u32 s27, 15")
    p("s_cbranch_scc1 B_start_done")
    poll(p, "B_start", 60, "s57", 0, "lg", "s55", sleep=6, limit=int(O.get("startlim", 30)))
    p("s_barrier")
    S.stamp()
    p("""
    s_lshr_b32 s29, s25, 2
    s_add_u32 s55, s25, s29
    s_and_b32 s55, s55, 3
    s_mul_i32 s55, s55, 3
    s_add_u32 s57, s29, 96
    s_lshl_b32 s57, s57, 8
    """)
    NST = 20
    def dma_list(st):
        if st == "rp":
            return [[f"s_add_u32 m0, s52, {1024*kk}", "s_nop 0", f"buffer_load_dwordx4 v{170+kk}, s[44:47], s53 offen lds"] for kk in range(5)]
        if st >= NST: return w_list(st - NST)
        slot = sl1(st) * 20480
        g = []
        for pc in range(2):
            g.append([f"s_add_u32 m0, s31, {slot + pc*1024}", ("s_lshl_b32 s33, s38, 6" if pc == 0 else "s_add_u32 s33, s33, 20480"),
                      "buffer_load_dwordx4 v5, s[12:15], s33 offen lds"])
        for j in range(3):
            off = f" offset:{64*j}" if j else ""
            mid = ["s_mul_i32 s34, s38, 98304"] if j == 0 else (["s_add_u32 s38, s38, 1"] if j == 1 else [])
            g.append([f"s_add_u32 m0, s32, {slot + j*960}"] + (mid if mid else ["s_cmp_eq_u32 s38, 20", "s_cselect_b32 s38, 0, s38"]) +
                      [f"buffer_load_dwordx4 v6, s[16:19], s34 offen{off} lds"])
        return g
    ring = list(range(RS0 + 4)) + ["rp"] + list(range(RS0 + 4, NST + 3))
    def consumed_at(e): return RS0 + 3 if e == "rp" else e
    log = []
    for st in range(2):
        emit(p, dma_list(st)); log += [st] * 5
    def younger(tag):
        last = max(i for i, e in enumerate(log) if e == tag)
        return len(log) - 1 - last
    FR = 32; ACC = 72; RP = 184
    def reads(t):
        st, ks = divmod(t, 2)
        slot = sl1(st)
        k = slot // 2; so = (slot % 2) * 20480
        b = FR + 20 * (t % 2)
        out = []
        for tm in range(2):
            out.append(f"ds_read_b128 v[{b+4*tm}:{b+4*tm+3}], v{10+5*k+ks} offset:{so + tm*2048}")
        for tn in range(3):
            for a in range(2):
                r = b + 8 + 4 * tn + 2 * a
                out.append(f"ds_read_b64_tr_b16 v[{r}:{r+1}], v{12+5*k+tn} offset:{so + ks*3072 + a*256}")
        return out
    def mfmas(t):
        b = FR + 20 * (t % 2)
        out = []
        for tn in range(3):
            for tm in range(2):
                d = ACC + 16 * (3 * tm + tn)
                out.append(mfma32(d, b + 8 + 4 * tn, b + 4 * tm, "0" if t == 0 else None))
        return out
    p(f"s_waitcnt vmcnt({younger(0)})")
    p("s_barrier")
    S.stamp()
    for l in reads(0): p(l)
    emit(p, dma_list(2)); log += [2] * 5
    nx = 3
    T = 2 * NST
    for t in range(T):
        st, ks = divmod(t, 2)
        mf = mfmas(t)
        fill = [[], [], [], [], [], []]
        if t == T - 1:
            p("s_waitcnt lgkmcnt(0)")
        elif ks == 0:
            p("s_waitcnt lgkmcnt(0)")
            rd = reads(t + 1)
            fill = [rd[0:2], rd[2:4], rd[4:6], rd[6:8], [], []]
            if st == RS0 + 3:
                fill[4] = [f"s_waitcnt vmcnt({younger('rp')}) lgkmcnt(4)"]
                fill[5] = [f"ds_read_b64_tr_b16 v[{RP+4*kk+2*a}:{RP+4*kk+2*a+1}], v{175+kk} offset:{1280*a}" for kk in range(5) for a in range(2)]
        else:
            if st == 15:
                poll(p, "B_pollw", 60, "s57", 0, "ge", 17, sleep=16)
            p(f"s_waitcnt vmcnt({0 if st == RS0 + 6 else younger(st + 1)}) lgkmcnt(0)")
            p("s_barrier")
            if st == RS0 + 6: signal(p, "B_sigw", "v182", 0)
            if st in (2, 4, 9): S.stamp()
            rd = reads(t + 1)
            fill = [rd[0:3], rd[3:6], rd[6:8], [], [], []]
            if st == RS0 + 3:
                fill[1] = fill[1] + [f"buffer_store_dwordx4 v[{RP+4*kk}:{RP+4*kk+3}], v{180 if kk < 4 else 181}, s[4:7], 0 offen offset:{1024*(kk%4)} sc1" for kk in range(5)]
            cnt = 0
            while nx < len(ring) and (nx < 4 or consumed_at(ring[nx - 4]) <= st) and cnt < 2:
                g = dma_list(ring[nx])
                if cnt == 0:
                    fill[2] = fill[2] + g[0]; fill[3] = g[1] + g[2]; fill[4] = g[3] + g[4]
                else:
                    fill[5] = fill[5] + sum(g, [])
                assert not (isinstance(ring[nx], int) and ring[nx] >= NST and st < 15)
                log += [ring[nx]] * 5; nx += 1; cnt += 1
        for i, m in enumerate(mf):
            p(m)
            for l in fill[i]: p(l)
    assert nx == len(ring)
    S.stamp()
    p(f"s_setprio {HP}")
    p(f"s_mov_b32 s44, {hex(f2u(-math.log2(math.e)))}")
    p(f"s_mov_b32 s45, {hex(f2u(-math.log2(math.e)))}")
    p("s_load_dwordx2 s[8:9], s[0:1], 64")
    p("s_nop 7")
    order = [(tm, tn) for tn in range(3) for tm in range(2)]
    for idx, (tm, tn) in enumerate(order):
        d = ACC + 16 * (3 * tm + tn)
        t = FR + 12 * (idx % 2)
        for i in range(4): p(f"v_pk_mul_f32 v[{t+2*i}:{t+2*i+1}], v[{d+2*i}:{d+2*i+1}], s[44:45]")
        for i in range(8): p(f"v_exp_f32 v{t+i}, v{t+i}")
        for i in range(4): p(f"v_pk_mul_f32 v[{d+2*i}:{d+2*i+1}], v[{d+2*i}:{d+2*i+1}], v[{d+8+2*i}:{d+9+2*i}]")
        for i in range(4): p(f"v_pk_add_f32 v[{t+2*i}:{t+2*i+1}], v[{t+2*i}:{t+2*i+1}], 1.0 op_sel_hi:[1,0]")
        for i in range(8): p(f"v_rcp_f32 v{t+i}, v{t+i}")
        p("s_nop 0")
        for i in range(4): p(f"v_pk_mul_f32 v[{d+2*i}:{d+2*i+1}], v[{d+2*i}:{d+2*i+1}], v[{t+2*i}:{t+2*i+1}]")
        for i in range(4): p(f"v_cvt_pk_bf16_f32 v{t+8+i}, v{d+2*i}, v{d+2*i+1}")
        so = "0" if tm == 0 else "s37"
        p(f"buffer_store_dwordx4 v[{t+8}:{t+11}], v20, s[40:43], {so} offen offset:{1024*tn} sc1")
    p("""
    s_lshl_b32 s26, s24, 2
    s_and_b32 s27, s25, 3
    s_add_u32 s26, s26, s27            ; mb
    s_lshr_b32 s27, s25, 2             ; cb
    s_add_u32 s57, s26, 32
    s_lshl_b32 s57, s57, 8
    s_mul_i32 s29, s27, 160
    v_lshlrev_b32 v9, 4, v2
    s_add_u32 s39, s25, s27
    s_and_b32 s39, s39, 3
    s_mul_i32 s39, s39, 3
    s_cmp_ge_u32 s27, 5
    s_cselect_b32 s52, 5, 0
    s_sub_u32 s52, s27, s52
    s_mov_b32 s53, s52
    s_lshl_b32 s30, s26, 1
    s_add_u32 s30, s30, s35
    s_mul_i32 s32, s30, 96
    s_lshl_b32 s33, s36, 2
    s_add_u32 s32, s32, s33
    s_lshl_b32 s32, s32, 10
    v_add_u32 v25, s32, v9
    v_and_b32 v3, 15, v0               ; m16
    v_lshlrev_b32 v6, 4, v3
    v_lshl_add_u32 v6, v4, 8, v6
    s_mul_i32 s32, s36, 10240
    v_add_u32 v28, s32, v6
    v_bfe_u32 v7, v2, 4, 1
    v_lshl_add_u32 v26, v7, 9, v28
    v_add_u32 v27, 40960, v26
    v_add_u32 v29, 40960, v28
    s_lshl_b32 s32, s26, 6
    s_lshl_b32 s33, s28, 4
    s_add_u32 s32, s32, s33
    v_add_u32 v24, s32, v3
    v_lshlrev_b32 v22, 2, v24
    """)
    srd_off(p, 20, 10, 11, hex(WS_G), 8192)
    p("s_setprio 0")
    p("s_waitcnt vmcnt(0)")
    p("s_barrier")
    signal(p, "B_sigh", "v183", 0)
    S.stamp()
    emit(p, w_list(3))
    poll(p, "B_pollh", 60, "s57", 0, "ge", 17)
    p("s_barrier")
    S.stamp()
    XR = 32; WF = 96; ACC = 120
    def x_list(st):
        g = []
        for ks in range(4):
            r = XR + 4 * ((4 * st + ks) % 16)
            pre = {0: ["s_lshl_b32 s33, s39, 13"], 1: ["s_add_u32 s39, s39, 1"], 2: ["s_cmp_eq_u32 s39, 12", "s_cselect_b32 s39, 0, s39"]}.get(ks, [])
            g.append(pre + [f"buffer_load_dwordx4 v[{r}:{r+3}], v25, s[40:43], s33 offen offset:{1024*ks} sc1"])
        return g
    for st in range(4): emit(p, x_list(st))
    p("buffer_load_dword v23, v22, s[20:23], 0 offen sc1")
    def reads2(t):
        st, ks = divmod(t, 4)
        slot = sl2(st)
        k = slot // 2; so = (slot % 2) * 20480
        b = WF + 12 * (t % 2)
        return [f"ds_read_b128 v[{b+4*j}:{b+4*j+3}], v{(26 if j < 2 else 28) + k} offset:{so + ks*2560 + j*1024}" for j in range(3)]
    def mfmas2(t):
        b = WF + 12 * (t % 2)
        x = XR + 4 * (t % 16)
        return [mfma32(ACC + 16 * j, b + 4 * j, x, "0" if t == 0 else None) for j in range(3)]
    for l in reads2(0): p(l)
    p("s_waitcnt vmcnt(13)")
    T = 4 * NST2
    log = [s for s in range(4) for _ in range(4)] + [-1]
    def younger2(stage):
        last = max(i for i, e in enumerate(log) if e == stage)
        return len(log) - 1 - last
    for t in range(T):
        st, ks = divmod(t, 4)
        mf = mfmas2(t)
        post = []
        rd = reads2(t + 1) if t < T - 1 else []
        if ks == 3 and t < T - 1:
            p(f"s_waitcnt vmcnt({younger2(st + 1)}) lgkmcnt(0)")
            p("s_barrier")
            if st + 4 < NST2 + 2:
                post = sum(w_list(st + 4), []); log += [st + 4] * 5
            if st + 4 < NST2:
                post += sum(x_list(st + 4), []); log += [st + 4] * 4
        else:
            p("s_waitcnt lgkmcnt(0)")
        for i, m in enumerate(mf):
            p(m)
            if i == 0:
                for l in rd: p(l)
        for l in post: p(l)
    S.stamp()
    p(f"s_setprio {HP}")
    p("""
    v_bfe_u32 v4, v0, 4, 2             ; q
    s_mul_i32 s32, s35, 10240
    s_cmp_eq_u32 s36, 0
    s_cselect_b32 s33, 61440, 0
    s_add_u32 s32, s32, s33
    v_add_u32 v30, s32, v9
    s_lshl_b32 s33, s35, 8
    v_lshlrev_b32 v6, 4, v3
    v_lshl_add_u32 v6, v4, 9, v6
    v_add_u32 v6, s33, v6
    s_mul_i32 s32, s36, 10240
    v_add_u32 v31, s32, v6
    v_add_u32 v29, 61440, v31
    s_barrier
    """)
    for g in range(10):
        p(f"ds_write_b128 v30, v[{ACC+4*g}:{ACC+4*g+3}] offset:{1024*g}")
    p("""
    s_lshl_b32 s30, s26, 1
    s_add_u32 s30, s30, s36
    s_mul_i32 s32, s30, 40960
    v_add_u32 v25, s32, v6
    v_lshrrev_b32 v7, 1, v4
    v_mul_u32_u24 v7, 2560, v7
    v_and_b32 v8, 1, v4
    v_lshl_add_u32 v7, v8, 8, v7
    v_lshl_add_u32 v26, v3, 4, v7
    v_add_u32 v27, 40960, v26
    v_mul_u32_u24 v28, 1280, v24
    v_lshl_add_u32 v28, v4, 3, v28
    v_add_u32 v28, s29, v28
    v_sub_f32 v22, 1.0, v23
    """)
    srd_off(p, 12, 10, 11, hex(WS_O), 2048 * 640 * 2)
    p("s_waitcnt vmcnt(0) lgkmcnt(0)")
    srd(p, 40, 8, 9, 2048 * 640 * 2)
    p("s_barrier")
    BB = 10
    B2 = 200; XO = 32; WR = 112; A2 = 10
    A2r = [10, 14, 192, 196, 18]
    A2r = [10, 14, 192, 196, 4]
    for u in range(5):
        p(f"ds_read_b128 v[{B2+4*u}:{B2+4*u+3}], v31 offset:{2048*u}")
        p(f"ds_read_b128 v[{XO+4*u}:{XO+4*u+3}], v29 offset:{2048*u}")
    def oreads(i):
        sg, ks = divmod(i, 4)
        slot = sl2(sg)
        k = slot // 2; so = (slot % 2) * 20480
        b = WR + 20 * (i % 4)
        return [f"ds_read_b128 v[{b+4*u}:{b+4*u+3}], v{26+k} offset:{so + ks*5120 + u*512}" for u in range(5)]
    p("s_waitcnt lgkmcnt(0)")
    for i in range(4):
        for l in oreads(i): p(l)
        if i == 0:
            for u in range(5):
                a = B2 + 4 * u; b = XO + 4 * u
                p(f"v_pk_add_f32 v[{a}:{a+1}], v[{a}:{a+1}], v[{b}:{b+1}]")
                p(f"v_pk_add_f32 v[{a+2}:{a+3}], v[{a+2}:{a+3}], v[{b+2}:{b+3}]")
            for r in range(20): p(f"v_mul_f32 v{B2+r}, v{B2+r}, v22")
        if i % 2 == 1: p("s_waitcnt lgkmcnt(0)")
    p("s_barrier")
    p("s_setprio 0")
    emit(p, w_list(NST2 + 2) + w_list(NST2 + 3) + w_list(NST2 + 4))
    S.stamp()
    p("s_add_u32 s57, s57, 0x2000")
    poll(p, "B_pollo", 60, "s57", 0, "ge", 32, sleep=2)
    p("s_waitcnt vmcnt(0)")
    p("s_barrier")
    S.stamp()
    for i in range(20):
        if i % 4 == 0:
            p("s_lshl_b32 s33, s53, 13"); p("s_add_u32 s53, s53, 1")
        if i % 4 == 2:
            p("s_add_u32 s33, s33, 4096"); p("s_cmp_eq_u32 s53, 5"); p("s_cselect_b32 s53, 0, s53")
        p(f"buffer_load_dwordx4 v[{XO+4*i}:{XO+4*i+3}], v25, s[12:15], s33 offen offset:{2048*(i%2)} sc1")
    for i in range(20):
        b = WR + 20 * (i % 4); x = XO + 4 * i
        if i >= 1:
            n = min(5 * (min(i + 3, 19) - i), 10)
            p(f"s_waitcnt vmcnt({19-i}) lgkmcnt({n})")
        else:
            p(f"s_waitcnt vmcnt({19-i})")
        for u in range(5):
            d = A2r[u]
            c = "0" if i == 0 else f"v[{d}:{d+3}]"
            p(f"v_mfma_f32_16x16x32_bf16 v[{d}:{d+3}], v[{b+4*u}:{b+4*u+3}], v[{x}:{x+3}], {c}")
        if i + 4 < 20:
            for l in oreads(i + 4): p(l)
    p("s_nop 3")
    for u in range(5):
        d = A2r[u]; b = B2 + 4 * u
        for r in range(4): p(f"v_fmac_f32 v{b+r}, v{d+r}, v23")
        p(f"v_cvt_pk_bf16_f32 v{XO+2*u}, v{b}, v{b+1}")
        p(f"v_cvt_pk_bf16_f32 v{XO+2*u+1}, v{b+2}, v{b+3}")
        p(f"buffer_store_dwordx2 v[{XO+2*u}:{XO+2*u+1}], v28, s[40:43], 0 offen offset:{32*u}")
    S.stamp(); S.rt()
    S.dump(10, 11, 28, region=0, vt=60)
    p("s_endpgm")

def gen_fused(p):
    name = "fused_kernel"
    head(p, name)
    p("s_cmp_ge_u32 s2, 512")
    p("s_cbranch_scc1 CODE_END")
    S = Stamps(p)
    S.stamp(); S.rt()
    p("s_load_dwordx4 s[4:7], s[0:1], 0")
    p("s_load_dwordx4 s[8:11], s[0:1], 72")
    p("""
    v_lshrrev_b32 v1, 6, v0
    v_and_b32 v2, 63, v0
    s_cmp_ge_u32 s2, 256
    v_readfirstlane_b32 s28, v1
    s_cbranch_scc1 B_role
    s_setprio 1
    """)
    n0 = S.n
    gen_qkv(p, S)
    gen_att(p, S)
    p.raw(".p2align 6")
    p.label("B_role")
    S.n = n0
    gen_b(p, S)
    return kd(name, NVGPR), f"; @launch kernel={name} grid=(512,1,1) block=(256,1,1) lds=81920"
```

```python
from common import *
import common
from att import S0, NM, OO, PP, QA, QB, QT, KM, KT, VV, NVGPR, LTHRESH, BIG, m2b

O = common.OPT

def emit(p, gs):
    for g in gs:
        for l in g: p(l)

def flag_srd(p):
    srd_off(p, 60, 10, 11, hex(WS_F), 0x20000)

def poll(p, lab, srdn, off_s, imm, cmp, target, sleep=2, limit=1 << 20):
    p(f"""
    s_cmp_lg_u32 s28, 0
    s_cbranch_scc1 {lab}_done
    s_add_u32 s98, s{srdn}, {off_s}
    s_addc_u32 s99, s{srdn+1}, 0
    s_mov_b32 s59, 0
    """)
    p.label(lab)
    p(f"""
    s_load_dword s58, s[98:99], {imm} glc
    s_add_u32 s59, s59, 1
    s_waitcnt lgkmcnt(0)
    s_cmp_{cmp}_u32 s58, {target}
    s_cbranch_scc1 {lab}_done
    s_cmp_gt_u32 s59, {limit}
    s_cbranch_scc1 {lab}_done
    s_sleep {sleep}
    s_branch {lab}
    """)
    p.label(f"{lab}_done")

def vpoll_init(p, lab):
    srd(p, 52, 8, 9, 256)
    p(f"""
    s_cmp_lg_u32 s28, 0
    s_cbranch_scc1 {lab}_done
    v_mov_b32 v222, 0
    s_mov_b32 s59, 0
    """)
    p.label(lab)
    p(f"""
    buffer_load_dword v223, v222, s[52:55], 0 offen sc1
    s_add_u32 s59, s59, 1
    s_waitcnt vmcnt(0)
    v_readfirstlane_b32 s58, v223
    s_cmp_lg_u32 s58, 0
    s_cbranch_scc1 {lab}_done
    s_cmp_gt_u32 s59, 0x100000
    s_cbranch_scc1 {lab}_done
    s_sleep 8
    s_branch {lab}
    """)
    p.label(f"{lab}_done")

def sig_lines(lab, line_s, n, imm=0):
    out = ["s_cmp_lg_u32 s28, 0", f"s_cbranch_scc1 {lab}", f"s_lshl_b32 s58, {line_s}, 8", "s_add_u32 s100, s60, s58", "s_addc_u32 s101, s61, 0", "s_mov_b32 s95, 0x20000"]
    out += [f"s_atomic_add s95, s[100:101], {256*k + imm}" for k in range(n)]
    out.append(f"{lab}:")
    return out
def signal(p, lab, line_s, n, imm=0):
    for l in sig_lines(lab, line_s, n, imm): p(l)

def aux_prefetch(p, lo, hi, idx_s, srdn, vtmp):
    if not O.get("aux"): return
    srd(p, srdn, lo, hi, 640 * 1536 * 2)
    p(f"""
    s_mul_i32 s58, {idx_s}, 122880
    v_lshlrev_b32 v{vtmp}, 4, v0
    v_add_u32 v{vtmp}, s58, v{vtmp}
    """)
    for i in range(30):
        p(f"s_mov_b32 s58, {4096*i}")
        p(f"buffer_load_dwordx4 v[216:219], v{vtmp}, s[{srdn}:{srdn+3}], s58 offen")

STRADDLE = 0x12481248
def mod10(p, d, t):
    p(f"""
    s_cmp_ge_u32 {d}, 10
    s_cselect_b32 {t}, 10, 0
    s_sub_u32 {d}, {d}, {t}
    """)
def gen_params_a(p):
    p("""
    s_and_b32 s24, s2, 7
    s_lshr_b32 s25, s2, 3
    s_lshr_b32 s29, s24, 1             ; x/2
    s_and_b32 s30, s24, 1              ; x%2
    s_cmp_ge_u32 s25, 30
    s_cbranch_scc1 A_gate
    s_add_u32 s48, s2, 256
    s_mov_b32 s56, 0
    s_cmp_ge_u32 s25, 20
    s_cbranch_scc1 A_kv
    s_mul_i32 s31, s29, 20
    s_add_u32 s31, s31, s25            ; i
    s_lshr_b32 s27, s31, 3
    s_and_b32 s31, s31, 7
    s_lshl_b32 s26, s30, 1
    s_add_u32 s26, s26, s31
    s_mul_i32 s32, s30, 6
    s_add_u32 s32, s32, s31
    s_add_u32 s32, s32, 2
    s_cmp_lt_u32 s31, 2
    s_cselect_b32 s26, s26, s32        ; mt
    s_lshr_b32 s32, s25, 3
    s_lshl_b32 s32, s32, 1
    s_mov_b32 s38, s31
    s_branch A_par
    A_kv:
    s_sub_u32 s32, s25, 20
    s_and_b32 s31, s32, 1
    s_lshr_b32 s32, s32, 1
    s_lshl_b32 s26, s30, 1
    s_add_u32 s26, s26, s31
    s_mul_i32 s27, s29, 5
    s_add_u32 s27, s27, s32
    s_add_u32 s27, s27, 10
    s_mul_i32 s38, s31, 5
    A_par:
    s_lshl_b32 s32, s32, 1
    s_add_u32 s38, s38, s32
    """)
def gen_params_b(p):
    p("""
    s_lshr_b32 s29, s24, 1
    s_and_b32 s30, s24, 1
    s_mul_i32 s32, s25, 43
    s_lshr_b32 s32, s32, 8             ; j/6
    s_mul_i32 s31, s32, 6
    s_sub_u32 s31, s25, s31            ; j%6
    s_mul_i32 s26, s30, 6
    s_add_u32 s26, s26, s31
    s_add_u32 s26, s26, 4
    s_mul_i32 s27, s29, 5
    s_add_u32 s27, s27, s32
    s_add_u32 s27, s27, 10
    s_lshl_b32 s38, s32, 1
    s_add_u32 s38, s38, s31
    s_mov_b32 s48, 200
    s_mov_b32 s56, 104
    """)
def gen_qkv(p, S):
    p.label("QKV_tile")
    mod10(p, "s38", "s39")
    p("""
    s_lshl_b32 s29, s26, 7
    s_lshl_b32 s30, s28, 5
    s_add_u32 s30, s30, s29
    v_lshrrev_b32 v5, 3, v2
    v_and_b32 v6, 7, v2
    v_lshrrev_b32 v7, 1, v5
    v_xor_b32 v6, v6, v7
    v_lshlrev_b32 v6, 4, v6
    v_add_u32 v5, s30, v5
    v_mul_u32_u24 v5, 1280, v5
    v_add_u32 v3, v5, v6
    v_xor_b32 v4, 64, v3
    v_add_u32 v4, 10240, v4
    s_lshl_b32 s31, s28, 12
    v_lshrrev_b32 v5, 2, v2
    s_lshl_b32 s32, s28, 4
    v_add_u32 v5, s32, v5
    v_mul_u32_u24 v5, 3840, v5
    v_and_b32 v6, 3, v2
    v_lshlrev_b32 v6, 4, v6
    s_lshl_b32 s32, s27, 7
    v_add3_u32 v8, v5, v6, s32
    s_lshl_b32 s32, s28, 11
    s_add_u32 s32, s32, 49152
    s_mov_b32 s37, s38
    s_waitcnt lgkmcnt(0)
    """)
    srd(p, 12, 4, 5, 2048 * 640 * 2)
    srd(p, 16, 6, 7, 640 * 1920 * 2)
    def item(it):
        if it[0] == "x":
            _, sg, hf = it
            base = (sg % 3) * 16384 + hf * 2048
            a = "s_lshl_b32 s33, s38, 7" if hf == 0 else "s_add_u32 s33, s33, 20480"
            b = ["s_nop 0"] if hf == 0 else ["s_add_u32 s38, s38, 1", "s_cmp_eq_u32 s38, 10", "s_cselect_b32 s38, 0, s38"]
            return [[f"s_add_u32 m0, s31, {base}", a, "buffer_load_dwordx4 v3, s[12:15], s33 offen lds"],
                    [f"s_add_u32 m0, s31, {base + 1024}"] + b + ["buffer_load_dwordx4 v4, s[12:15], s33 offen lds"]]
        _, h = it
        base = (h % 4) * 8192
        return [[f"s_add_u32 m0, s32, {base}", "s_mul_i32 s34, s37, 245760", "buffer_load_dwordx4 v8, s[16:19], s34 offen lds"],
                [f"s_add_u32 m0, s32, {base + 960}", "s_add_u32 s37, s37, 1", "s_cmp_eq_u32 s37, 10", "s_cselect_b32 s37, 0, s37",
                 "buffer_load_dwordx4 v8, s[16:19], s34 offen offset:64 lds"]]
    order = []
    for h in range(10): order += [("w", h), ("x", h, 0), ("x", h, 1)]
    def need(it): return it[1]
    def free_after(it): return it[1] - 3 if it[0] == "x" else it[1] - 4
    NPRO = int(O.get("qpro", 6))
    for it in order[:NPRO]: emit(p, item(it))
    p("""
    s_and_b32 s35, s28, 1              ; wm
    s_lshr_b32 s36, s28, 1             ; wn
    v_and_b32 v5, 31, v2               ; l32
    v_lshrrev_b32 v6, 5, v2            ; hh
    v_lshrrev_b32 v7, 1, v5
    v_and_b32 v7, 7, v7
    v_xor_b32 v7, v7, v6
    v_lshlrev_b32 v7, 4, v7
    s_lshl_b32 s40, s35, 13
    v_lshlrev_b32 v9, 7, v5
    v_add3_u32 v10, v9, v7, s40
    v_xor_b32 v11, 32, v10
    v_xor_b32 v12, 64, v10
    v_xor_b32 v13, 96, v10
    v_bfe_u32 v9, v2, 2, 2
    v_lshlrev_b32 v7, 6, v9
    v_bfe_u32 v9, v2, 4, 1
    v_lshl_add_u32 v7, v9, 5, v7
    v_lshl_add_u32 v7, v6, 9, v7
    s_lshl_b32 s40, s36, 10
    s_add_u32 s40, s40, 49152
    v_add_u32 v14, s40, v7
    s_cmp_ge_u32 s27, 10
    s_cselect_b32 s39, 1, 0
    s_cmp_ge_u32 s27, 20
    s_cselect_b32 s39, 2, s39          ; section
    s_mul_i32 s40, s39, 10
    s_sub_u32 s45, s27, s40            ; block within the section
    s_lshl_b32 s40, s45, 6
    s_lshl_b32 s41, s36, 5
    s_add_u32 s40, s40, s41            ; nbase
    s_lshr_b32 s41, s26, 1
    s_mul_i32 s41, s41, 20480
    s_and_b32 s42, s26, 1
    s_lshl_b32 s42, s42, 1
    s_add_u32 s42, s42, s35            ; pair
    s_cmp_eq_u32 s39, 0
    s_cselect_b32 s43, {WS_Q}, {WS_KV}
    s_mov_b32 s44, 163840
    ; counters of this tile: heads h0..h0+3
    s_mul_i32 s46, s45, 3277
    s_lshr_b32 s46, s46, 10
    s_add_u32 s46, s46, s56
    v_mov_b32 v144, 0x40000000
    """.replace("{WS_Q}", hex(WS_Q)).replace("{WS_KV}", hex(WS_KV)))
    srd_off(p, 20, 10, 11, "s43", 32 * HEAD_STRIDE)
    flag_srd(p)
    srd(p, 52, 8, 9, 256)
    p("v_mov_b32 v18, 0")
    p("s_cmp_eq_u32 s39, 2")
    p("s_cbranch_scc1 A_vpath")
    ACC = 64; FR = 32; OFF = 128
    def reads(t):
        sg, ks = divmod(t, 4)
        b = FR + 12 * (t % 2)
        out = []
        for tm in range(2):
            out.append(f"ds_read_b128 v[{b+4*tm}:{b+4*tm+3}], v{10+ks} offset:{(sg % 3)*16384 + tm*4096}")
        for a in range(2):
            r = b + 8 + 2 * a
            out.append(f"ds_read_b64_tr_b16 v[{r}:{r+1}], v14 offset:{(sg % 4)*8192 + ks*2048 + a*256}")
        return out
    def mfmas(t, vrole):
        b = FR + 12 * (t % 2)
        out = []
        for tm in range(2):
            x = b + 4 * tm; w = b + 8
            a_, b_ = (x, w) if vrole else (w, x)
            out.append(mfma32(ACC + 16 * tm, a_, b_, "0" if t == 0 else None))
        return out
    def mainloop(vrole):
        log = [need(it) for it in order[:NPRO] for _ in range(2)]
        nxt = NPRO
        def younger(h):
            assert log.count(h) == 6
            last = max(i for i, e in enumerate(log) if e <= h)
            return len(log) - 1 - last
        S.stamp()
        p(f"s_waitcnt vmcnt({younger(0)})")
        p("s_barrier")
        S.stamp()
        for l in reads(0): p(l)
        for t in range(40):
            sg, ks = divmod(t, 4)
            mf = mfmas(t, vrole)
            rd = reads(t + 1) if t < 39 else []
            extra = []
            if ks == 3 and t < 39:
                p(f"s_waitcnt vmcnt({younger(sg + 1)}) lgkmcnt(0)")
                p("s_barrier")
                if sg in (1, 4): S.stamp()
                done = sg
            else:
                p("s_waitcnt lgkmcnt(0)")
                done = sg - 1
            if nxt < len(order) and free_after(order[nxt]) <= done:
                extra += item(order[nxt]); log += [need(order[nxt])] * 2; nxt += 1
            if t == int(O.get("b2start", 26)):
                lab = "A_go" + ("v" if vrole else "q")
                extra.append(["s_cmp_ge_u32 s2, 256", f"s_cbranch_scc1 {lab}"] + sig_lines(lab, "s48", 1))
            for l in rd: p(l)
            p(mf[0]); p(mf[1])
            emit(p, extra)
        S.stamp()
        p("buffer_load_dword v19, v18, s[52:55], 0 offen sc1")
    p("""
    v_and_b32 v7, 1, v2
    v_lshl_add_u32 v14, v7, 4, v14
    v_bfe_u32 v7, v2, 1, 1
    v_lshl_add_u32 v14, v7, 3, v14
    v_lshlrev_b32 v26, 4, v5
    v_add_u32 v26, s41, v26
    s_lshl_b32 s56, s42, 11
    s_lshl_b32 s57, s42, 9
    s_add_u32 s57, s57, 8192
    s_lshr_b32 s47, s40, 3
    v_add_u32 v27, s47, v6
    s_lshl_b32 s47, s44, 1
    """)
    MK = [40, 42]
    for k in range(2):
        m = MK[k]
        p(f"""
        v_add_u32 v28, {2*k}, v27
        v_mul_u32_u24 v29, 13108, v28
        v_lshrrev_b32 v29, 16, v29
        v_mul_u32_u24 v30, 5, v29
        v_sub_u32 v30, v28, v30
        v_mul_lo_u32 v29, v29, s47
        v_add_u32 v29, v29, v26
        v_cmp_lt_u32 vcc, 2, v30
        v_mov_b32 v28, s44
        v_add_u32 v31, 1, v30
        v_cndmask_b32 v28, 0, v28, vcc
        v_cndmask_b32 v31, v30, v31, vcc
        v_and_b32 v31, 1, v31
        v_lshl_add_u32 v28, v31, 9, v28
        v_add3_u32 v28, v28, v29, s56
        v_cmp_eq_u32 s[{m}:{m+1}], 2, v30
        v_add_u32 v29, s57, v29
        s_nop 0
        v_cndmask_b32 v{OFF+k}, v28, v144, s[{m}:{m+1}]
        v_cndmask_b32 v{OFF+4+k}, v144, v29, s[{m}:{m+1}]
        """)
    p("s_cmp_eq_u32 s39, 0")
    p(f"s_cselect_b32 s56, {hex(QSCALE)}, 1.0")
    p("s_mov_b32 s57, s56")
    n0 = S.n
    mainloop(False)
    p("s_nop 7")
    p("s_nop 1")
    for i in range(16):
        p(f"v_pk_mul_f32 v[{ACC+2*i}:{ACC+2*i+1}], v[{ACC+2*i}:{ACC+2*i+1}], s[56:57]")
    for k in range(2):
        for tm in range(2):
            d = ACC + 16 * tm + 8 * k
            t0 = FR + 4 * (2 * k + tm)
            for i in range(4): p(f"v_cvt_pk_bf16_f32 v{t0+i}, v{d+2*i}, v{d+2*i+1}")
            p(f"buffer_store_dwordx4 v[{t0}:{t0+3}], v{OFF+k}, s[20:23], 0 offen offset:{1024*tm} sc1")
    for k in range(2):
        a = FR + 8 * k; b = a + 4
        t = 148 + 8 * k; m = MK[k]
        p(f"s_cmp_eq_u64 s[{m}:{m+1}], 0")
        p(f"s_cbranch_scc1 A_notail{k}")
        for i, src in enumerate((a, a + 1, b, b + 1, a + 2, a + 3, b + 2, b + 3)):
            p(f"v_mov_b32 v{t+i}, v{src}")
        p(f"buffer_store_dwordx4 v[{t}:{t+3}], v{OFF+4+k}, s[20:23], 0 offen sc1")
        p(f"buffer_store_dwordx4 v[{t+4}:{t+7}], v{OFF+4+k}, s[20:23], s44 offen sc1")
        p.label(f"A_notail{k}")
    p("s_branch A_publish")
    p.label("A_vpath")
    p(f"""
    v_and_b32 v7, 3, v2
    v_lshl_add_u32 v14, v7, 3, v14
    s_mul_i32 s45, s42, 2560
    s_add_u32 s45, s45, s41
    s_add_u32 s45, s45, 10240
    v_mul_u32_u24 v26, 320, v6
    v_add_u32 v26, s45, v26
    v_add_u32 v28, s40, v5
    v_mul_u32_u24 v29, 3277, v28
    v_lshrrev_b32 v29, 16, v29
    v_mul_u32_u24 v30, 20, v29
    v_sub_u32 v30, v28, v30
    v_mul_lo_u32 v29, v29, s44
    v_lshl_add_u32 v30, v30, 4, v26
    v_add_u32 v{OFF}, v29, v30
    """)
    S.n = n0
    mainloop(True)
    p("s_nop 7")
    p("s_nop 2")
    for tm in range(2):
        d = ACC + 16 * tm
        for half in range(2):
            t0 = FR + 4 * (2 * tm + half)
            for i in range(4):
                p(f"v_cvt_pk_bf16_f32 v{t0+i}, v{d+8*half+2*i}, v{d+8*half+2*i+1}")
            p(f"buffer_store_dwordx4 v[{t0}:{t0+3}], v{OFF}, s[20:23], 0 offen offset:{(2*tm+half)*640} sc1")
    p("s_branch A_publish")
    p.label("A_gate")
    p("s_load_dwordx2 s[34:35], s[0:1], 56")
    p("""
    s_lshl_b32 s31, s29, 1
    s_add_u32 s31, s31, s25
    s_sub_u32 s31, s31, 30
    s_lshl_b32 s26, s30, 1
    s_add_u32 s26, s26, s31
    s_mul_i32 s32, s30, 6
    s_add_u32 s32, s32, s31
    s_add_u32 s32, s32, 2
    s_cmp_lt_u32 s31, 2
    s_cselect_b32 s26, s26, s32        ; mt
    s_lshl_b32 s29, s26, 7
    s_lshl_b32 s30, s28, 5
    s_add_u32 s30, s30, s29
    s_waitcnt lgkmcnt(0)
    """)
    srd(p, 12, 4, 5, 2048 * 640 * 2)
    srd(p, 16, 34, 35, 1280)
    srd_off(p, 20, 10, 11, hex(WS_G), 8192)
    flag_srd(p)
    p("""
    v_and_b32 v5, 15, v2
    v_lshrrev_b32 v6, 4, v2
    v_lshlrev_b32 v7, 4, v5
    v_add_u32 v8, s30, v6
    v_mul_u32_u24 v9, 1280, v8
    v_add_u32 v9, v9, v7
    v_lshlrev_b32 v8, 2, v8
    """)
    GW = 20; XR = 40; NR = 8; Z = 200
    for j in range(5):
        p(f"buffer_load_dwordx4 v[{GW+4*j}:{GW+4*j+3}], v7, s[16:19], 0 offen offset:{256*j}")
    for rg in range(NR):
        p(f"s_mov_b32 s33, {rg*4*1280}")
        for j in range(5):
            r = XR + 20 * rg + 4 * j
            p(f"buffer_load_dwordx4 v[{r}:{r+3}], v9, s[12:15], s33 offen offset:{256*j}")
    for rg in range(NR): p(f"v_mov_b32 v{Z+rg}, 0")
    for rg in range(NR):
        p(f"s_waitcnt vmcnt({5*(NR-1-rg)})")
        for j in range(20):
            p(f"v_dot2_f32_bf16 v{Z+rg}, v{XR+20*rg+j}, v{GW+j}, v{Z+rg}")
    p("s_nop 3")
    for sh in (8, 4, 2, 1):
        for rg in range(NR):
            p(f"v_add_f32_dpp v{Z+rg}, v{Z+rg}, v{Z+rg} row_ror:{sh} row_mask:0xf bank_mask:0xf")
    p(f"s_mov_b32 s34, {hex(f2u(-math.log2(math.e)))}")
    for rg in range(NR): p(f"v_mul_f32 v{Z+rg}, s34, v{Z+rg}")
    for rg in range(NR): p(f"v_exp_f32 v{Z+rg}, v{Z+rg}")
    for rg in range(NR): p(f"v_add_f32 v{Z+rg}, 1.0, v{Z+rg}")
    for rg in range(NR): p(f"v_rcp_f32 v{Z+rg}, v{Z+rg}")
    p("v_cmp_eq_u32 vcc, 0, v5")
    p("s_and_saveexec_b64 s[56:57], vcc")
    for rg in range(NR):
        p(f"buffer_store_dword v{Z+rg}, v8, s[20:23], 0 offen offset:{16*rg} sc1")
    p("s_mov_b64 exec, -1")
    p("s_lshl_b32 s46, s26, 1")
    p("s_add_u32 s46, s46, 32")
    p("s_waitcnt vmcnt(0)")
    p("s_barrier")
    vpoll_init(p, "G_init")
    signal(p, "G_sig", "s46", 2)
    p("s_branch AT_start")
    p.label("A_publish")
    S.stamp()
    p("s_waitcnt vmcnt(0)")
    p("v_readfirstlane_b32 s49, v19")
    p("s_barrier")
    p("s_cmp_lg_u32 s49, 0")
    p("s_cbranch_scc1 A_init_done")
    vpoll_init(p, "A_init")
    signal(p, "A_sig", "s46", 4)
    S.stamp()
    p("s_cmp_ge_u32 s2, 256")
    p("s_cbranch_scc1 B_after")
    p.label("AT_start")

def gen_qkv1(p, S):
    p("""
    s_and_b32 s24, s2, 7
    s_lshr_b32 s25, s2, 3
    s_and_b32 s26, s24, 3
    s_lshl_b32 s26, s26, 2
    s_and_b32 s27, s25, 3
    s_add_u32 s26, s26, s27            ; mt
    s_lshr_b32 s27, s24, 2
    s_lshl_b32 s27, s27, 3
    s_lshr_b32 s29, s25, 2
    s_add_u32 s27, s27, s29            ; nt
    s_lshl_b32 s29, s26, 7             ; 128*mt
    s_lshl_b32 s30, s28, 5
    s_add_u32 s30, s30, s29
    s_cmp_eq_u32 s27, 15
    s_cbranch_scc1 A_gate
    v_lshrrev_b32 v5, 3, v2
    v_and_b32 v6, 7, v2
    v_lshrrev_b32 v7, 1, v5
    v_xor_b32 v6, v6, v7
    v_lshlrev_b32 v6, 4, v6
    v_add_u32 v5, s30, v5
    v_mul_u32_u24 v5, 1280, v5
    v_add_u32 v3, v5, v6
    v_xor_b32 v4, 64, v3
    v_add_u32 v4, 10240, v4
    s_lshl_b32 s31, s28, 12
    s_and_b32 s35, s28, 1              ; wm
    s_lshr_b32 s36, s28, 1             ; wn
    v_lshrrev_b32 v5, 2, v2
    s_lshl_b32 s32, s36, 4
    v_add_u32 v5, s32, v5
    v_mul_u32_u24 v5, 3840, v5
    v_and_b32 v6, 3, v2
    v_lshlrev_b32 v6, 4, v6
    s_lshl_b32 s32, s27, 8
    s_lshl_b32 s33, s35, 7
    s_add_u32 s32, s32, s33
    v_add3_u32 v8, v5, v6, s32
    s_lshl_b32 s32, s28, 11
    s_add_u32 s32, s32, 49152
    s_and_b32 s38, s25, 3
    s_mul_i32 s38, s38, 3
    s_lshr_b32 s39, s25, 2
    s_add_u32 s38, s38, s39
    s_cmp_ge_u32 s38, 10
    s_cselect_b32 s39, 10, 0
    s_sub_u32 s38, s38, s39
    s_lshl_b32 s37, s38, 1
    s_waitcnt lgkmcnt(0)
    """)
    srd(p, 12, 4, 5, 2048 * 640 * 2)
    srd(p, 16, 6, 7, 640 * 1920 * 2)
    def item(it):
        if it[0] == "x":
            _, sg, hf = it
            base = (sg % 3) * 16384 + hf * 2048
            a = "s_lshl_b32 s33, s38, 7" if hf == 0 else "s_add_u32 s33, s33, 20480"
            b = ["s_nop 0"] if hf == 0 else ["s_add_u32 s38, s38, 1", "s_cmp_eq_u32 s38, 10", "s_cselect_b32 s38, 0, s38"]
            return [[f"s_add_u32 m0, s31, {base}", a, "buffer_load_dwordx4 v3, s[12:15], s33 offen lds"],
                    [f"s_add_u32 m0, s31, {base + 1024}"] + b + ["buffer_load_dwordx4 v4, s[12:15], s33 offen lds"]]
        _, h = it
        base = (h % 4) * 8192
        return [[f"s_add_u32 m0, s32, {base}", "s_mul_i32 s34, s37, 122880", "buffer_load_dwordx4 v8, s[16:19], s34 offen lds"],
                [f"s_add_u32 m0, s32, {base + 960}", "s_add_u32 s37, s37, 1", "s_cmp_eq_u32 s37, 20", "s_cselect_b32 s37, 0, s37",
                 "buffer_load_dwordx4 v8, s[16:19], s34 offen offset:64 lds"]]
    order = []
    for h in range(20):
        if h % 2 == 0: order += [("x", h // 2, 0), ("x", h // 2, 1)]
        order.append(("w", h))
    def need(it): return 2 * it[1] if it[0] == "x" else it[1]
    def free_after(it): return 2 * (it[1] - 3) + 1 if it[0] == "x" else it[1] - 4
    NPRO = int(O.get("qpro", 7))
    for it in order[:NPRO]: emit(p, item(it))
    p("""
    v_and_b32 v5, 31, v2               ; l32
    v_lshrrev_b32 v6, 5, v2            ; hh
    v_lshrrev_b32 v7, 1, v5
    v_and_b32 v7, 7, v7
    v_xor_b32 v7, v7, v6
    v_lshlrev_b32 v7, 4, v7
    s_lshl_b32 s40, s35, 13
    v_lshlrev_b32 v9, 7, v5
    v_add3_u32 v10, v9, v7, s40
    v_xor_b32 v11, 32, v10
    v_xor_b32 v12, 64, v10
    v_xor_b32 v13, 96, v10
    v_bfe_u32 v9, v2, 2, 2
    v_lshlrev_b32 v7, 6, v9
    v_bfe_u32 v9, v2, 4, 1
    v_lshl_add_u32 v7, v9, 5, v7
    v_lshl_add_u32 v7, v6, 9, v7
    s_lshl_b32 s40, s36, 11
    s_add_u32 s40, s40, 49152
    v_add_u32 v14, s40, v7
    s_cmp_ge_u32 s27, 5
    s_cselect_b32 s39, 1, 0
    s_cmp_ge_u32 s27, 10
    s_cselect_b32 s39, 2, s39          ; section
    s_mul_i32 s40, s39, 5
    s_sub_u32 s45, s27, s40            ; nt'
    s_lshl_b32 s40, s45, 7
    s_lshl_b32 s41, s36, 6
    s_add_u32 s40, s40, s41            ; nbase
    s_lshr_b32 s41, s26, 1
    s_mul_i32 s41, s41, 20480
    s_and_b32 s42, s26, 1
    s_lshl_b32 s42, s42, 1
    s_add_u32 s42, s42, s35            ; pair
    s_cmp_eq_u32 s39, 0
    s_cselect_b32 s43, {WS_Q}, {WS_KV}
    s_mov_b32 s44, 163840
    s_mul_i32 s96, s45, 6554
    s_lshr_b32 s96, s96, 10            ; h0 = 128nt'/20 ; the tile feeds 7 heads (8 for nt' = 2)
    s_lshl_b32 s97, s39, 5
    s_add_u32 s96, s96, s97
    s_add_u32 s96, s96, 136
    s_mov_b32 s97, s45
    v_mov_b32 v144, 0x40000000
    v_mov_b32 v18, 0
    s_add_u32 s3, s2, 256
    """.replace("{WS_Q}", hex(WS_Q)).replace("{WS_KV}", hex(WS_KV)))
    srd_off(p, 20, 10, 11, "s43", 32 * HEAD_STRIDE)
    flag_srd(p)
    p("s_cmp_eq_u32 s39, 2")
    p("s_cbranch_scc1 A_vpath")
    ACC = 64; FR = 32; OFF = 128
    def reads(t):
        h, k2 = divmod(t, 2); sg, ks = divmod(t, 4)
        b = FR + 16 * (t % 2)
        out = []
        for tm in range(2):
            out.append(f"ds_read_b128 v[{b+4*tm}:{b+4*tm+3}], v{10+ks} offset:{(sg % 3)*16384 + tm*4096}")
        for tn in range(2):
            for a in range(2):
                r = b + 8 + 4 * tn + 2 * a
                out.append(f"ds_read_b64_tr_b16 v[{r}:{r+1}], v14 offset:{(h % 4)*8192 + k2*4096 + tn*1024 + a*256}")
        return out
    def mfmas(t, vrole):
        b = FR + 16 * (t % 2)
        out = []
        for tm in range(2):
            for tn in range(2):
                d = ACC + 16 * (2 * tm + tn)
                x = b + 4 * tm; w = b + 8 + 4 * tn
                a_, b_ = (x, w) if vrole else (w, x)
                out.append(mfma32(d, a_, b_, "0" if t == 0 else None))
        return out
    def mainloop(vrole, lab):
        log = [need(it) for it in order[:NPRO] for _ in range(2)]
        nxt = NPRO
        def younger(h):
            last = max(i for i, e in enumerate(log) if e <= h)
            return len(log) - 1 - last
        S.stamp()
        p(f"s_waitcnt vmcnt({younger(0)})")
        p("s_barrier")
        S.stamp()
        for l in reads(0): p(l)
        started = False
        for t in range(40):
            h, k2 = divmod(t, 2)
            mf = mfmas(t, vrole)
            rd = reads(t + 1) if t < 39 else []
            extra = []
            if k2 == 1 and t < 39:
                p(f"s_waitcnt vmcnt({younger(h + 1)}) lgkmcnt(0)")
                p("s_barrier")
                if h in (3, 9): S.stamp()
                done = h
            else:
                p("s_waitcnt lgkmcnt(0)")
                done = h - 1
            cnt = 0
            while nxt < len(order) and free_after(order[nxt]) <= done and cnt < (2 if k2 == 1 else 1):
                extra += item(order[nxt]); log += [need(order[nxt])] * 2; nxt += 1; cnt += 1
            if t == 2 * int(O.get("bstart", 99)):
                extra.append(sig_lines("A_go" + lab, "s3", 1, 4))
            for l in rd[0:2]: p(l)
            fill = [rd[2:4], rd[4:6], sum(extra[:2], []), sum(extra[2:], [])]
            for i, m in enumerate(mf):
                p(m)
                for l in fill[i]: p(l)
        S.stamp()
        p("buffer_load_dword v19, v18, s[52:55], 0 offen sc1")
    srd(p, 52, 8, 9, 256)
    p("""
    v_and_b32 v7, 1, v2
    v_lshl_add_u32 v14, v7, 4, v14
    v_bfe_u32 v7, v2, 1, 1
    v_lshl_add_u32 v14, v7, 3, v14
    v_lshlrev_b32 v26, 4, v5
    v_add_u32 v26, s41, v26
    s_lshl_b32 s45, s42, 11
    s_lshl_b32 s46, s42, 9
    s_add_u32 s46, s46, 8192
    s_lshr_b32 s47, s40, 3
    v_add_u32 v27, s47, v6
    s_lshl_b32 s47, s44, 1
    """)
    MK = [40, 42, 48, 50]
    p("s_mov_b32 s56, s45"); p("s_mov_b32 s57, s46")
    for k in range(4):
        m = MK[k]
        p(f"""
        v_add_u32 v28, {2*k}, v27
        v_mul_u32_u24 v29, 13108, v28
        v_lshrrev_b32 v29, 16, v29
        v_mul_u32_u24 v30, 5, v29
        v_sub_u32 v30, v28, v30
        v_mul_lo_u32 v29, v29, s47
        v_add_u32 v29, v29, v26
        v_cmp_lt_u32 vcc, 2, v30
        v_mov_b32 v28, s44
        v_add_u32 v31, 1, v30
        v_cndmask_b32 v28, 0, v28, vcc
        v_cndmask_b32 v31, v30, v31, vcc
        v_and_b32 v31, 1, v31
        v_lshl_add_u32 v28, v31, 9, v28
        v_add3_u32 v28, v28, v29, s56
        v_cmp_eq_u32 s[{m}:{m+1}], 2, v30
        v_add_u32 v29, s57, v29
        s_nop 0
        v_cndmask_b32 v{OFF+k}, v28, v144, s[{m}:{m+1}]
        v_cndmask_b32 v{OFF+4+k}, v144, v29, s[{m}:{m+1}]
        """)
    n0 = S.n
    mainloop(False, "Aq")
    p("s_cmp_lg_u32 s39, 0")
    p("s_cbranch_scc1 A_noscale")
    p(f"s_mov_b32 s56, {hex(QSCALE)}")
    p(f"s_mov_b32 s57, {hex(QSCALE)}")
    p("s_nop 6")
    for i in range(32):
        p(f"v_pk_mul_f32 v[{ACC+2*i}:{ACC+2*i+1}], v[{ACC+2*i}:{ACC+2*i+1}], s[56:57]")
    p.label("A_noscale")
    p("s_nop 7")
    p("s_nop 1")
    for k in range(4):
        tn, half = divmod(k, 2)
        for tm in range(2):
            d = ACC + 16 * (2 * tm + tn) + 8 * half
            t0 = FR + 4 * (2 * k + tm)
            for i in range(4): p(f"v_cvt_pk_bf16_f32 v{t0+i}, v{d+2*i}, v{d+2*i+1}")
            p(f"buffer_store_dwordx4 v[{t0}:{t0+3}], v{OFF+k}, s[20:23], 0 offen offset:{1024*tm} sc1")
    for k in range(4):
        a = FR + 8 * k; b = a + 4
        t = 148 + 8 * k; m = MK[k]
        p(f"s_cmp_eq_u64 s[{m}:{m+1}], 0")
        p(f"s_cbranch_scc1 A_notail{k}")
        for i, src in enumerate((a, a + 1, b, b + 1, a + 2, a + 3, b + 2, b + 3)):
            p(f"v_mov_b32 v{t+i}, v{src}")
        p(f"buffer_store_dwordx4 v[{t}:{t+3}], v{OFF+4+k}, s[20:23], 0 offen sc1")
        p(f"buffer_store_dwordx4 v[{t+4}:{t+7}], v{OFF+4+k}, s[20:23], s44 offen sc1")
        p.label(f"A_notail{k}")
    p("s_branch A_publish")
    p.label("A_vpath")
    srd(p, 52, 8, 9, 256)
    p("""
    v_and_b32 v7, 3, v2
    v_lshl_add_u32 v14, v7, 3, v14
    s_mul_i32 s45, s42, 2560
    s_add_u32 s45, s45, s41
    s_add_u32 s45, s45, 10240
    v_mul_u32_u24 v26, 320, v6
    v_add_u32 v26, s45, v26
    v_add_u32 v27, s40, v5
    """)
    for tn in range(2):
        p(f"""
        v_add_u32 v28, {32*tn}, v27
        v_mul_u32_u24 v29, 3277, v28
        v_lshrrev_b32 v29, 16, v29
        v_mul_u32_u24 v30, 20, v29
        v_sub_u32 v30, v28, v30
        v_mul_lo_u32 v29, v29, s44
        v_lshl_add_u32 v30, v30, 4, v26
        v_add_u32 v{OFF+tn}, v29, v30
        """)
    S.n = n0
    mainloop(True, "Av")
    p("s_nop 7")
    p("s_nop 2")
    for tm in range(2):
        for tn in range(2):
            d = ACC + 16 * (2 * tm + tn)
            for half in range(2):
                t0 = FR + 4 * (4 * tm + 2 * tn + half)
                for i in range(4):
                    p(f"v_cvt_pk_bf16_f32 v{t0+i}, v{d+8*half+2*i}, v{d+8*half+2*i+1}")
                p(f"buffer_store_dwordx4 v[{t0}:{t0+3}], v{OFF+tn}, s[20:23], 0 offen offset:{(2*tm+half)*640} sc1")
    p("s_branch A_publish")
    p.label("A_gate")
    p("s_load_dwordx2 s[34:35], s[0:1], 56")
    p("s_waitcnt lgkmcnt(0)")
    srd(p, 12, 4, 5, 2048 * 640 * 2)
    srd(p, 16, 34, 35, 1280)
    srd_off(p, 20, 10, 11, hex(WS_G), 8192)
    flag_srd(p)
    srd(p, 52, 8, 9, 256)
    p("""
    v_and_b32 v5, 15, v2
    v_lshrrev_b32 v6, 4, v2
    v_lshlrev_b32 v7, 4, v5
    v_add_u32 v8, s30, v6
    v_mul_u32_u24 v9, 1280, v8
    v_add_u32 v9, v9, v7
    v_lshlrev_b32 v8, 2, v8
    """)
    GW = 20; XR = 40; NR = 8; Z = 200
    for j in range(5):
        p(f"buffer_load_dwordx4 v[{GW+4*j}:{GW+4*j+3}], v7, s[16:19], 0 offen offset:{256*j}")
    for rg in range(NR):
        p(f"s_mov_b32 s33, {rg*4*1280}")
        for j in range(5):
            r = XR + 20 * rg + 4 * j
            p(f"buffer_load_dwordx4 v[{r}:{r+3}], v9, s[12:15], s33 offen offset:{256*j}")
    for rg in range(NR): p(f"v_mov_b32 v{Z+rg}, 0")
    for rg in range(NR):
        p(f"s_waitcnt vmcnt({5*(NR-1-rg)})")
        for j in range(20):
            p(f"v_dot2_f32_bf16 v{Z+rg}, v{XR+20*rg+j}, v{GW+j}, v{Z+rg}")
    p("s_nop 3")
    for sh in (8, 4, 2, 1):
        for rg in range(NR):
            p(f"v_add_f32_dpp v{Z+rg}, v{Z+rg}, v{Z+rg} row_ror:{sh} row_mask:0xf bank_mask:0xf")
    p(f"s_mov_b32 s34, {hex(f2u(-math.log2(math.e)))}")
    for rg in range(NR): p(f"v_mul_f32 v{Z+rg}, s34, v{Z+rg}")
    for rg in range(NR): p(f"v_exp_f32 v{Z+rg}, v{Z+rg}")
    for rg in range(NR): p(f"v_add_f32 v{Z+rg}, 1.0, v{Z+rg}")
    for rg in range(NR): p(f"v_rcp_f32 v{Z+rg}, v{Z+rg}")
    p("v_cmp_eq_u32 vcc, 0, v5")
    p("s_and_saveexec_b64 s[50:51], vcc")
    for rg in range(NR):
        p(f"buffer_store_dword v{Z+rg}, v8, s[20:23], 0 offen offset:{16*rg} sc1")
    p("s_mov_b64 exec, -1")
    p("s_lshl_b32 s46, s26, 1")
    p("s_add_u32 s46, s46, 32")
    p("s_waitcnt vmcnt(0)")
    p("s_barrier")
    vpoll_init(p, "G_init")
    signal(p, "G_sig", "s46", 2)
    p("s_branch AT_start")
    p.label("A_publish")
    if O.get("f1go", "4") == "3": signal(p, "A_go3", "s3", 1, 4)
    S.stamp()
    p("s_waitcnt vmcnt(0)")
    p("v_readfirstlane_b32 s49, v19")
    p("s_barrier")
    p("s_cmp_lg_u32 s49, 0")
    p("s_cbranch_scc1 A_init_done")
    vpoll_init(p, "A_init")
    L = sig_lines("A_sig", "s96", 8)
    for l in L[:-2] + ["s_cmp_lg_u32 s97, 2", "s_cbranch_scc1 A_sig"] + L[-2:]: p(l)
    if O.get("f1go", "4") == "4": signal(p, "A_go4", "s3", 1, 4)
    S.stamp()
    p.label("AT_start")

def gen_att(p, S):
    pre = "AT"
    p("""
    s_and_b32 s24, s2, 31              ; head
    s_lshr_b32 s25, s2, 5              ; qb
    v_and_b32 v3, 31, v0               ; l32
    v_bfe_u32 v4, v0, 5, 1             ; hh
    s_mul_i32 s26, s24, 163840
    s_mul_i32 s27, s25, 20480
    s_add_u32 s27, s27, s26
    v_lshlrev_b32 v5, 4, v2
    v_lshlrev_b32 v6, 4, v3
    s_mul_i32 s29, s28, 5120
    v_add_u32 v8, s29, v5
    v_add_u32 v9, 0x1000, v8
    s_lshl_b32 s30, s28, 11
    v_add_u32 v10, s30, v5
    s_lshl_b32 s30, s28, 9
    s_add_u32 s30, s30, 8192
    v_lshl_add_u32 v11, v4, 3, v6
    v_add_u32 v11, s30, v11
    s_mov_b32 s44, 0                   ; 0 = first attempt, 1 = exact max known
    s_mov_b32 s46, 0x000fffff
    s_mov_b32 s47, 0x000fffff
    s_bitcmp1_b32 {STR}, s24      ; heads that come from two column blocks
    s_cselect_b32 s50, {T2}, {T1}
    s_lshl_b32 s50, s50, 17
    s_lshl_b32 s43, s24, 8
    s_add_u32 s51, s43, 0x6800         ; counter of the later keys (line 104 + head)
    v_mov_b32 v220, s51
    s_add_u32 s51, s2, 256
    """.replace("{STR}", "0x12481248" if O.get("split") else "0x02081040").replace("{T2}", "48" if O.get("split") else "96").replace("{T1}", "24" if O.get("split") else "48"))
    p(f"s_add_u32 s27, s27, {hex(WS_Q)}")
    srd_off(p, 16, 10, 11, "s27", CHUNK)
    srd_off(p, 12, 10, 11, "s26", HEAD_STRIDE)
    srd_off(p, 32, 10, 11, hex(WS_O), 2048 * 640 * 2)
    def dma_half(h):
        out = []
        if h == 0:
            out.append(["s_add_u32 m0, s37, s29", "s_nop 0", "buffer_load_dwordx4 v8, s[12:15], s36 offen sc1 lds"])
            so = "s36"
        else:
            out.append([f"s_add_u32 m0, m0, {20480-4096}", "s_add_u32 s45, s36, 20480", "buffer_load_dwordx4 v8, s[12:15], s45 offen sc1 lds"])
            so = "s45"
        for j in (1, 2, 3):
            out.append([f"buffer_load_dwordx4 v8, s[12:15], {so} offen offset:{1024*j} sc1 lds"])
        out.append(["s_add_u32 m0, m0, 0x1000", "s_nop 0", f"buffer_load_dwordx4 v9, s[12:15], {so} offen sc1 lds"])
        return out
    p.label(f"{pre}_pass")
    p("""
    v_lshlrev_b32 v5, 4, v2
    v_add_u32 v7, 8192, v6
    v_mul_u32_u24 v13, 320, v4
    v_add_u32 v13, v13, v6
    v_add_u32 v13, 10240, v13
    v_or_b32 v1, 4, v3
    v_cmp_eq_u32 vcc, 28, v1           ; rows 24 and 28 of V^T carry the ones (row sums)
    v_mov_b32 v1, 0x3f803f80
    s_mov_b32 s36, 0
    v_cndmask_b32 v1, 0, v1, vcc
    s_mov_b32 s37, 0
    """)
    for i in range(32): p(f"v_mov_b32 v{VV+i}, v1")
    for i in range(32): p(f"v_mov_b32 v{OO+i}, 0")
    for i in range(4): p(f"v_mov_b32 v{S0+32+28+i}, 0")
    for i in range(2): p(f"v_mov_b32 v{PP+12+i}, 0")
    p("s_cmp_eq_u32 s44, 1")
    p(f"s_cbranch_scc1 {pre}_nowait")
    if O.get("split"): poll(p, "AT_poll", 60, "s43", 0, "ge", "s50")
    else:
        p(f"""
        s_cmp_lg_u32 s28, 0
        s_cbranch_scc1 AT_poll_done
        s_add_u32 s98, s60, s43
        s_addc_u32 s99, s61, 0
        s_mov_b32 s59, 0
        AT_poll:
        s_load_dword s56, s[98:99], {136*256} glc
        s_load_dword s57, s[98:99], {168*256} glc
        s_load_dword s58, s[98:99], {200*256} glc
        s_add_u32 s59, s59, 1
        s_waitcnt lgkmcnt(0)
        s_add_u32 s58, s58, s56
        s_add_u32 s58, s58, s57
        s_cmp_ge_u32 s58, s50
        s_cbranch_scc1 AT_poll_done
        s_cmp_gt_u32 s59, 0x100000
        s_cbranch_scc1 AT_poll_done
        s_sleep 2
        s_branch AT_poll
        AT_poll_done:
        """)
    if O.get("f1go", "4") == "0": signal(p, "AT_go", "s51", 1, 4)
    p("s_barrier")
    S.stamp()
    p(f"buffer_load_dwordx4 v[{QA}:{QA+3}], v10, s[16:19], 0 offen sc1")
    p(f"buffer_load_dwordx4 v[{QB}:{QB+3}], v10, s[16:19], 0 offen offset:1024 sc1")
    p(f"buffer_load_dwordx2 v[{QT}:{QT+1}], v11, s[16:19], 0 offen sc1")
    p.label(f"{pre}_nowait")
    emit(p, dma_half(0) + dma_half(1))
    if O.get("f1go", "4") == "1": signal(p, "AT_go", "s51", 1, 4)
    p("s_waitcnt vmcnt(5)")
    p("s_barrier")
    S.stamp()
    def hb(b): return 20480 * (b // 8)
    def rd_km(b):
        r = KM + 4 * (b % 2)
        return f"ds_read_b128 v[{r}:{r+3}], v5 offset:{hb(b) + 1024*(b%8)}"
    def rd_kt(b):
        r = KT + 4 * ((b // 2) % 2)
        return f"ds_read_b128 v[{r}:{r+3}], v7 offset:{hb(b) + 512*((b%8)//2)}"
    def rd_v(b):
        out = []
        for g in range(2):
            r = VV + 8 * (b % 4) + 4 * g
            out.append(f"ds_read_b128 v[{r}:{r+3}], v13 offset:{hb(b) + 640*(2*(b%8)+g)}")
        return out
    p(rd_kt(0)); p(rd_km(0)); p(rd_km(1))
    p("s_mov_b64 exec, s[46:47]")
    for l in rd_v(0) + rd_v(1): p(l)
    p("s_mov_b64 exec, -1")
    p(f"s_mov_b32 s36, {BIG}")
    p(f"s_mov_b32 s37, {BIG}")
    p("s_cmp_eq_u32 s44, 1")
    p(f"s_cbranch_scc1 {pre}_havemax")
    p("s_waitcnt lgkmcnt(5)")
    p(mfma32(S0, KM, QA, "0")); p(mfma32(S0 + 16, KM, QB, "0"))
    p("s_nop 9")
    p(m2b(S0, KT, QT))
    p("s_nop 15"); p("s_nop 3")
    def finish_max():
        for t in range(2):
            d = NM + 16 * t
            p(f"v_mov_b32 v{d+1}, v{d}")
        p("s_nop 1")
        for t in range(2):
            d = NM + 16 * t
            p(f"v_permlane32_swap_b32 v{d}, v{d+1}")
        for t in range(2):
            d = NM + 16 * t
            p(f"v_max_f32 v{d}, v{d}, v{d+1}")
            p(f"v_sub_f32 v{d}, 0, v{d}")
        for k in range(1, 16):
            for t in range(2): p(f"v_mov_b32 v{NM+16*t+k}, v{NM+16*t}")
    for t in range(2):
        b = S0 + 16 * t; d = NM + 16 * t
        p(f"v_max3_f32 v{d}, v{b}, v{b+1}, v{b+2}")
        for k in range(3, 15, 2):
            p(f"v_max3_f32 v{d}, v{d}, v{b+k}, v{b+k+1}")
        p(f"v_max_f32 v{d}, v{d}, v{b+15}")
    finish_max()
    p.label(f"{pre}_havemax")
    p("s_waitcnt lgkmcnt(0)")
    p("s_nop 0")
    p(mfma32(S0, KM, QA, NM)); p(mfma32(S0 + 16, KM, QB, NM + 16))
    p("s_mov_b32 s38, 0")
    p(f"s_mov_b32 s39, {BIG}")
    p("s_waitcnt vmcnt(0)")
    p("s_barrier")
    p("s_nop 5")
    p(m2b(S0, KT, QT))
    p("s_nop 15"); p("s_nop 2")
    S.stamp()
    p(f"s_branch {pre}_mid")
    def iteration(j):
        i = j - 2
        cur = S0 + 32 * (i % 2); nxt = S0 + 32 * ((i + 1) % 2)
        km = KM + 4 * ((i + 1) % 2)
        kt = KT + 4 * (((i + 1) // 2) % 2) + 2 * ((i + 1) % 2)
        vb = VV + 8 * (i % 4); vprev = VV + 8 * ((i - 1) % 4)
        def E(k, lo=0, hi=4):
            for r in range(lo, hi): p(f"v_exp_f32 v{cur+4*k+r}, v{cur+4*k+r}")
        def C(k, base=cur):
            p(f"v_cvt_pk_bf16_f32 v{PP+2*k}, v{base+4*k}, v{base+4*k+1}")
            p(f"v_cvt_pk_bf16_f32 v{PP+2*k+1}, v{base+4*k+2}, v{base+4*k+3}")
        E(0); C(7, nxt)
        p("s_waitcnt lgkmcnt(0)")
        p(mfma32(nxt, km, QA, NM))
        E(1); C(0)
        p(mfma32(OO + 16, vprev + 4, PP + 12))
        E(2); C(1)
        p(mfma32(nxt + 16, km, QB, NM + 16))
        if j % 2 == 0:
            p("s_mov_b64 exec, s[46:47]")
            for l in rd_v(j) + rd_v(j + 1): p(l)
            p("s_mov_b64 exec, -1")
        E(3); C(2)
        D0 = int(O.get("d0", 7 if O.get("split") else 2))
        dl = dma_half(0) + dma_half(1)
        g = dl[2 * (j - D0)] if D0 <= j < D0 + 5 else []
        g2 = dl[2 * (j - D0) + 1] if D0 <= j < D0 + 5 else []
        if not O.get("split"):
            g = dl[j - D0] if D0 <= j < D0 + 10 else []
            g2 = []
        if j == D0 - 2 and O.get("split"): p("buffer_load_dword v221, v220, s[60:63], 0 offen sc1")
        if j == D0 and O.get("split"):
            p("s_waitcnt vmcnt(0)")
            p("v_readfirstlane_b32 s58, v221")
            p("s_cmp_lt_u32 s58, s50")
            p("s_cbranch_scc1 AT_wait2")
            p.label("AT_back2")
        for l in g[:-1]:
            if l != "s_nop 0": p(l)
        p(mfma32(OO, vb, PP))
        for l in g[-1:]: p(l)
        E(4); C(3)
        p(m2b(nxt, kt, QT))
        p(rd_km(j))
        if j % 2 == 0: p(rd_kt(j))
        E(5); C(4); E(6, 0, 2)
        for l in g2[:-1]:
            if l != "s_nop 0": p(l)
        p(mfma32(OO, vb + 4, PP + 4))
        for l in g2[-1:]: p(l)
        E(6, 2, 4); C(5); E(7, 0, 2)
        p(mfma32(OO + 16, vb, PP + 8))
        E(7, 2, 4); C(6)
    p.raw(".p2align 6")
    p.label(f"{pre}_loop")
    p("s_waitcnt vmcnt(0) lgkmcnt(0)")
    p("s_barrier")
    p("v_add_u32 v5, s39, v5")
    p("v_add_u32 v7, s39, v7")
    p("v_add_u32 v13, s39, v13")
    p("s_sub_u32 s39, 0, s39")
    p(f"s_add_u32 s36, s36, {BIG}")
    p(f"s_sub_u32 s37, {BIG}, s37")
    iteration(0); iteration(1)
    p("s_cmp_eq_u32 s38, 4")
    p(f"s_cbranch_scc1 {pre}_done")
    p.label(f"{pre}_mid")
    for j in range(2, 16): iteration(j)
    p("s_add_u32 s38, s38, 1")
    p(f"s_branch {pre}_loop")
    p.label(f"{pre}_done")
    S.stamp()
    cur = S0 + 32
    p(f"v_cvt_pk_bf16_f32 v{PP+14}, v{cur+28}, v{cur+29}")
    p(f"v_cvt_pk_bf16_f32 v{PP+15}, v{cur+30}, v{cur+31}")
    p("""
    s_lshl_b32 s30, s25, 3
    s_lshl_b32 s31, s28, 1
    """)
    p(mfma32(OO + 16, VV + 8 * 3 + 4, PP + 12))
    p(f"v_rcp_f32 v{OO+13}, v{OO+12}")
    p("""
    s_add_u32 s30, s30, s31
    s_mul_i32 s30, s30, 40960
    s_lshl_b32 s31, s24, 10
    s_add_u32 s31, s31, s30
    v_lshlrev_b32 v14, 4, v2
    v_add_u32 v14, s31, v14
    s_lshr_b32 s40, s24, 2
    s_add_u32 s40, s40, 32
    s_lshl_b32 s40, s40, 10
    s_add_u32 s40, s40, s30
    s_and_b32 s41, s24, 1
    s_lshl_b32 s41, s41, 9
    s_add_u32 s40, s40, s41
    s_and_b32 s41, s24, 2
    s_lshl_b32 s41, s41, 2
    s_add_u32 s40, s40, s41
    v_add_u32 v15, s40, v6
    s_mov_b32 s41, 40960
    """)
    p(f"s_mov_b32 s42, {hex(LTHRESH)}")
    for t in range(2):
        o = OO + 16 * t
        if t == 1: p(f"v_rcp_f32 v{o+13}, v{o+12}"); p("s_nop 0")
        for k in range(12): p(f"v_mul_f32 v{o+k}, v{o+k}, v{o+13}")
        for k in range(6): p(f"v_cvt_pk_bf16_f32 v{S0+8*t+k}, v{o+2*k}, v{o+2*k+1}")
        so = "0" if t == 0 else "s41"
        p(f"buffer_store_dwordx4 v[{S0+8*t}:{S0+8*t+3}], v14, s[32:35], {so} offen sc1")
    p("s_mov_b32 exec_hi, 0")
    for t in range(2):
        so = "0" if t == 0 else "s41"
        p(f"buffer_store_dwordx2 v[{S0+8*t+4}:{S0+8*t+5}], v15, s[32:35], {so} offen sc1")
    p("s_mov_b64 exec, -1")
    p(f"v_cmp_ngt_f32 vcc, s42, v{OO+12}")
    p(f"v_cmp_ngt_f32 s[48:49], s42, v{OO+16+12}")
    p("""
    s_or_b64 vcc, vcc, s[48:49]
    s_cmp_lg_u64 vcc, 0
    s_cselect_b32 s43, 1, 0
    s_cmp_eq_u32 s44, 1
    s_cselect_b32 s43, 0, s43
    v_mov_b32 v1, s43
    s_lshl_b32 s45, s28, 2
    v_mov_b32 v12, s45
    ds_write_b32 v12, v1
    s_lshl_b32 s30, s25, 2
    s_add_u32 s30, s30, 64
    v_mov_b32 v12, 0
    s_waitcnt vmcnt(0) lgkmcnt(0)
    s_barrier
    ds_read_b128 v[172:175], v12
    s_waitcnt lgkmcnt(0)
    v_or_b32 v172, v172, v173
    v_or3_b32 v172, v172, v174, v175
    s_nop 0
    v_readfirstlane_b32 s43, v172
    s_cmp_lg_u32 s43, 0
    """)
    p(f"s_cbranch_scc1 {pre}_fallback")
    signal(p, "AT_sig", "s30", 4)
    S.stamp(); S.rt()
    S.dump(10, 11, 28, region=0, vt=218)
    p("s_endpgm")
    if O.get("split"):
        p.label("AT_wait2")
        p("s_mov_b32 s59, 0")
        p.label("AT_wait2l")
        p("""
    s_sleep 4
    buffer_load_dword v221, v220, s[60:63], 0 offen sc1
    s_add_u32 s59, s59, 1
    s_waitcnt vmcnt(0)
    v_readfirstlane_b32 s58, v221
    s_cmp_ge_u32 s58, s50
    s_cbranch_scc1 AT_back2
    s_cmp_gt_u32 s59, 0x100000
    s_cbranch_scc1 AT_back2
    s_branch AT_wait2l
    """)
    p.label(f"{pre}_fallback")
    p("s_mov_b32 s36, 0")
    p("s_mov_b32 s37, 0")
    p("v_lshlrev_b32 v5, 4, v2")
    p("v_add_u32 v7, 8192, v6")
    p(f"v_mov_b32 v{NM}, 0xff800000")
    p(f"v_mov_b32 v{NM+16}, 0xff800000")
    p.label(f"{pre}_fb_chunk")
    p("s_barrier")
    emit(p, dma_half(0))
    p("s_waitcnt vmcnt(0)")
    p("s_barrier")
    for b in range(8):
        p(f"ds_read_b128 v[{KM}:{KM+3}], v5 offset:{1024*b}")
        p(f"ds_read_b128 v[{KT}:{KT+3}], v7 offset:{512*(b//2)}")
        p("s_waitcnt lgkmcnt(0)")
        p(mfma32(S0, KM, QA, "0")); p(mfma32(S0 + 16, KM, QB, "0"))
        p("s_nop 9")
        p(m2b(S0, KT + 2 * (b % 2), QT))
        p("s_nop 15"); p("s_nop 3")
        for t in range(2):
            bb = S0 + 16 * t; d = NM + 16 * t
            for k in range(0, 16, 2):
                p(f"v_max3_f32 v{d}, v{d}, v{bb+k}, v{bb+k+1}")
    p("s_add_u32 s36, s36, 20480")
    p("s_cmp_lt_u32 s36, 163840")
    p(f"s_cbranch_scc1 {pre}_fb_chunk")
    finish_max()
    p("s_mov_b32 s44, 1")
    p("s_barrier")
    p(f"s_branch {pre}_pass")

NST2 = 12
RS0 = 3
def sl1(st): return st % 4
def sl2(st): return st % 4
def w_list(st):
    slot = sl2(st) * 20480
    if st < NST2:
        h = ["s_mul_i32 s56, s55, 20480"]; t = ["s_add_u32 s55, s55, 1", "s_cmp_eq_u32 s55, 12", "s_cselect_b32 s55, 0, s55"]
    else:
        h = ["s_mul_i32 s56, s52, 20480", f"s_add_u32 s56, s56, {12*20480}"]; t = ["s_add_u32 s52, s52, 1", "s_cmp_eq_u32 s52, 5", "s_cselect_b32 s52, 0, s52"]
    g = [[f"s_add_u32 m0, s54, {slot}"] + h + ["buffer_load_dwordx4 v21, s[48:51], s56 offen sc1 lds"]]
    for k in (1, 2, 3):
        g.append([f"buffer_load_dwordx4 v21, s[48:51], s56 offen offset:{1024*k} sc1 lds"])
    g.append([f"s_add_u32 m0, s54, {slot + 4096}"] + t + ["buffer_load_dwordx4 v1, s[48:51], s56 offen sc1 lds"])
    return g

def gen_b(p, S):
    HP = O.get("hiprio", "3")
    p("""
    s_sub_u32 s3, s2, 256
    s_and_b32 s24, s3, 7
    s_lshr_b32 s25, s3, 3
    s_lshl_b32 s57, s2, 8
    v_mov_b32 v22, s57
    s_waitcnt lgkmcnt(0)
    """)
    flag_srd(p)
    srd(p, 20, 8, 9, 256)
    p("buffer_load_dwordx2 v[26:27], v22, s[60:63], 0 offen sc1")
    p("""
    s_cmp_lg_u32 s3, 255
    s_cbranch_scc1 B_noclear
    v_lshlrev_b32 v24, 8, v0
    v_mov_b32 v28, 0
    buffer_store_dword v28, v24, s[60:63], 0 offen sc1
    s_waitcnt vmcnt(0)
    s_barrier
    v_mov_b32 v25, 1
    v_lshlrev_b32 v24, 12, v0
    buffer_store_dword v25, v24, s[20:23], 0 offen sc1
    """)
    p.label("B_noclear")
    if not O.get("nocode"):
        p("""
        s_getpc_b64 s[12:13]
        BPC:
        s_sub_u32 s12, s12, BPC-fused_kernel
        s_subb_u32 s13, s13, 0
        s_mov_b32 s14, CODE_END-fused_kernel
        s_mov_b32 s15, 0x00020000
        s_lshl_b32 s29, s25, 11
        v_lshlrev_b32 v24, 3, v0
        v_add_u32 v24, s29, v24
        buffer_load_dwordx2 v[220:221], v24, s[12:15], 0 offen
        """)
    if O.get("split"): gen_params_b(p)
    p("""
    s_waitcnt vmcnt(0)
    v_readfirstlane_b32 s55, v26
    v_readfirstlane_b32 s51, v27
    s_cmp_ge_u32 s25, 30
    s_cbranch_scc1 B_skipq
    """)
    if O.get("split"):
        poll(p, "B_start0", 60, "s57", 0, "lg", "s55", sleep=2, limit=40)
        p("s_barrier")
        p("s_branch QKV_tile")
    p.label("B_skipq")
    vpoll_init(p, "B_init")
    p.label("B_after")
    S.n = (2 if O.get('f1st') or not O.get('split') else 9) if common.STAMP else 0
    p("s_mov_b32 s56, s51")
    p(f"s_setprio {HP}")
    p("s_load_dwordx4 s[44:47], s[0:1], 32")
    p("s_load_dwordx2 s[48:49], s[0:1], 16")
    p("s_load_dwordx2 s[50:51], s[0:1], 48")
    p("""
    v_and_b32 v3, 31, v0
    v_bfe_u32 v4, v0, 5, 1
    s_lshl_b32 s57, s2, 8
    """)
    p("""
    """)
    if O.get("split"): p("""
    s_and_b32 s29, s24, 2
    s_lshl_b32 s29, s29, 1
    s_and_b32 s27, s25, 3
    s_add_u32 s29, s29, s27
    s_and_b32 s30, s24, 1
    s_lshl_b32 s26, s30, 1
    s_add_u32 s26, s26, s29
    s_mul_i32 s30, s30, 6
    s_add_u32 s30, s30, s29
    s_add_u32 s30, s30, 2
    s_cmp_lt_u32 s29, 2
    s_cselect_b32 s26, s26, s30        ; r
    """)
    else: p("""
    s_and_b32 s26, s24, 3
    s_lshl_b32 s26, s26, 2
    s_and_b32 s27, s25, 3
    s_add_u32 s26, s26, s27            ; r
    """)
    p("""
    s_lshr_b32 s27, s24, 2
    s_lshl_b32 s27, s27, 3
    s_lshr_b32 s29, s25, 2
    s_add_u32 s27, s27, s29            ; f
    s_and_b32 s35, s28, 1
    s_lshr_b32 s36, s28, 1
    v_lshrrev_b32 v6, 2, v2
    v_and_b32 v7, 3, v2
    v_lshrrev_b32 v8, 4, v2
    v_xor_b32 v8, v8, v7
    s_lshl_b32 s29, s26, 7
    s_lshl_b32 s30, s28, 5
    s_add_u32 s29, s29, s30
    v_add_u32 v9, s29, v6
    v_mul_u32_u24 v9, 1280, v9
    v_lshl_add_u32 v5, v8, 4, v9
    s_lshl_b32 s29, s35, 4
    v_add_u32 v9, s29, v6
    v_mul_u32_u24 v9, 3072, v9
    s_lshl_b32 s29, s36, 1
    v_xor_b32 v8, s29, v7
    s_mul_i32 s29, s27, 192
    v_lshl_add_u32 v9, v8, 4, v9
    v_add_u32 v6, s29, v9
    s_lshl_b32 s31, s28, 11
    s_mul_i32 s32, s28, 3072
    s_add_u32 s32, s32, 8192
    s_waitcnt lgkmcnt(0)
    s_cmp_eq_u32 s36, 0
    s_cselect_b32 s6, s44, s46
    s_cselect_b32 s7, s45, s47
    s_and_b32 s38, s25, 3
    s_mul_i32 s38, s38, 5
    """)
    if O.get("rotf"):
        p("s_lshr_b32 s39, s25, 2"); p("s_add_u32 s38, s38, s39")
    if not O.get("norq"):
        p("s_and_b32 s39, s24, 3"); p("s_add_u32 s38, s38, s39")
    p("""
    s_cmp_ge_u32 s38, 20
    s_cselect_b32 s39, 20, 0
    s_sub_u32 s38, s38, s39
    """)
    srd(p, 12, 4, 5, 2048 * 640 * 2)
    srd(p, 16, 6, 7, 640 * 1536 * 2)
    srd_off(p, 40, 10, 11, hex(WS_H), 2048 * 1536 * 2)
    p("""
    v_bfe_u32 v8, v3, 2, 2
    v_xor_b32 v8, v8, v4
    v_lshlrev_b32 v8, 4, v8
    v_lshl_add_u32 v8, v3, 6, v8
    s_lshl_b32 s29, s35, 12
    v_add_u32 v10, s29, v8
    v_xor_b32 v11, 32, v10
    v_and_b32 v7, 3, v2
    v_lshlrev_b32 v7, 3, v7
    v_bfe_u32 v9, v2, 2, 2
    v_lshl_add_u32 v7, v9, 6, v7
    v_lshl_add_u32 v7, v4, 9, v7
    v_bfe_u32 v9, v2, 4, 1
    v_mul_u32_u24 v8, 6144, v9
    v_add_u32 v7, v7, v8
    v_lshlrev_b32 v9, 5, v9
    v_add_u32 v7, 8192, v7
    """)
    for tn in range(3):
        p(f"""
        s_mul_i32 s29, s36, 3
        s_add_u32 s29, s29, {tn}
        s_lshr_b32 s30, s29, 1
        s_lshl_b32 s30, s30, 10
        s_and_b32 s29, s29, 1
        s_lshl_b32 s29, s29, 5
        v_xor_b32 v8, s29, v9
        v_add3_u32 v{12+tn}, v7, v8, s30
        """)
    for i in range(5): p(f"v_add_u32 v{15+i}, 40960, v{10+i}")
    p("""
    s_lshl_b32 s29, s26, 2
    s_lshl_b32 s30, s35, 1
    s_add_u32 s29, s29, s30
    s_mul_i32 s29, s29, 96
    s_mul_i32 s30, s27, 6
    s_add_u32 s29, s29, s30
    s_mul_i32 s30, s36, 3
    s_add_u32 s29, s29, s30
    s_lshl_b32 s29, s29, 10
    v_lshlrev_b32 v20, 4, v2
    v_add_u32 v20, s29, v20
    s_mov_b32 s37, 98304
    """)
    p("""
    s_mul_i32 s29, s3, 3856
    s_lshr_b32 s29, s29, 16
    s_mul_i32 s30, s29, 17
    s_sub_u32 s30, s3, s30             ; stage
    s_lshl_b32 s53, s30, 7
    s_mov_b32 s54, 0
    s_mov_b32 s55, 4
    s_mov_b32 s46, 1966080
    s_cmp_ge_u32 s30, 12
    s_cbranch_scc0 B_rp_wd
    s_sub_u32 s53, s30, 12
    s_mul_i32 s53, s53, 160
    s_mov_b32 s54, 5120
    s_mov_b32 s50, s48
    s_mov_b32 s51, s49
    s_mov_b32 s46, 819200
    s_cmp_eq_u32 s30, 16
    s_cselect_b32 s53, 16, s53
    s_cselect_b32 s54, 20480, s54
    s_cselect_b32 s55, 2, s55
    """)
    p.label("B_rp_wd")
    p("""
    s_mov_b32 s44, s50
    s_mov_b32 s45, s51
    s_mov_b32 s47, 0x00020000
    s_cmp_lt_u32 s3, 136
    s_cselect_b32 s46, s46, 0
    s_mul_i32 s53, s53, 1280
    s_mul_i32 s30, s29, 160
    s_add_u32 s53, s53, s30
    s_mul_i32 s30, s28, 320
    v_add_u32 v9, s30, v2
    s_add_u32 s96, s29, 96
    s_cmp_lt_u32 s3, 136
    s_cselect_b32 s96, s96, 200
    s_lshl_b32 s97, s26, 1
    s_add_u32 s97, s97, 32
    """)
    for kk in range(5):
        p(f"""
        v_add_u32 v24, {64*kk}, v9
        v_mul_u32_u24 v25, 6554, v24
        v_lshrrev_b32 v25, 16, v25
        v_mul_u32_u24 v7, 10, v25
        v_sub_u32 v7, v24, v7
        v_mul_u32_u24 v24, 1280, v25
        v_lshl_add_u32 v24, v7, 4, v24
        v_lshrrev_b32 v25, s55, v25
        v_mul_u32_u24 v25, s54, v25
        v_add_u32 v{170+kk}, v24, v25
        """)
    p(f"""
    s_mul_i32 s54, s28, 5120
    s_add_u32 s52, s54, 40960
    v_bfe_u32 v25, v2, 2, 3
    v_mul_u32_u24 v25, 160, v25
    v_and_b32 v7, 3, v2
    v_lshl_add_u32 v25, v7, 3, v25
    v_add_u32 v25, s52, v25
    v_mov_b32 v8, 2400
    """)
    for kk in range(5):
        p(f"""
        v_add_u32 v7, {2*kk}, v4
        v_cmp_lt_u32 vcc, 4, v7
        v_lshlrev_b32 v7, 5, v7
        s_nop 0
        v_cndmask_b32 v24, 0, v8, vcc
        v_add3_u32 v{175+kk}, v25, v7, v24
        """)
    p(f"""
    s_mul_i32 s29, s3, 20480
    v_lshlrev_b32 v180, 4, v9
    v_add_u32 v180, s29, v180
    v_add_u32 v181, 0x1000, v180
    v_lshlrev_b32 v21, 4, v2
    v_add_u32 v21, s54, v21
    v_add_u32 v1, 0x1000, v21
    s_lshr_b32 s29, s25, 2
    s_mul_i32 s29, s29, {WP_CB}
    s_add_u32 s29, s29, {hex(WS_W)}
    """)
    srd_off(p, 4, 10, 11, hex(WS_W), 8 * WP_CB)
    srd_off(p, 48, 10, 11, "s29", WP_CB)
    p("s_setprio 0")
    p("s_cmp_ge_u32 s25, 30" if O.get("split") else "s_cmp_eq_u32 s27, 15")
    p("s_cbranch_scc1 B_start_done")
    if O.get("f1go", "4") != "2": poll(p, "B_start", 60, "s57", 4, "lg", "s56", sleep=2, limit=60)
    else: p.label("B_start_done")
    p("s_barrier")
    S.stamp()
    p("""
    s_lshr_b32 s29, s25, 2
    s_add_u32 s55, s25, s29
    s_and_b32 s55, s55, 3
    s_mul_i32 s55, s55, 3
    s_add_u32 s57, s29, 96
    s_lshl_b32 s57, s57, 8
    """)
    NST = 20
    def dma_list(st):
        if st == "rp":
            return [[f"s_add_u32 m0, s52, {1024*kk}", "s_nop 0", f"buffer_load_dwordx4 v{170+kk}, s[44:47], s53 offen lds"] for kk in range(5)]
        if st >= NST: return w_list(st - NST)
        slot = sl1(st) * 20480
        g = []
        for pc in range(2):
            g.append([f"s_add_u32 m0, s31, {slot + pc*1024}", ("s_lshl_b32 s33, s38, 6" if pc == 0 else "s_add_u32 s33, s33, 20480"),
                      "buffer_load_dwordx4 v5, s[12:15], s33 offen lds"])
        for j in range(3):
            off = f" offset:{64*j}" if j else ""
            mid = ["s_mul_i32 s34, s38, 98304"] if j == 0 else (["s_add_u32 s38, s38, 1"] if j == 1 else [])
            g.append([f"s_add_u32 m0, s32, {slot + j*960}"] + (mid if mid else ["s_cmp_eq_u32 s38, 20", "s_cselect_b32 s38, 0, s38"]) +
                      [f"buffer_load_dwordx4 v6, s[16:19], s34 offen{off} lds"])
        return g
    emit(p, dma_list(0) + dma_list("rp") + dma_list(1))
    FR = 32; ACC = 72; RP = 184
    def reads(t):
        st, ks = divmod(t, 2)
        slot = sl1(st)
        k = slot // 2; so = (slot % 2) * 20480
        b = FR + 20 * (t % 2)
        out = []
        for tm in range(2):
            out.append(f"ds_read_b128 v[{b+4*tm}:{b+4*tm+3}], v{10+5*k+ks} offset:{so + tm*2048}")
        for tn in range(3):
            for a in range(2):
                r = b + 8 + 4 * tn + 2 * a
                out.append(f"ds_read_b64_tr_b16 v[{r}:{r+1}], v{12+5*k+tn} offset:{so + ks*3072 + a*256}")
        return out
    def mfmas(t):
        b = FR + 20 * (t % 2)
        out = []
        for tn in range(3):
            for tm in range(2):
                d = ACC + 16 * (3 * tm + tn)
                out.append(mfma32(d, b + 8 + 4 * tn, b + 4 * tm, "0" if t == 0 else None))
        return out
    p("s_waitcnt vmcnt(5)")
    for kk in range(5):
        for a in range(2):
            p(f"ds_read_b64_tr_b16 v[{RP+4*kk+2*a}:{RP+4*kk+2*a+1}], v{175+kk} offset:{1280*a}")
    p("s_waitcnt vmcnt(0) lgkmcnt(0)")
    p("s_barrier")
    for l in reads(0): p(l)
    queue = dma_list(2) + dma_list(3) + [[f"buffer_store_dwordx4 v[{RP+4*kk}:{RP+4*kk+3}], v{180 if kk < 4 else 181}, s[4:7], 0 offen offset:{1024*(kk%4)} sc1"] for kk in range(5)]
    T = 2 * NST
    B1 = int(O.get("boost1", 0))
    for t in range(T):
        pr, k4 = divmod(t, 4)
        mf = mfmas(t)
        rd = reads(t + 1) if t < T - 1 else []
        if k4 == 3 and t < T - 1:
            assert not queue
            if pr == 8: poll(p, "B_pollw", 60, "s57", 0, "ge", 17 << 17, sleep=4)
            p("s_waitcnt vmcnt(0) lgkmcnt(0)")
            p("s_barrier")
            if pr == 0:
                p("s_cmp_ge_u32 s3, 136"); p("s_cbranch_scc1 B_sigw")
                signal(p, "B_sigw", "s96", 1)
            queue = dma_list(2 * pr + 4) + dma_list(2 * pr + 5)
            if O.get("f1st") and pr in (0, 1, 2, 4, 6, 8): S.stamp()
        else:
            p("s_waitcnt lgkmcnt(0)")
        for i, m in enumerate(mf):
            if B1 and i == 0: p("s_setprio 2")
            p(m)
            if B1 and i == B1 - 1: p("s_setprio 0")
            for l in rd[2 * i:2 * i + 2]: p(l)
            if queue and (i >= 1):
                for l in queue.pop(0): p(l)
    S.stamp()
    p(f"s_setprio {HP}")
    p(f"s_mov_b32 s44, {hex(f2u(-math.log2(math.e)))}")
    p(f"s_mov_b32 s45, {hex(f2u(-math.log2(math.e)))}")
    p("s_load_dwordx2 s[8:9], s[0:1], 64")
    p("s_nop 7")
    order = [(tm, tn) for tn in range(3) for tm in range(2)]
    for idx, (tm, tn) in enumerate(order):
        d = ACC + 16 * (3 * tm + tn)
        t = FR + 12 * (idx % 2)
        for i in range(4): p(f"v_pk_mul_f32 v[{t+2*i}:{t+2*i+1}], v[{d+2*i}:{d+2*i+1}], s[44:45]")
        for i in range(8): p(f"v_exp_f32 v{t+i}, v{t+i}")
        for i in range(4): p(f"v_pk_mul_f32 v[{d+2*i}:{d+2*i+1}], v[{d+2*i}:{d+2*i+1}], v[{d+8+2*i}:{d+9+2*i}]")
        for i in range(4): p(f"v_pk_add_f32 v[{t+2*i}:{t+2*i+1}], v[{t+2*i}:{t+2*i+1}], 1.0 op_sel_hi:[1,0]")
        for i in range(8): p(f"v_rcp_f32 v{t+i}, v{t+i}")
        p("s_nop 0")
        for i in range(4): p(f"v_pk_mul_f32 v[{d+2*i}:{d+2*i+1}], v[{d+2*i}:{d+2*i+1}], v[{t+2*i}:{t+2*i+1}]")
        for i in range(4): p(f"v_cvt_pk_bf16_f32 v{t+8+i}, v{d+2*i}, v{d+2*i+1}")
        so = "0" if tm == 0 else "s37"
        p(f"buffer_store_dwordx4 v[{t+8}:{t+11}], v20, s[40:43], {so} offen offset:{1024*tn} sc1")
    p("""
    s_lshl_b32 s26, s24, 2
    s_and_b32 s27, s25, 3
    s_add_u32 s26, s26, s27            ; mb
    s_lshr_b32 s27, s25, 2             ; cb
    s_add_u32 s57, s26, 32
    s_lshl_b32 s57, s57, 8
    s_mul_i32 s29, s27, 160
    v_lshlrev_b32 v9, 4, v2
    s_add_u32 s39, s25, s27
    s_and_b32 s39, s39, 3
    s_mul_i32 s39, s39, 3
    s_cmp_ge_u32 s27, 5
    s_cselect_b32 s52, 5, 0
    s_sub_u32 s52, s27, s52
    s_mov_b32 s53, s52
    s_lshl_b32 s30, s26, 1
    s_add_u32 s30, s30, s35
    s_mul_i32 s32, s30, 96
    s_lshl_b32 s33, s36, 2
    s_add_u32 s32, s32, s33
    s_lshl_b32 s32, s32, 10
    v_add_u32 v25, s32, v9
    v_and_b32 v3, 15, v0               ; m16
    v_lshlrev_b32 v6, 4, v3
    v_lshl_add_u32 v6, v4, 8, v6
    s_mul_i32 s32, s36, 10240
    v_add_u32 v28, s32, v6
    v_bfe_u32 v7, v2, 4, 1
    v_lshl_add_u32 v26, v7, 9, v28
    v_add_u32 v27, 40960, v26
    v_add_u32 v29, 40960, v28
    s_lshl_b32 s32, s26, 6
    s_lshl_b32 s33, s28, 4
    s_add_u32 s32, s32, s33
    v_add_u32 v24, s32, v3
    v_lshlrev_b32 v22, 2, v24
    """)
    srd_off(p, 20, 10, 11, hex(WS_G), 8192)
    p("s_setprio 0")
    p("s_waitcnt vmcnt(0)")
    p("s_barrier")
    signal(p, "B_sigh", "s97", 2)
    emit(p, w_list(2) + w_list(3))
    poll(p, "B_pollh", 60, "s57", 0, "ge", 17 << 17)
    p("s_barrier")
    S.stamp()
    XR = 32; WF = 96; ACC = 120
    def x_list(st):
        g = []
        for ks in range(4):
            r = XR + 4 * ((4 * st + ks) % 16)
            pre = {0: ["s_lshl_b32 s33, s39, 13"], 1: ["s_add_u32 s39, s39, 1"], 2: ["s_cmp_eq_u32 s39, 12", "s_cselect_b32 s39, 0, s39"]}.get(ks, [])
            g.append(pre + [f"buffer_load_dwordx4 v[{r}:{r+3}], v25, s[40:43], s33 offen offset:{1024*ks} sc1"])
        return g
    for st in range(4): emit(p, x_list(st))
    p("buffer_load_dword v23, v22, s[20:23], 0 offen sc1")
    def reads2(t):
        st, ks = divmod(t, 4)
        slot = sl2(st)
        k = slot // 2; so = (slot % 2) * 20480
        b = WF + 12 * (t % 2)
        return [f"ds_read_b128 v[{b+4*j}:{b+4*j+3}], v{(26 if j < 2 else 28) + k} offset:{so + ks*2560 + j*1024}" for j in range(3)]
    def mfmas2(t):
        b = WF + 12 * (t % 2)
        x = XR + 4 * (t % 16)
        return [mfma32(ACC + 16 * j, b + 4 * j, x, "0" if t == 0 else None) for j in range(3)]
    for l in reads2(0): p(l)
    T = 4 * NST2
    log = [("x", s) for s in range(4) for _ in range(4)] + [("g", 0)]
    def younger2(tags):
        last = max(i for i, e in enumerate(log) if e in tags)
        return len(log) - 1 - last
    queue = []
    B2_ = int(O.get("boost2", 0))
    for t in range(T):
        st, ks = divmod(t, 4)
        mf = mfmas2(t)
        rd = reads2(t + 1) if t < T - 1 else []
        if t % 8 == 7 and t < T - 1:
            assert not any(q[0][0] == "w" for q in queue)
            tags = [("w", st + 1), ("w", st + 2), ("x", 0)]
            p(f"s_waitcnt vmcnt({younger2(tags)}) lgkmcnt(0)")
            p("s_barrier")
            if st + 3 < NST2 + 2:
                queue = [(("w", s), g) for s in (st + 3, st + 4) for g in w_list(s)] + queue
        elif ks == 0:
            assert log.count(("x", st)) == 4
            p(f"s_waitcnt vmcnt({younger2([('x', st)])}) lgkmcnt(0)")
        else:
            p("s_waitcnt lgkmcnt(0)")
        if ks == 0 and st >= 1 and st + 3 < NST2:
            queue += [(("x", st + 3), g) for g in x_list(st + 3)]
        for i, m in enumerate(mf):
            if B2_ and i == 0: p("s_setprio 2")
            p(m)
            if B2_ and i == B2_ - 1: p("s_setprio 0")
            if i == 0:
                for l in rd: p(l)
            if queue:
                tag, g = queue.pop(0)
                for l in g: p(l)
                log.append(tag)
    assert not queue
    S.stamp()
    p(f"s_setprio {HP}")
    p("""
    v_bfe_u32 v4, v0, 4, 2             ; q
    s_mul_i32 s32, s28, 10240
    s_add_u32 s32, s32, 40960
    v_add_u32 v30, s32, v9
    s_lshl_b32 s33, s35, 8
    v_lshlrev_b32 v6, 4, v3
    v_lshl_add_u32 v6, v4, 9, v6
    v_add_u32 v6, s33, v6
    s_mul_i32 s32, s36, 10240
    s_add_u32 s32, s32, 40960
    v_add_u32 v31, s32, v6
    v_add_u32 v29, 20480, v31
    s_barrier
    """)
    for g in range(10):
        p(f"ds_write_b128 v30, v[{ACC+4*g}:{ACC+4*g+3}] offset:{1024*g}")
    p("""
    s_lshl_b32 s30, s26, 1
    s_add_u32 s30, s30, s36
    s_mul_i32 s32, s30, 40960
    v_add_u32 v25, s32, v6
    v_lshrrev_b32 v7, 1, v4
    v_mul_u32_u24 v7, 2560, v7
    v_and_b32 v8, 1, v4
    v_lshl_add_u32 v7, v8, 8, v7
    v_lshl_add_u32 v26, v3, 4, v7
    v_add_u32 v27, 40960, v26
    v_mul_u32_u24 v28, 1280, v24
    v_lshl_add_u32 v28, v4, 3, v28
    v_add_u32 v28, s29, v28
    v_sub_f32 v22, 1.0, v23
    """)
    srd_off(p, 12, 10, 11, hex(WS_O), 2048 * 640 * 2)
    p("s_waitcnt vmcnt(0) lgkmcnt(0)")
    srd(p, 40, 8, 9, 2048 * 640 * 2)
    p("s_barrier")
    BB = 10
    B2 = 200; XO = 32; WR = 112; A2 = 10
    A2r = [10, 14, 192, 196, 18]
    A2r = [10, 14, 192, 196, 4]
    for u in range(5):
        p(f"ds_read_b128 v[{B2+4*u}:{B2+4*u+3}], v31 offset:{2048*u}")
        p(f"ds_read_b128 v[{XO+4*u}:{XO+4*u+3}], v29 offset:{2048*u}")
    def oreads(i):
        sg, ks = divmod(i, 4)
        slot = sl2(sg)
        k = slot // 2; so = (slot % 2) * 20480
        b = WR + 20 * (i % 4)
        return [f"ds_read_b128 v[{b+4*u}:{b+4*u+3}], v{26+k} offset:{so + ks*5120 + u*512}" for u in range(5)]
    p("s_waitcnt lgkmcnt(0)")
    for i in range(4):
        for l in oreads(i): p(l)
        if i == 0:
            for u in range(5):
                a = B2 + 4 * u; b = XO + 4 * u
                p(f"v_pk_add_f32 v[{a}:{a+1}], v[{a}:{a+1}], v[{b}:{b+1}]")
                p(f"v_pk_add_f32 v[{a+2}:{a+3}], v[{a+2}:{a+3}], v[{b+2}:{b+3}]")
            for r in range(20): p(f"v_mul_f32 v{B2+r}, v{B2+r}, v22")
        if i % 2 == 1: p("s_waitcnt lgkmcnt(0)")
    p("s_barrier")
    p("s_setprio 0")
    emit(p, w_list(NST2 + 2) + w_list(NST2 + 3) + w_list(NST2 + 4))
    p("s_add_u32 s57, s57, 0x2000")
    poll(p, "B_pollo", 60, "s57", 0, "ge", 32 << 17)
    p("s_waitcnt vmcnt(0)")
    p("s_barrier")
    S.stamp()
    for i in range(20):
        if i % 4 == 0:
            p("s_lshl_b32 s33, s53, 13"); p("s_add_u32 s53, s53, 1")
        if i % 4 == 2:
            p("s_add_u32 s33, s33, 4096"); p("s_cmp_eq_u32 s53, 5"); p("s_cselect_b32 s53, 0, s53")
        p(f"buffer_load_dwordx4 v[{XO+4*i}:{XO+4*i+3}], v25, s[12:15], s33 offen offset:{2048*(i%2)} sc1")
    for i in range(20):
        b = WR + 20 * (i % 4); x = XO + 4 * i
        if i >= 1:
            n = min(5 * (min(i + 3, 19) - i), 10)
            p(f"s_waitcnt vmcnt({19-i}) lgkmcnt({n})")
        else:
            p(f"s_waitcnt vmcnt({19-i})")
        for u in range(5):
            d = A2r[u]
            c = "0" if i == 0 else f"v[{d}:{d+3}]"
            p(f"v_mfma_f32_16x16x32_bf16 v[{d}:{d+3}], v[{b+4*u}:{b+4*u+3}], v[{x}:{x+3}], {c}")
        if i + 4 < 20:
            for l in oreads(i + 4): p(l)
    p("s_nop 3")
    for u in range(5):
        d = A2r[u]; b = B2 + 4 * u
        for r in range(4): p(f"v_fmac_f32 v{b+r}, v{d+r}, v23")
        p(f"v_cvt_pk_bf16_f32 v{XO+2*u}, v{b}, v{b+1}")
        p(f"v_cvt_pk_bf16_f32 v{XO+2*u+1}, v{b+2}, v{b+3}")
        p(f"buffer_store_dwordx2 v[{XO+2*u}:{XO+2*u+1}], v28, s[40:43], 0 offen offset:{32*u}")
    S.stamp(); S.rt()
    S.dump(10, 11, 28, region=0, vt=60)
    p("s_endpgm")

def gen_fused(p):
    name = "fused_kernel"
    head(p, name)
    p("s_cmp_ge_u32 s2, 512")
    p("s_cbranch_scc1 CODE_END")
    S = Stamps(p)
    S.stamp(); S.rt()
    p("s_load_dwordx4 s[4:7], s[0:1], 0")
    p("s_load_dwordx4 s[8:11], s[0:1], 72")
    p("""
    v_lshrrev_b32 v1, 6, v0
    v_and_b32 v2, 63, v0
    s_cmp_ge_u32 s2, 256
    v_readfirstlane_b32 s28, v1
    s_cbranch_scc1 B_role
    s_setprio 1
    """)
    n0 = S.n
    if O.get("split"):
        gen_params_a(p)
        gen_qkv(p, S)
    else:
        gen_qkv1(p, S)
    gen_att(p, S)
    p.raw(".p2align 6")
    p.label("B_role")
    S.n = n0
    gen_b(p, S)
    return kd(name, NVGPR), f"; @launch kernel={name} grid=(512,1,1) block=(256,1,1) lds=81920"
```

```python
from common import *
import common
from att import S0, NM, OO, PP, QA, QB, QT, KM, KT, VV, NVGPR, LTHRESH, BIG, m2b

O = common.OPT

def emit(p, gs):
    for g in gs:
        for l in g: p(l)

def flag_srd(p):
    srd_off(p, 60, 10, 11, hex(WS_F), 0x20000)

def poll(p, lab, srdn, off_s, imm, cmp, target, sleep=2, limit=1 << 20):
    p(f"""
    s_cmp_lg_u32 s28, 0
    s_cbranch_scc1 {lab}_done
    s_add_u32 s98, s{srdn}, {off_s}
    s_addc_u32 s99, s{srdn+1}, 0
    s_mov_b32 s59, 0
    """)
    p.label(lab)
    p(f"""
    s_load_dword s58, s[98:99], {imm} glc
    s_add_u32 s59, s59, 1
    s_waitcnt lgkmcnt(0)
    s_cmp_{cmp}_u32 s58, {target}
    s_cbranch_scc1 {lab}_done
    s_cmp_gt_u32 s59, {limit}
    s_cbranch_scc1 {lab}_done
    s_sleep {sleep}
    s_branch {lab}
    """)
    p.label(f"{lab}_done")

def vpoll_init(p, lab):
    srd(p, 52, 8, 9, 256)
    p(f"""
    s_cmp_lg_u32 s28, 0
    s_cbranch_scc1 {lab}_done
    v_mov_b32 v222, 0
    s_mov_b32 s59, 0
    """)
    p.label(lab)
    p(f"""
    buffer_load_dword v223, v222, s[52:55], 0 offen sc1
    s_add_u32 s59, s59, 1
    s_waitcnt vmcnt(0)
    v_readfirstlane_b32 s58, v223
    s_cmp_lg_u32 s58, 0
    s_cbranch_scc1 {lab}_done
    s_cmp_gt_u32 s59, 0x100000
    s_cbranch_scc1 {lab}_done
    s_sleep 8
    s_branch {lab}
    """)
    p.label(f"{lab}_done")

def sig_lines(lab, line_s, n, imm=0):
    out = ["s_cmp_lg_u32 s28, 0", f"s_cbranch_scc1 {lab}", f"s_lshl_b32 s58, {line_s}, 8", "s_add_u32 s100, s60, s58", "s_addc_u32 s101, s61, 0", "s_mov_b32 s95, 0x20000"]
    out += [f"s_atomic_add s95, s[100:101], {256*k + imm}" for k in range(n)]
    out.append(f"{lab}:")
    return out
def signal(p, lab, line_s, n, imm=0):
    for l in sig_lines(lab, line_s, n, imm): p(l)

def aux_prefetch(p, lo, hi, idx_s, srdn, vtmp):
    if not O.get("aux"): return
    srd(p, srdn, lo, hi, 640 * 1536 * 2)
    p(f"""
    s_mul_i32 s58, {idx_s}, 122880
    v_lshlrev_b32 v{vtmp}, 4, v0
    v_add_u32 v{vtmp}, s58, v{vtmp}
    """)
    for i in range(30):
        p(f"s_mov_b32 s58, {4096*i}")
        p(f"buffer_load_dwordx4 v[216:219], v{vtmp}, s[{srdn}:{srdn+3}], s58 offen")

STRADDLE = 0x12481248
def mod10(p, d, t):
    p(f"""
    s_cmp_ge_u32 {d}, 10
    s_cselect_b32 {t}, 10, 0
    s_sub_u32 {d}, {d}, {t}
    """)
def gen_params_a(p):
    p("""
    s_and_b32 s24, s2, 7
    s_lshr_b32 s25, s2, 3
    s_lshr_b32 s29, s24, 1             ; x/2
    s_and_b32 s30, s24, 1              ; x%2
    s_cmp_ge_u32 s25, 30
    s_cbranch_scc1 A_gate
    s_add_u32 s48, s2, 256
    s_mov_b32 s56, 0
    s_cmp_ge_u32 s25, 20
    s_cbranch_scc1 A_kv
    s_mul_i32 s31, s29, 20
    s_add_u32 s31, s31, s25            ; i
    s_lshr_b32 s27, s31, 3
    s_and_b32 s31, s31, 7
    s_lshl_b32 s26, s30, 1
    s_add_u32 s26, s26, s31
    s_mul_i32 s32, s30, 6
    s_add_u32 s32, s32, s31
    s_add_u32 s32, s32, 2
    s_cmp_lt_u32 s31, 2
    s_cselect_b32 s26, s26, s32        ; mt
    s_lshr_b32 s32, s25, 3
    s_lshl_b32 s32, s32, 1
    s_mov_b32 s38, s31
    s_branch A_par
    A_kv:
    s_sub_u32 s32, s25, 20
    s_and_b32 s31, s32, 1
    s_lshr_b32 s32, s32, 1
    s_lshl_b32 s26, s30, 1
    s_add_u32 s26, s26, s31
    s_mul_i32 s27, s29, 5
    s_add_u32 s27, s27, s32
    s_add_u32 s27, s27, 10
    s_mul_i32 s38, s31, 5
    A_par:
    s_lshl_b32 s32, s32, 1
    s_add_u32 s38, s38, s32
    """)
def gen_params_b(p):
    p("""
    s_lshr_b32 s29, s24, 1
    s_and_b32 s30, s24, 1
    s_mul_i32 s32, s25, 43
    s_lshr_b32 s32, s32, 8             ; j/6
    s_mul_i32 s31, s32, 6
    s_sub_u32 s31, s25, s31            ; j%6
    s_mul_i32 s26, s30, 6
    s_add_u32 s26, s26, s31
    s_add_u32 s26, s26, 4
    s_mul_i32 s27, s29, 5
    s_add_u32 s27, s27, s32
    s_add_u32 s27, s27, 10
    s_lshl_b32 s38, s32, 1
    s_add_u32 s38, s38, s31
    s_mov_b32 s48, 200
    s_mov_b32 s56, 104
    """)
def gen_qkv(p, S):
    p.label("QKV_tile")
    mod10(p, "s38", "s39")
    p("""
    s_lshl_b32 s29, s26, 7
    s_lshl_b32 s30, s28, 5
    s_add_u32 s30, s30, s29
    v_lshrrev_b32 v5, 3, v2
    v_and_b32 v6, 7, v2
    v_lshrrev_b32 v7, 1, v5
    v_xor_b32 v6, v6, v7
    v_lshlrev_b32 v6, 4, v6
    v_add_u32 v5, s30, v5
    v_mul_u32_u24 v5, 1280, v5
    v_add_u32 v3, v5, v6
    v_xor_b32 v4, 64, v3
    v_add_u32 v4, 10240, v4
    s_lshl_b32 s31, s28, 12
    v_lshrrev_b32 v5, 2, v2
    s_lshl_b32 s32, s28, 4
    v_add_u32 v5, s32, v5
    v_mul_u32_u24 v5, 3840, v5
    v_and_b32 v6, 3, v2
    v_lshlrev_b32 v6, 4, v6
    s_lshl_b32 s32, s27, 7
    v_add3_u32 v8, v5, v6, s32
    s_lshl_b32 s32, s28, 11
    s_add_u32 s32, s32, 49152
    s_mov_b32 s37, s38
    s_waitcnt lgkmcnt(0)
    """)
    srd(p, 12, 4, 5, 2048 * 640 * 2)
    srd(p, 16, 6, 7, 640 * 1920 * 2)
    def item(it):
        if it[0] == "x":
            _, sg, hf = it
            base = (sg % 3) * 16384 + hf * 2048
            a = "s_lshl_b32 s33, s38, 7" if hf == 0 else "s_add_u32 s33, s33, 20480"
            b = ["s_nop 0"] if hf == 0 else ["s_add_u32 s38, s38, 1", "s_cmp_eq_u32 s38, 10", "s_cselect_b32 s38, 0, s38"]
            return [[f"s_add_u32 m0, s31, {base}", a, "buffer_load_dwordx4 v3, s[12:15], s33 offen lds"],
                    [f"s_add_u32 m0, s31, {base + 1024}"] + b + ["buffer_load_dwordx4 v4, s[12:15], s33 offen lds"]]
        _, h = it
        base = (h % 4) * 8192
        return [[f"s_add_u32 m0, s32, {base}", "s_mul_i32 s34, s37, 245760", "buffer_load_dwordx4 v8, s[16:19], s34 offen lds"],
                [f"s_add_u32 m0, s32, {base + 960}", "s_add_u32 s37, s37, 1", "s_cmp_eq_u32 s37, 10", "s_cselect_b32 s37, 0, s37",
                 "buffer_load_dwordx4 v8, s[16:19], s34 offen offset:64 lds"]]
    order = []
    for h in range(10): order += [("w", h), ("x", h, 0), ("x", h, 1)]
    def need(it): return it[1]
    def free_after(it): return it[1] - 3 if it[0] == "x" else it[1] - 4
    NPRO = int(O.get("qpro", 6))
    for it in order[:NPRO]: emit(p, item(it))
    p("""
    s_and_b32 s35, s28, 1              ; wm
    s_lshr_b32 s36, s28, 1             ; wn
    v_and_b32 v5, 31, v2               ; l32
    v_lshrrev_b32 v6, 5, v2            ; hh
    v_lshrrev_b32 v7, 1, v5
    v_and_b32 v7, 7, v7
    v_xor_b32 v7, v7, v6
    v_lshlrev_b32 v7, 4, v7
    s_lshl_b32 s40, s35, 13
    v_lshlrev_b32 v9, 7, v5
    v_add3_u32 v10, v9, v7, s40
    v_xor_b32 v11, 32, v10
    v_xor_b32 v12, 64, v10
    v_xor_b32 v13, 96, v10
    v_bfe_u32 v9, v2, 2, 2
    v_lshlrev_b32 v7, 6, v9
    v_bfe_u32 v9, v2, 4, 1
    v_lshl_add_u32 v7, v9, 5, v7
    v_lshl_add_u32 v7, v6, 9, v7
    s_lshl_b32 s40, s36, 10
    s_add_u32 s40, s40, 49152
    v_add_u32 v14, s40, v7
    s_cmp_ge_u32 s27, 10
    s_cselect_b32 s39, 1, 0
    s_cmp_ge_u32 s27, 20
    s_cselect_b32 s39, 2, s39          ; section
    s_mul_i32 s40, s39, 10
    s_sub_u32 s45, s27, s40            ; block within the section
    s_lshl_b32 s40, s45, 6
    s_lshl_b32 s41, s36, 5
    s_add_u32 s40, s40, s41            ; nbase
    s_lshr_b32 s41, s26, 1
    s_mul_i32 s41, s41, 20480
    s_and_b32 s42, s26, 1
    s_lshl_b32 s42, s42, 1
    s_add_u32 s42, s42, s35            ; pair
    s_cmp_eq_u32 s39, 0
    s_cselect_b32 s43, {WS_Q}, {WS_KV}
    s_mov_b32 s44, 163840
    ; counters of this tile: heads h0..h0+3
    s_mul_i32 s46, s45, 3277
    s_lshr_b32 s46, s46, 10
    s_add_u32 s46, s46, s56
    v_mov_b32 v144, 0x40000000
    """.replace("{WS_Q}", hex(WS_Q)).replace("{WS_KV}", hex(WS_KV)))
    srd_off(p, 20, 10, 11, "s43", 32 * HEAD_STRIDE)
    flag_srd(p)
    srd(p, 52, 8, 9, 256)
    p("v_mov_b32 v18, 0")
    p("s_cmp_eq_u32 s39, 2")
    p("s_cbranch_scc1 A_vpath")
    ACC = 64; FR = 32; OFF = 128
    def reads(t):
        sg, ks = divmod(t, 4)
        b = FR + 12 * (t % 2)
        out = []
        for tm in range(2):
            out.append(f"ds_read_b128 v[{b+4*tm}:{b+4*tm+3}], v{10+ks} offset:{(sg % 3)*16384 + tm*4096}")
        for a in range(2):
            r = b + 8 + 2 * a
            out.append(f"ds_read_b64_tr_b16 v[{r}:{r+1}], v14 offset:{(sg % 4)*8192 + ks*2048 + a*256}")
        return out
    def mfmas(t, vrole):
        b = FR + 12 * (t % 2)
        out = []
        for tm in range(2):
            x = b + 4 * tm; w = b + 8
            a_, b_ = (x, w) if vrole else (w, x)
            out.append(mfma32(ACC + 16 * tm, a_, b_, "0" if t == 0 else None))
        return out
    def mainloop(vrole):
        log = [need(it) for it in order[:NPRO] for _ in range(2)]
        nxt = NPRO
        def younger(h):
            assert log.count(h) == 6
            last = max(i for i, e in enumerate(log) if e <= h)
            return len(log) - 1 - last
        S.stamp()
        p(f"s_waitcnt vmcnt({younger(0)})")
        p("s_barrier")
        S.stamp()
        for l in reads(0): p(l)
        for t in range(40):
            sg, ks = divmod(t, 4)
            mf = mfmas(t, vrole)
            rd = reads(t + 1) if t < 39 else []
            extra = []
            if ks == 3 and t < 39:
                p(f"s_waitcnt vmcnt({younger(sg + 1)}) lgkmcnt(0)")
                p("s_barrier")
                if sg in (1, 4): S.stamp()
                done = sg
            else:
                p("s_waitcnt lgkmcnt(0)")
                done = sg - 1
            if nxt < len(order) and free_after(order[nxt]) <= done:
                extra += item(order[nxt]); log += [need(order[nxt])] * 2; nxt += 1
            if t == int(O.get("b2start", 26)):
                lab = "A_go" + ("v" if vrole else "q")
                extra.append(["s_cmp_ge_u32 s2, 256", f"s_cbranch_scc1 {lab}"] + sig_lines(lab, "s48", 1))
            for l in rd: p(l)
            p(mf[0]); p(mf[1])
            emit(p, extra)
        S.stamp()
        p("buffer_load_dword v19, v18, s[52:55], 0 offen sc1")
    p("""
    v_and_b32 v7, 1, v2
    v_lshl_add_u32 v14, v7, 4, v14
    v_bfe_u32 v7, v2, 1, 1
    v_lshl_add_u32 v14, v7, 3, v14
    v_lshlrev_b32 v26, 4, v5
    v_add_u32 v26, s41, v26
    s_lshl_b32 s56, s42, 11
    s_lshl_b32 s57, s42, 9
    s_add_u32 s57, s57, 8192
    s_lshr_b32 s47, s40, 3
    v_add_u32 v27, s47, v6
    s_lshl_b32 s47, s44, 1
    """)
    MK = [40, 42]
    for k in range(2):
        m = MK[k]
        p(f"""
        v_add_u32 v28, {2*k}, v27
        v_mul_u32_u24 v29, 13108, v28
        v_lshrrev_b32 v29, 16, v29
        v_mul_u32_u24 v30, 5, v29
        v_sub_u32 v30, v28, v30
        v_mul_lo_u32 v29, v29, s47
        v_add_u32 v29, v29, v26
        v_cmp_lt_u32 vcc, 2, v30
        v_mov_b32 v28, s44
        v_add_u32 v31, 1, v30
        v_cndmask_b32 v28, 0, v28, vcc
        v_cndmask_b32 v31, v30, v31, vcc
        v_and_b32 v31, 1, v31
        v_lshl_add_u32 v28, v31, 9, v28
        v_add3_u32 v28, v28, v29, s56
        v_cmp_eq_u32 s[{m}:{m+1}], 2, v30
        v_add_u32 v29, s57, v29
        s_nop 0
        v_cndmask_b32 v{OFF+k}, v28, v144, s[{m}:{m+1}]
        v_cndmask_b32 v{OFF+4+k}, v144, v29, s[{m}:{m+1}]
        """)
    p("s_cmp_eq_u32 s39, 0")
    p(f"s_cselect_b32 s56, {hex(QSCALE)}, 1.0")
    p("s_mov_b32 s57, s56")
    n0 = S.n
    mainloop(False)
    p("s_nop 7")
    p("s_nop 1")
    for i in range(16):
        p(f"v_pk_mul_f32 v[{ACC+2*i}:{ACC+2*i+1}], v[{ACC+2*i}:{ACC+2*i+1}], s[56:57]")
    for k in range(2):
        for tm in range(2):
            d = ACC + 16 * tm + 8 * k
            t0 = FR + 4 * (2 * k + tm)
            for i in range(4): p(f"v_cvt_pk_bf16_f32 v{t0+i}, v{d+2*i}, v{d+2*i+1}")
            p(f"buffer_store_dwordx4 v[{t0}:{t0+3}], v{OFF+k}, s[20:23], 0 offen offset:{1024*tm} sc1")
    for k in range(2):
        a = FR + 8 * k; b = a + 4
        t = 148 + 8 * k; m = MK[k]
        p(f"s_cmp_eq_u64 s[{m}:{m+1}], 0")
        p(f"s_cbranch_scc1 A_notail{k}")
        for i, src in enumerate((a, a + 1, b, b + 1, a + 2, a + 3, b + 2, b + 3)):
            p(f"v_mov_b32 v{t+i}, v{src}")
        p(f"buffer_store_dwordx4 v[{t}:{t+3}], v{OFF+4+k}, s[20:23], 0 offen sc1")
        p(f"buffer_store_dwordx4 v[{t+4}:{t+7}], v{OFF+4+k}, s[20:23], s44 offen sc1")
        p.label(f"A_notail{k}")
    p("s_branch A_publish")
    p.label("A_vpath")
    p(f"""
    v_and_b32 v7, 3, v2
    v_lshl_add_u32 v14, v7, 3, v14
    s_mul_i32 s45, s42, 2560
    s_add_u32 s45, s45, s41
    s_add_u32 s45, s45, 10240
    v_mul_u32_u24 v26, 320, v6
    v_add_u32 v26, s45, v26
    v_add_u32 v28, s40, v5
    v_mul_u32_u24 v29, 3277, v28
    v_lshrrev_b32 v29, 16, v29
    v_mul_u32_u24 v30, 20, v29
    v_sub_u32 v30, v28, v30
    v_mul_lo_u32 v29, v29, s44
    v_lshl_add_u32 v30, v30, 4, v26
    v_add_u32 v{OFF}, v29, v30
    """)
    S.n = n0
    mainloop(True)
    p("s_nop 7")
    p("s_nop 2")
    for tm in range(2):
        d = ACC + 16 * tm
        for half in range(2):
            t0 = FR + 4 * (2 * tm + half)
            for i in range(4):
                p(f"v_cvt_pk_bf16_f32 v{t0+i}, v{d+8*half+2*i}, v{d+8*half+2*i+1}")
            p(f"buffer_store_dwordx4 v[{t0}:{t0+3}], v{OFF}, s[20:23], 0 offen offset:{(2*tm+half)*640} sc1")
    p("s_branch A_publish")
    p.label("A_gate")
    p("s_load_dwordx2 s[34:35], s[0:1], 56")
    p("""
    s_lshl_b32 s31, s29, 1
    s_add_u32 s31, s31, s25
    s_sub_u32 s31, s31, 30
    s_lshl_b32 s26, s30, 1
    s_add_u32 s26, s26, s31
    s_mul_i32 s32, s30, 6
    s_add_u32 s32, s32, s31
    s_add_u32 s32, s32, 2
    s_cmp_lt_u32 s31, 2
    s_cselect_b32 s26, s26, s32        ; mt
    s_lshl_b32 s29, s26, 7
    s_lshl_b32 s30, s28, 5
    s_add_u32 s30, s30, s29
    s_waitcnt lgkmcnt(0)
    """)
    srd(p, 12, 4, 5, 2048 * 640 * 2)
    srd(p, 16, 34, 35, 1280)
    srd_off(p, 20, 10, 11, hex(WS_G), 8192)
    flag_srd(p)
    p("""
    v_and_b32 v5, 15, v2
    v_lshrrev_b32 v6, 4, v2
    v_lshlrev_b32 v7, 4, v5
    v_add_u32 v8, s30, v6
    v_mul_u32_u24 v9, 1280, v8
    v_add_u32 v9, v9, v7
    v_lshlrev_b32 v8, 2, v8
    """)
    GW = 20; XR = 40; NR = 8; Z = 200
    for j in range(5):
        p(f"buffer_load_dwordx4 v[{GW+4*j}:{GW+4*j+3}], v7, s[16:19], 0 offen offset:{256*j}")
    for rg in range(NR):
        p(f"s_mov_b32 s33, {rg*4*1280}")
        for j in range(5):
            r = XR + 20 * rg + 4 * j
            p(f"buffer_load_dwordx4 v[{r}:{r+3}], v9, s[12:15], s33 offen offset:{256*j}")
    for rg in range(NR): p(f"v_mov_b32 v{Z+rg}, 0")
    for rg in range(NR):
        p(f"s_waitcnt vmcnt({5*(NR-1-rg)})")
        for j in range(20):
            p(f"v_dot2_f32_bf16 v{Z+rg}, v{XR+20*rg+j}, v{GW+j}, v{Z+rg}")
    p("s_nop 3")
    for sh in (8, 4, 2, 1):
        for rg in range(NR):
            p(f"v_add_f32_dpp v{Z+rg}, v{Z+rg}, v{Z+rg} row_ror:{sh} row_mask:0xf bank_mask:0xf")
    p(f"s_mov_b32 s34, {hex(f2u(-math.log2(math.e)))}")
    for rg in range(NR): p(f"v_mul_f32 v{Z+rg}, s34, v{Z+rg}")
    for rg in range(NR): p(f"v_exp_f32 v{Z+rg}, v{Z+rg}")
    for rg in range(NR): p(f"v_add_f32 v{Z+rg}, 1.0, v{Z+rg}")
    for rg in range(NR): p(f"v_rcp_f32 v{Z+rg}, v{Z+rg}")
    p("v_cmp_eq_u32 vcc, 0, v5")
    p("s_and_saveexec_b64 s[56:57], vcc")
    for rg in range(NR):
        p(f"buffer_store_dword v{Z+rg}, v8, s[20:23], 0 offen offset:{16*rg} sc1")
    p("s_mov_b64 exec, -1")
    p("s_lshl_b32 s46, s26, 1")
    p("s_add_u32 s46, s46, 32")
    p("s_waitcnt vmcnt(0)")
    p("s_barrier")
    vpoll_init(p, "G_init")
    signal(p, "G_sig", "s46", 2)
    p("s_branch AT_start")
    p.label("A_publish")
    S.stamp()
    p("s_waitcnt vmcnt(0)")
    p("v_readfirstlane_b32 s49, v19")
    p("s_barrier")
    p("s_cmp_lg_u32 s49, 0")
    p("s_cbranch_scc1 A_init_done")
    vpoll_init(p, "A_init")
    signal(p, "A_sig", "s46", 4)
    S.stamp()
    p("s_cmp_ge_u32 s2, 256")
    p("s_cbranch_scc1 B_after")
    p.label("AT_start")

def gen_qkv1(p, S):
    p("""
    s_and_b32 s24, s2, 7
    s_lshr_b32 s25, s2, 3
    s_and_b32 s26, s24, 3
    s_lshl_b32 s26, s26, 2
    s_and_b32 s27, s25, 3
    s_add_u32 s26, s26, s27            ; mt
    s_lshr_b32 s27, s24, 2
    s_lshl_b32 s27, s27, 3
    s_lshr_b32 s29, s25, 2
    s_add_u32 s27, s27, s29            ; nt
    s_lshl_b32 s29, s26, 7             ; 128*mt
    s_lshl_b32 s30, s28, 5
    s_add_u32 s30, s30, s29
    s_cmp_eq_u32 s27, 15
    s_cbranch_scc1 A_gate
    v_lshrrev_b32 v5, 3, v2
    v_and_b32 v6, 7, v2
    v_lshrrev_b32 v7, 1, v5
    v_xor_b32 v6, v6, v7
    v_lshlrev_b32 v6, 4, v6
    v_add_u32 v5, s30, v5
    v_mul_u32_u24 v5, 1280, v5
    v_add_u32 v3, v5, v6
    v_xor_b32 v4, 64, v3
    v_add_u32 v4, 10240, v4
    s_lshl_b32 s31, s28, 12
    s_and_b32 s35, s28, 1              ; wm
    s_lshr_b32 s36, s28, 1             ; wn
    v_lshrrev_b32 v5, 2, v2
    s_lshl_b32 s32, s36, 4
    v_add_u32 v5, s32, v5
    v_mul_u32_u24 v5, 3840, v5
    v_and_b32 v6, 3, v2
    v_lshlrev_b32 v6, 4, v6
    s_lshl_b32 s32, s27, 8
    s_lshl_b32 s33, s35, 7
    s_add_u32 s32, s32, s33
    v_add3_u32 v8, v5, v6, s32
    s_lshl_b32 s32, s28, 11
    s_add_u32 s32, s32, 49152
    s_and_b32 s38, s25, 3
    s_mul_i32 s38, s38, 3
    s_lshr_b32 s39, s25, 2
    s_add_u32 s38, s38, s39
    s_cmp_ge_u32 s38, 10
    s_cselect_b32 s39, 10, 0
    s_sub_u32 s38, s38, s39
    s_lshl_b32 s37, s38, 1
    s_waitcnt lgkmcnt(0)
    """)
    srd(p, 12, 4, 5, 2048 * 640 * 2)
    srd(p, 16, 6, 7, 640 * 1920 * 2)
    def item(it):
        if it[0] == "x":
            _, sg, hf = it
            base = (sg % 3) * 16384 + hf * 2048
            a = "s_lshl_b32 s33, s38, 7" if hf == 0 else "s_add_u32 s33, s33, 20480"
            b = ["s_nop 0"] if hf == 0 else ["s_add_u32 s38, s38, 1", "s_cmp_eq_u32 s38, 10", "s_cselect_b32 s38, 0, s38"]
            return [[f"s_add_u32 m0, s31, {base}", a, "buffer_load_dwordx4 v3, s[12:15], s33 offen lds"],
                    [f"s_add_u32 m0, s31, {base + 1024}"] + b + ["buffer_load_dwordx4 v4, s[12:15], s33 offen lds"]]
        _, h = it
        base = (h % 4) * 8192
        return [[f"s_add_u32 m0, s32, {base}", "s_mul_i32 s34, s37, 122880", "buffer_load_dwordx4 v8, s[16:19], s34 offen lds"],
                [f"s_add_u32 m0, s32, {base + 960}", "s_add_u32 s37, s37, 1", "s_cmp_eq_u32 s37, 20", "s_cselect_b32 s37, 0, s37",
                 "buffer_load_dwordx4 v8, s[16:19], s34 offen offset:64 lds"]]
    order = []
    for h in range(20):
        if h % 2 == 0: order += [("x", h // 2, 0), ("x", h // 2, 1)]
        order.append(("w", h))
    def need(it): return 2 * it[1] if it[0] == "x" else it[1]
    def free_after(it): return 2 * (it[1] - 3) + 1 if it[0] == "x" else it[1] - 4
    NPRO = int(O.get("qpro", 7))
    for it in order[:NPRO]: emit(p, item(it))
    p("""
    v_and_b32 v5, 31, v2               ; l32
    v_lshrrev_b32 v6, 5, v2            ; hh
    v_lshrrev_b32 v7, 1, v5
    v_and_b32 v7, 7, v7
    v_xor_b32 v7, v7, v6
    v_lshlrev_b32 v7, 4, v7
    s_lshl_b32 s40, s35, 13
    v_lshlrev_b32 v9, 7, v5
    v_add3_u32 v10, v9, v7, s40
    v_xor_b32 v11, 32, v10
    v_xor_b32 v12, 64, v10
    v_xor_b32 v13, 96, v10
    v_bfe_u32 v9, v2, 2, 2
    v_lshlrev_b32 v7, 6, v9
    v_bfe_u32 v9, v2, 4, 1
    v_lshl_add_u32 v7, v9, 5, v7
    v_lshl_add_u32 v7, v6, 9, v7
    s_lshl_b32 s40, s36, 11
    s_add_u32 s40, s40, 49152
    v_add_u32 v14, s40, v7
    s_cmp_ge_u32 s27, 5
    s_cselect_b32 s39, 1, 0
    s_cmp_ge_u32 s27, 10
    s_cselect_b32 s39, 2, s39          ; section
    s_mul_i32 s40, s39, 5
    s_sub_u32 s45, s27, s40            ; nt'
    s_lshl_b32 s40, s45, 7
    s_lshl_b32 s41, s36, 6
    s_add_u32 s40, s40, s41            ; nbase
    s_lshr_b32 s41, s26, 1
    s_mul_i32 s41, s41, 20480
    s_and_b32 s42, s26, 1
    s_lshl_b32 s42, s42, 1
    s_add_u32 s42, s42, s35            ; pair
    s_cmp_eq_u32 s39, 0
    s_cselect_b32 s43, {WS_Q}, {WS_KV}
    s_mov_b32 s44, 163840
    s_mul_i32 s96, s45, 6554
    s_lshr_b32 s96, s96, 10            ; h0 = 128nt'/20 ; the tile feeds 7 heads (8 for nt' = 2)
    s_lshl_b32 s97, s39, 5
    s_add_u32 s96, s96, s97
    s_add_u32 s96, s96, 136
    s_mov_b32 s97, s45
    v_mov_b32 v144, 0x40000000
    v_mov_b32 v18, 0
    s_add_u32 s3, s2, 256
    """.replace("{WS_Q}", hex(WS_Q)).replace("{WS_KV}", hex(WS_KV)))
    srd_off(p, 20, 10, 11, "s43", 32 * HEAD_STRIDE)
    flag_srd(p)
    p("s_cmp_eq_u32 s39, 2")
    p("s_cbranch_scc1 A_vpath")
    ACC = 64; FR = 32; OFF = 128
    def reads(t):
        h, k2 = divmod(t, 2); sg, ks = divmod(t, 4)
        b = FR + 16 * (t % 2)
        out = []
        for tm in range(2):
            out.append(f"ds_read_b128 v[{b+4*tm}:{b+4*tm+3}], v{10+ks} offset:{(sg % 3)*16384 + tm*4096}")
        for tn in range(2):
            for a in range(2):
                r = b + 8 + 4 * tn + 2 * a
                out.append(f"ds_read_b64_tr_b16 v[{r}:{r+1}], v14 offset:{(h % 4)*8192 + k2*4096 + tn*1024 + a*256}")
        return out
    def mfmas(t, vrole):
        b = FR + 16 * (t % 2)
        out = []
        for tm in range(2):
            for tn in range(2):
                d = ACC + 16 * (2 * tm + tn)
                x = b + 4 * tm; w = b + 8 + 4 * tn
                a_, b_ = (x, w) if vrole else (w, x)
                out.append(mfma32(d, a_, b_, "0" if t == 0 else None))
        return out
    def mainloop(vrole, lab):
        log = [need(it) for it in order[:NPRO] for _ in range(2)]
        nxt = NPRO
        def younger(h):
            last = max(i for i, e in enumerate(log) if e <= h)
            return len(log) - 1 - last
        S.stamp()
        p(f"s_waitcnt vmcnt({younger(0)})")
        p("s_barrier")
        S.stamp()
        for l in reads(0): p(l)
        started = False
        for t in range(40):
            h, k2 = divmod(t, 2)
            mf = mfmas(t, vrole)
            rd = reads(t + 1) if t < 39 else []
            extra = []
            if k2 == 1 and t < 39:
                p(f"s_waitcnt vmcnt({younger(h + 1)}) lgkmcnt(0)")
                p("s_barrier")
                if h in (3, 9): S.stamp()
                done = h
            else:
                p("s_waitcnt lgkmcnt(0)")
                done = h - 1
            cnt = 0
            while nxt < len(order) and free_after(order[nxt]) <= done and cnt < (2 if k2 == 1 else 1):
                extra += item(order[nxt]); log += [need(order[nxt])] * 2; nxt += 1; cnt += 1
            if t == 2 * int(O.get("bstart", 99)):
                extra.append(sig_lines("A_go" + lab, "s3", 1, 4))
            for l in rd[0:2]: p(l)
            fill = [rd[2:4], rd[4:6], sum(extra[:2], []), sum(extra[2:], [])]
            for i, m in enumerate(mf):
                p(m)
                for l in fill[i]: p(l)
        S.stamp()
        p("buffer_load_dword v19, v18, s[52:55], 0 offen sc1")
    srd(p, 52, 8, 9, 256)
    p("""
    v_and_b32 v7, 1, v2
    v_lshl_add_u32 v14, v7, 4, v14
    v_bfe_u32 v7, v2, 1, 1
    v_lshl_add_u32 v14, v7, 3, v14
    v_lshlrev_b32 v26, 4, v5
    v_add_u32 v26, s41, v26
    s_lshl_b32 s45, s42, 11
    s_lshl_b32 s46, s42, 9
    s_add_u32 s46, s46, 8192
    s_lshr_b32 s47, s40, 3
    v_add_u32 v27, s47, v6
    s_lshl_b32 s47, s44, 1
    """)
    MK = [40, 42, 48, 50]
    p("s_mov_b32 s56, s45"); p("s_mov_b32 s57, s46")
    for k in range(4):
        m = MK[k]
        p(f"""
        v_add_u32 v28, {2*k}, v27
        v_mul_u32_u24 v29, 13108, v28
        v_lshrrev_b32 v29, 16, v29
        v_mul_u32_u24 v30, 5, v29
        v_sub_u32 v30, v28, v30
        v_mul_lo_u32 v29, v29, s47
        v_add_u32 v29, v29, v26
        v_cmp_lt_u32 vcc, 2, v30
        v_mov_b32 v28, s44
        v_add_u32 v31, 1, v30
        v_cndmask_b32 v28, 0, v28, vcc
        v_cndmask_b32 v31, v30, v31, vcc
        v_and_b32 v31, 1, v31
        v_lshl_add_u32 v28, v31, 9, v28
        v_add3_u32 v28, v28, v29, s56
        v_cmp_eq_u32 s[{m}:{m+1}], 2, v30
        v_add_u32 v29, s57, v29
        s_nop 0
        v_cndmask_b32 v{OFF+k}, v28, v144, s[{m}:{m+1}]
        v_cndmask_b32 v{OFF+4+k}, v144, v29, s[{m}:{m+1}]
        """)
    n0 = S.n
    mainloop(False, "Aq")
    p("s_cmp_lg_u32 s39, 0")
    p("s_cbranch_scc1 A_noscale")
    p(f"s_mov_b32 s56, {hex(QSCALE)}")
    p(f"s_mov_b32 s57, {hex(QSCALE)}")
    p("s_nop 6")
    for i in range(32):
        p(f"v_pk_mul_f32 v[{ACC+2*i}:{ACC+2*i+1}], v[{ACC+2*i}:{ACC+2*i+1}], s[56:57]")
    p.label("A_noscale")
    p("s_nop 7")
    p("s_nop 1")
    for k in range(4):
        tn, half = divmod(k, 2)
        for tm in range(2):
            d = ACC + 16 * (2 * tm + tn) + 8 * half
            t0 = FR + 4 * (2 * k + tm)
            for i in range(4): p(f"v_cvt_pk_bf16_f32 v{t0+i}, v{d+2*i}, v{d+2*i+1}")
            p(f"buffer_store_dwordx4 v[{t0}:{t0+3}], v{OFF+k}, s[20:23], 0 offen offset:{1024*tm} sc1")
    for k in range(4):
        a = FR + 8 * k; b = a + 4
        t = 148 + 8 * k; m = MK[k]
        p(f"s_cmp_eq_u64 s[{m}:{m+1}], 0")
        p(f"s_cbranch_scc1 A_notail{k}")
        for i, src in enumerate((a, a + 1, b, b + 1, a + 2, a + 3, b + 2, b + 3)):
            p(f"v_mov_b32 v{t+i}, v{src}")
        p(f"buffer_store_dwordx4 v[{t}:{t+3}], v{OFF+4+k}, s[20:23], 0 offen sc1")
        p(f"buffer_store_dwordx4 v[{t+4}:{t+7}], v{OFF+4+k}, s[20:23], s44 offen sc1")
        p.label(f"A_notail{k}")
    p("s_branch A_publish")
    p.label("A_vpath")
    srd(p, 52, 8, 9, 256)
    p("""
    v_and_b32 v7, 3, v2
    v_lshl_add_u32 v14, v7, 3, v14
    s_mul_i32 s45, s42, 2560
    s_add_u32 s45, s45, s41
    s_add_u32 s45, s45, 10240
    v_mul_u32_u24 v26, 320, v6
    v_add_u32 v26, s45, v26
    v_add_u32 v27, s40, v5
    """)
    for tn in range(2):
        p(f"""
        v_add_u32 v28, {32*tn}, v27
        v_mul_u32_u24 v29, 3277, v28
        v_lshrrev_b32 v29, 16, v29
        v_mul_u32_u24 v30, 20, v29
        v_sub_u32 v30, v28, v30
        v_mul_lo_u32 v29, v29, s44
        v_lshl_add_u32 v30, v30, 4, v26
        v_add_u32 v{OFF+tn}, v29, v30
        """)
    S.n = n0
    mainloop(True, "Av")
    p("s_nop 7")
    p("s_nop 2")
    for tm in range(2):
        for tn in range(2):
            d = ACC + 16 * (2 * tm + tn)
            for half in range(2):
                t0 = FR + 4 * (4 * tm + 2 * tn + half)
                for i in range(4):
                    p(f"v_cvt_pk_bf16_f32 v{t0+i}, v{d+8*half+2*i}, v{d+8*half+2*i+1}")
                p(f"buffer_store_dwordx4 v[{t0}:{t0+3}], v{OFF+tn}, s[20:23], 0 offen offset:{(2*tm+half)*640} sc1")
    p("s_branch A_publish")
    p.label("A_gate")
    p("s_load_dwordx2 s[34:35], s[0:1], 56")
    p("s_waitcnt lgkmcnt(0)")
    srd(p, 12, 4, 5, 2048 * 640 * 2)
    srd(p, 16, 34, 35, 1280)
    srd_off(p, 20, 10, 11, hex(WS_G), 8192)
    flag_srd(p)
    srd(p, 52, 8, 9, 256)
    p("""
    v_and_b32 v5, 15, v2
    v_lshrrev_b32 v6, 4, v2
    v_lshlrev_b32 v7, 4, v5
    v_add_u32 v8, s30, v6
    v_mul_u32_u24 v9, 1280, v8
    v_add_u32 v9, v9, v7
    v_lshlrev_b32 v8, 2, v8
    """)
    GW = 20; XR = 40; NR = 8; Z = 200
    for j in range(5):
        p(f"buffer_load_dwordx4 v[{GW+4*j}:{GW+4*j+3}], v7, s[16:19], 0 offen offset:{256*j}")
    for rg in range(NR):
        p(f"s_mov_b32 s33, {rg*4*1280}")
        for j in range(5):
            r = XR + 20 * rg + 4 * j
            p(f"buffer_load_dwordx4 v[{r}:{r+3}], v9, s[12:15], s33 offen offset:{256*j}")
    for rg in range(NR): p(f"v_mov_b32 v{Z+rg}, 0")
    for rg in range(NR):
        p(f"s_waitcnt vmcnt({5*(NR-1-rg)})")
        for j in range(20):
            p(f"v_dot2_f32_bf16 v{Z+rg}, v{XR+20*rg+j}, v{GW+j}, v{Z+rg}")
    p("s_nop 3")
    for sh in (8, 4, 2, 1):
        for rg in range(NR):
            p(f"v_add_f32_dpp v{Z+rg}, v{Z+rg}, v{Z+rg} row_ror:{sh} row_mask:0xf bank_mask:0xf")
    p(f"s_mov_b32 s34, {hex(f2u(-math.log2(math.e)))}")
    for rg in range(NR): p(f"v_mul_f32 v{Z+rg}, s34, v{Z+rg}")
    for rg in range(NR): p(f"v_exp_f32 v{Z+rg}, v{Z+rg}")
    for rg in range(NR): p(f"v_add_f32 v{Z+rg}, 1.0, v{Z+rg}")
    for rg in range(NR): p(f"v_rcp_f32 v{Z+rg}, v{Z+rg}")
    p("v_cmp_eq_u32 vcc, 0, v5")
    p("s_and_saveexec_b64 s[50:51], vcc")
    for rg in range(NR):
        p(f"buffer_store_dword v{Z+rg}, v8, s[20:23], 0 offen offset:{16*rg} sc1")
    p("s_mov_b64 exec, -1")
    p("s_lshl_b32 s46, s26, 1")
    p("s_add_u32 s46, s46, 32")
    p("s_waitcnt vmcnt(0)")
    p("s_barrier")
    vpoll_init(p, "G_init")
    signal(p, "G_sig", "s46", 2)
    p("s_branch AT_start")
    p.label("A_publish")
    if O.get("f1go", "4") == "3": signal(p, "A_go3", "s3", 1, 4)
    S.stamp()
    p("s_waitcnt vmcnt(0)")
    p("v_readfirstlane_b32 s49, v19")
    p("s_barrier")
    p("s_cmp_lg_u32 s49, 0")
    p("s_cbranch_scc1 A_init_done")
    vpoll_init(p, "A_init")
    L = sig_lines("A_sig", "s96", 8)
    for l in L[:-2] + ["s_cmp_lg_u32 s97, 2", "s_cbranch_scc1 A_sig"] + L[-2:]: p(l)
    if O.get("f1go", "4") == "4": signal(p, "A_go4", "s3", 1, 4)
    S.stamp()
    p.label("AT_start")

def gen_att(p, S):
    pre = "AT"
    p("""
    s_and_b32 s24, s2, 31              ; head
    s_lshr_b32 s25, s2, 5              ; qb
    v_and_b32 v3, 31, v0               ; l32
    v_bfe_u32 v4, v0, 5, 1             ; hh
    s_mul_i32 s26, s24, 163840
    s_mul_i32 s27, s25, 20480
    s_add_u32 s27, s27, s26
    v_lshlrev_b32 v5, 4, v2
    v_lshlrev_b32 v6, 4, v3
    s_mul_i32 s29, s28, 5120
    v_add_u32 v8, s29, v5
    v_add_u32 v9, 0x1000, v8
    s_lshl_b32 s30, s28, 11
    v_add_u32 v10, s30, v5
    s_lshl_b32 s30, s28, 9
    s_add_u32 s30, s30, 8192
    v_lshl_add_u32 v11, v4, 3, v6
    v_add_u32 v11, s30, v11
    s_mov_b32 s44, 0                   ; 0 = first attempt, 1 = exact max known
    s_mov_b32 s46, 0x000fffff
    s_mov_b32 s47, 0x000fffff
    s_bitcmp1_b32 {STR}, s24      ; heads that come from two column blocks
    s_cselect_b32 s50, {T2}, {T1}
    s_lshl_b32 s50, s50, 17
    s_lshl_b32 s43, s24, 8
    s_add_u32 s51, s43, 0x6800         ; counter of the later keys (line 104 + head)
    v_mov_b32 v220, s51
    s_add_u32 s51, s2, 256
    """.replace("{STR}", "0x12481248" if O.get("split") else "0x02081040").replace("{T2}", "48" if O.get("split") else "96").replace("{T1}", "24" if O.get("split") else "48"))
    p(f"s_add_u32 s27, s27, {hex(WS_Q)}")
    srd_off(p, 16, 10, 11, "s27", CHUNK)
    srd_off(p, 12, 10, 11, "s26", HEAD_STRIDE)
    srd_off(p, 32, 10, 11, hex(WS_O), 2048 * 640 * 2)
    def dma_half(h):
        out = []
        if h == 0:
            out.append(["s_add_u32 m0, s37, s29", "s_nop 0", "buffer_load_dwordx4 v8, s[12:15], s36 offen sc1 lds"])
            so = "s36"
        else:
            out.append([f"s_add_u32 m0, m0, {20480-4096}", "s_add_u32 s45, s36, 20480", "buffer_load_dwordx4 v8, s[12:15], s45 offen sc1 lds"])
            so = "s45"
        for j in (1, 2, 3):
            out.append([f"buffer_load_dwordx4 v8, s[12:15], {so} offen offset:{1024*j} sc1 lds"])
        out.append(["s_add_u32 m0, m0, 0x1000", "s_nop 0", f"buffer_load_dwordx4 v9, s[12:15], {so} offen sc1 lds"])
        return out
    p.label(f"{pre}_pass")
    p("""
    v_lshlrev_b32 v5, 4, v2
    v_add_u32 v7, 8192, v6
    v_mul_u32_u24 v13, 320, v4
    v_add_u32 v13, v13, v6
    v_add_u32 v13, 10240, v13
    v_or_b32 v1, 4, v3
    v_cmp_eq_u32 vcc, 28, v1           ; rows 24 and 28 of V^T carry the ones (row sums)
    v_mov_b32 v1, 0x3f803f80
    s_mov_b32 s36, 0
    v_cndmask_b32 v1, 0, v1, vcc
    s_mov_b32 s37, 0
    """)
    for i in range(32): p(f"v_mov_b32 v{VV+i}, v1")
    for i in range(32): p(f"v_mov_b32 v{OO+i}, 0")
    for i in range(4): p(f"v_mov_b32 v{S0+32+28+i}, 0")
    for i in range(2): p(f"v_mov_b32 v{PP+12+i}, 0")
    p("s_cmp_eq_u32 s44, 1")
    p(f"s_cbranch_scc1 {pre}_nowait")
    if O.get("split"): poll(p, "AT_poll", 60, "s43", 0, "ge", "s50")
    else:
        p(f"""
        s_cmp_lg_u32 s28, 0
        s_cbranch_scc1 AT_poll_done
        s_add_u32 s98, s60, s43
        s_addc_u32 s99, s61, 0
        s_mov_b32 s59, 0
        AT_poll:
        s_load_dword s56, s[98:99], {136*256} glc
        s_load_dword s57, s[98:99], {168*256} glc
        s_load_dword s58, s[98:99], {200*256} glc
        s_add_u32 s59, s59, 1
        s_waitcnt lgkmcnt(0)
        s_add_u32 s58, s58, s56
        s_add_u32 s58, s58, s57
        s_cmp_ge_u32 s58, s50
        s_cbranch_scc1 AT_poll_done
        s_cmp_gt_u32 s59, 0x100000
        s_cbranch_scc1 AT_poll_done
        s_sleep 2
        s_branch AT_poll
        AT_poll_done:
        """)
    if O.get("f1go", "4") == "0": signal(p, "AT_go", "s51", 1, 4)
    p("s_barrier")
    S.stamp()
    p(f"buffer_load_dwordx4 v[{QA}:{QA+3}], v10, s[16:19], 0 offen sc1")
    p(f"buffer_load_dwordx4 v[{QB}:{QB+3}], v10, s[16:19], 0 offen offset:1024 sc1")
    p(f"buffer_load_dwordx2 v[{QT}:{QT+1}], v11, s[16:19], 0 offen sc1")
    p.label(f"{pre}_nowait")
    emit(p, dma_half(0) + dma_half(1))
    if O.get("f1go", "4") == "1": signal(p, "AT_go", "s51", 1, 4)
    p("s_waitcnt vmcnt(5)")
    p("s_barrier")
    S.stamp()
    def hb(b): return 20480 * (b // 8)
    def rd_km(b):
        r = KM + 4 * (b % 2)
        return f"ds_read_b128 v[{r}:{r+3}], v5 offset:{hb(b) + 1024*(b%8)}"
    def rd_kt(b):
        r = KT + 4 * ((b // 2) % 2)
        return f"ds_read_b128 v[{r}:{r+3}], v7 offset:{hb(b) + 512*((b%8)//2)}"
    def rd_v(b):
        out = []
        for g in range(2):
            r = VV + 8 * (b % 4) + 4 * g
            out.append(f"ds_read_b128 v[{r}:{r+3}], v13 offset:{hb(b) + 640*(2*(b%8)+g)}")
        return out
    p(rd_kt(0)); p(rd_km(0)); p(rd_km(1))
    p("s_mov_b64 exec, s[46:47]")
    for l in rd_v(0) + rd_v(1): p(l)
    p("s_mov_b64 exec, -1")
    p(f"s_mov_b32 s36, {BIG}")
    p(f"s_mov_b32 s37, {BIG}")
    p("s_cmp_eq_u32 s44, 1")
    p(f"s_cbranch_scc1 {pre}_havemax")
    p("s_waitcnt lgkmcnt(5)")
    p(mfma32(S0, KM, QA, "0")); p(mfma32(S0 + 16, KM, QB, "0"))
    p("s_nop 9")
    p(m2b(S0, KT, QT))
    p("s_nop 15"); p("s_nop 3")
    def finish_max():
        for t in range(2):
            d = NM + 16 * t
            p(f"v_mov_b32 v{d+1}, v{d}")
        p("s_nop 1")
        for t in range(2):
            d = NM + 16 * t
            p(f"v_permlane32_swap_b32 v{d}, v{d+1}")
        for t in range(2):
            d = NM + 16 * t
            p(f"v_max_f32 v{d}, v{d}, v{d+1}")
            p(f"v_sub_f32 v{d}, 0, v{d}")
        for k in range(1, 16):
            for t in range(2): p(f"v_mov_b32 v{NM+16*t+k}, v{NM+16*t}")
    for t in range(2):
        b = S0 + 16 * t; d = NM + 16 * t
        p(f"v_max3_f32 v{d}, v{b}, v{b+1}, v{b+2}")
        for k in range(3, 15, 2):
            p(f"v_max3_f32 v{d}, v{d}, v{b+k}, v{b+k+1}")
        p(f"v_max_f32 v{d}, v{d}, v{b+15}")
    finish_max()
    p.label(f"{pre}_havemax")
    p("s_waitcnt lgkmcnt(0)")
    p("s_nop 0")
    p(mfma32(S0, KM, QA, NM)); p(mfma32(S0 + 16, KM, QB, NM + 16))
    p("s_mov_b32 s38, 0")
    p(f"s_mov_b32 s39, {BIG}")
    p("s_waitcnt vmcnt(0)")
    p("s_barrier")
    p("s_nop 5")
    p(m2b(S0, KT, QT))
    p("s_nop 15"); p("s_nop 2")
    S.stamp()
    p(f"s_branch {pre}_mid")
    def iteration(j):
        i = j - 2
        cur = S0 + 32 * (i % 2); nxt = S0 + 32 * ((i + 1) % 2)
        km = KM + 4 * ((i + 1) % 2)
        kt = KT + 4 * (((i + 1) // 2) % 2) + 2 * ((i + 1) % 2)
        vb = VV + 8 * (i % 4); vprev = VV + 8 * ((i - 1) % 4)
        def E(k, lo=0, hi=4):
            for r in range(lo, hi): p(f"v_exp_f32 v{cur+4*k+r}, v{cur+4*k+r}")
        def C(k, base=cur):
            p(f"v_cvt_pk_bf16_f32 v{PP+2*k}, v{base+4*k}, v{base+4*k+1}")
            p(f"v_cvt_pk_bf16_f32 v{PP+2*k+1}, v{base+4*k+2}, v{base+4*k+3}")
        E(0); C(7, nxt)
        p("s_waitcnt lgkmcnt(0)")
        p(mfma32(nxt, km, QA, NM))
        E(1); C(0)
        p(mfma32(OO + 16, vprev + 4, PP + 12))
        E(2); C(1)
        p(mfma32(nxt + 16, km, QB, NM + 16))
        if j % 2 == 0:
            p("s_mov_b64 exec, s[46:47]")
            for l in rd_v(j) + rd_v(j + 1): p(l)
            p("s_mov_b64 exec, -1")
        E(3); C(2)
        D0 = int(O.get("d0", 7 if O.get("split") else 2))
        dl = dma_half(0) + dma_half(1)
        g = dl[2 * (j - D0)] if D0 <= j < D0 + 5 else []
        g2 = dl[2 * (j - D0) + 1] if D0 <= j < D0 + 5 else []
        if not O.get("split"):
            g = dl[j - D0] if D0 <= j < D0 + 10 else []
            g2 = []
        if j == D0 - 2 and O.get("split"): p("buffer_load_dword v221, v220, s[60:63], 0 offen sc1")
        if j == D0 and O.get("split"):
            p("s_waitcnt vmcnt(0)")
            p("v_readfirstlane_b32 s58, v221")
            p("s_cmp_lt_u32 s58, s50")
            p("s_cbranch_scc1 AT_wait2")
            p.label("AT_back2")
        for l in g[:-1]:
            if l != "s_nop 0": p(l)
        p(mfma32(OO, vb, PP))
        for l in g[-1:]: p(l)
        E(4); C(3)
        p(m2b(nxt, kt, QT))
        p(rd_km(j))
        if j % 2 == 0: p(rd_kt(j))
        E(5); C(4); E(6, 0, 2)
        for l in g2[:-1]:
            if l != "s_nop 0": p(l)
        p(mfma32(OO, vb + 4, PP + 4))
        for l in g2[-1:]: p(l)
        E(6, 2, 4); C(5); E(7, 0, 2)
        p(mfma32(OO + 16, vb, PP + 8))
        E(7, 2, 4); C(6)
    p.raw(".p2align 6")
    p.label(f"{pre}_loop")
    p("s_waitcnt vmcnt(0) lgkmcnt(0)")
    p("s_barrier")
    p("v_add_u32 v5, s39, v5")
    p("v_add_u32 v7, s39, v7")
    p("v_add_u32 v13, s39, v13")
    p("s_sub_u32 s39, 0, s39")
    p(f"s_add_u32 s36, s36, {BIG}")
    p(f"s_sub_u32 s37, {BIG}, s37")
    iteration(0); iteration(1)
    p("s_cmp_eq_u32 s38, 4")
    p(f"s_cbranch_scc1 {pre}_done")
    p.label(f"{pre}_mid")
    for j in range(2, 16): iteration(j)
    p("s_add_u32 s38, s38, 1")
    p(f"s_branch {pre}_loop")
    p.label(f"{pre}_done")
    S.stamp()
    cur = S0 + 32
    p(f"v_cvt_pk_bf16_f32 v{PP+14}, v{cur+28}, v{cur+29}")
    p(f"v_cvt_pk_bf16_f32 v{PP+15}, v{cur+30}, v{cur+31}")
    p("""
    s_lshl_b32 s30, s25, 3
    s_lshl_b32 s31, s28, 1
    """)
    p(mfma32(OO + 16, VV + 8 * 3 + 4, PP + 12))
    p(f"v_rcp_f32 v{OO+13}, v{OO+12}")
    p("""
    s_add_u32 s30, s30, s31
    s_mul_i32 s30, s30, 40960
    s_lshl_b32 s31, s24, 10
    s_add_u32 s31, s31, s30
    v_lshlrev_b32 v14, 4, v2
    v_add_u32 v14, s31, v14
    s_lshr_b32 s40, s24, 2
    s_add_u32 s40, s40, 32
    s_lshl_b32 s40, s40, 10
    s_add_u32 s40, s40, s30
    s_and_b32 s41, s24, 1
    s_lshl_b32 s41, s41, 9
    s_add_u32 s40, s40, s41
    s_and_b32 s41, s24, 2
    s_lshl_b32 s41, s41, 2
    s_add_u32 s40, s40, s41
    v_add_u32 v15, s40, v6
    s_mov_b32 s41, 40960
    """)
    p(f"s_mov_b32 s42, {hex(LTHRESH)}")
    for t in range(2):
        o = OO + 16 * t
        if t == 1: p(f"v_rcp_f32 v{o+13}, v{o+12}"); p("s_nop 0")
        for k in range(12): p(f"v_mul_f32 v{o+k}, v{o+k}, v{o+13}")
        for k in range(6): p(f"v_cvt_pk_bf16_f32 v{S0+8*t+k}, v{o+2*k}, v{o+2*k+1}")
        so = "0" if t == 0 else "s41"
        p(f"buffer_store_dwordx4 v[{S0+8*t}:{S0+8*t+3}], v14, s[32:35], {so} offen sc1")
    p("s_mov_b32 exec_hi, 0")
    for t in range(2):
        so = "0" if t == 0 else "s41"
        p(f"buffer_store_dwordx2 v[{S0+8*t+4}:{S0+8*t+5}], v15, s[32:35], {so} offen sc1")
    p("s_mov_b64 exec, -1")
    p(f"v_cmp_ngt_f32 vcc, s42, v{OO+12}")
    p(f"v_cmp_ngt_f32 s[48:49], s42, v{OO+16+12}")
    p("""
    s_or_b64 vcc, vcc, s[48:49]
    s_cmp_lg_u64 vcc, 0
    s_cselect_b32 s43, 1, 0
    s_cmp_eq_u32 s44, 1
    s_cselect_b32 s43, 0, s43
    v_mov_b32 v1, s43
    s_lshl_b32 s45, s28, 2
    v_mov_b32 v12, s45
    ds_write_b32 v12, v1
    s_lshl_b32 s30, s25, 2
    s_add_u32 s30, s30, 64
    v_mov_b32 v12, 0
    s_waitcnt vmcnt(0) lgkmcnt(0)
    s_barrier
    ds_read_b128 v[172:175], v12
    s_waitcnt lgkmcnt(0)
    v_or_b32 v172, v172, v173
    v_or3_b32 v172, v172, v174, v175
    s_nop 0
    v_readfirstlane_b32 s43, v172
    s_cmp_lg_u32 s43, 0
    """)
    p(f"s_cbranch_scc1 {pre}_fallback")
    signal(p, "AT_sig", "s30", 4)
    S.stamp(); S.rt()
    S.dump(10, 11, 28, region=0, vt=218)
    p("s_endpgm")
    if O.get("split"):
        p.label("AT_wait2")
        p("s_mov_b32 s59, 0")
        p.label("AT_wait2l")
        p("""
    s_sleep 4
    buffer_load_dword v221, v220, s[60:63], 0 offen sc1
    s_add_u32 s59, s59, 1
    s_waitcnt vmcnt(0)
    v_readfirstlane_b32 s58, v221
    s_cmp_ge_u32 s58, s50
    s_cbranch_scc1 AT_back2
    s_cmp_gt_u32 s59, 0x100000
    s_cbranch_scc1 AT_back2
    s_branch AT_wait2l
    """)
    p.label(f"{pre}_fallback")
    p("s_mov_b32 s36, 0")
    p("s_mov_b32 s37, 0")
    p("v_lshlrev_b32 v5, 4, v2")
    p("v_add_u32 v7, 8192, v6")
    p(f"v_mov_b32 v{NM}, 0xff800000")
    p(f"v_mov_b32 v{NM+16}, 0xff800000")
    p.label(f"{pre}_fb_chunk")
    p("s_barrier")
    emit(p, dma_half(0))
    p("s_waitcnt vmcnt(0)")
    p("s_barrier")
    for b in range(8):
        p(f"ds_read_b128 v[{KM}:{KM+3}], v5 offset:{1024*b}")
        p(f"ds_read_b128 v[{KT}:{KT+3}], v7 offset:{512*(b//2)}")
        p("s_waitcnt lgkmcnt(0)")
        p(mfma32(S0, KM, QA, "0")); p(mfma32(S0 + 16, KM, QB, "0"))
        p("s_nop 9")
        p(m2b(S0, KT + 2 * (b % 2), QT))
        p("s_nop 15"); p("s_nop 3")
        for t in range(2):
            bb = S0 + 16 * t; d = NM + 16 * t
            for k in range(0, 16, 2):
                p(f"v_max3_f32 v{d}, v{d}, v{bb+k}, v{bb+k+1}")
    p("s_add_u32 s36, s36, 20480")
    p("s_cmp_lt_u32 s36, 163840")
    p(f"s_cbranch_scc1 {pre}_fb_chunk")
    finish_max()
    p("s_mov_b32 s44, 1")
    p("s_barrier")
    p(f"s_branch {pre}_pass")

NST2 = 12
RS0 = 3
def sl1(st): return st % 4
def sl2(st): return st % 4
def w_list(st):
    slot = sl2(st) * 20480
    if st < NST2:
        h = ["s_mul_i32 s56, s55, 20480"]; t = ["s_add_u32 s55, s55, 1", "s_cmp_eq_u32 s55, 12", "s_cselect_b32 s55, 0, s55"]
    else:
        h = ["s_mul_i32 s56, s52, 20480", f"s_add_u32 s56, s56, {12*20480}"]; t = ["s_add_u32 s52, s52, 1", "s_cmp_eq_u32 s52, 5", "s_cselect_b32 s52, 0, s52"]
    g = [[f"s_add_u32 m0, s54, {slot}"] + h + ["buffer_load_dwordx4 v21, s[48:51], s56 offen sc1 lds"]]
    for k in (1, 2, 3):
        g.append([f"buffer_load_dwordx4 v21, s[48:51], s56 offen offset:{1024*k} sc1 lds"])
    g.append([f"s_add_u32 m0, s54, {slot + 4096}"] + t + ["buffer_load_dwordx4 v1, s[48:51], s56 offen sc1 lds"])
    return g

def gen_b(p, S):
    HP = O.get("hiprio", "3")
    p("""
    s_sub_u32 s3, s2, 256
    s_and_b32 s24, s3, 7
    s_lshr_b32 s25, s3, 3
    s_lshl_b32 s57, s2, 8
    v_mov_b32 v22, s57
    s_waitcnt lgkmcnt(0)
    """)
    flag_srd(p)
    srd(p, 20, 8, 9, 256)
    p("buffer_load_dwordx2 v[26:27], v22, s[60:63], 0 offen sc1")
    p("""
    s_cmp_lg_u32 s3, 255
    s_cbranch_scc1 B_noclear
    v_lshlrev_b32 v24, 8, v0
    v_mov_b32 v28, 0
    buffer_store_dword v28, v24, s[60:63], 0 offen sc1
    s_waitcnt vmcnt(0)
    s_barrier
    v_mov_b32 v25, 1
    v_lshlrev_b32 v24, 12, v0
    buffer_store_dword v25, v24, s[20:23], 0 offen sc1
    """)
    p.label("B_noclear")
    if not O.get("nocode"):
        p("""
        s_getpc_b64 s[12:13]
        BPC:
        s_sub_u32 s12, s12, BPC-fused_kernel
        s_subb_u32 s13, s13, 0
        s_mov_b32 s14, CODE_END-fused_kernel
        s_mov_b32 s15, 0x00020000
        s_lshl_b32 s29, s25, 11
        v_lshlrev_b32 v24, 3, v0
        v_add_u32 v24, s29, v24
        buffer_load_dwordx2 v[220:221], v24, s[12:15], 0 offen
        """)
    if O.get("split"): gen_params_b(p)
    p("""
    s_waitcnt vmcnt(0)
    v_readfirstlane_b32 s55, v26
    v_readfirstlane_b32 s51, v27
    s_cmp_ge_u32 s25, 30
    s_cbranch_scc1 B_skipq
    """)
    if O.get("split"):
        poll(p, "B_start0", 60, "s57", 0, "lg", "s55", sleep=2, limit=40)
        p("s_barrier")
        p("s_branch QKV_tile")
    p.label("B_skipq")
    vpoll_init(p, "B_init")
    p.label("B_after")
    S.n = (2 if O.get('f1st') or not O.get('split') else 9) if common.STAMP else 0
    p("s_mov_b32 s56, s51")
    p(f"s_setprio {HP}")
    p("s_load_dwordx4 s[44:47], s[0:1], 32")
    p("s_load_dwordx2 s[48:49], s[0:1], 16")
    p("s_load_dwordx2 s[50:51], s[0:1], 48")
    p("""
    v_and_b32 v3, 31, v0
    v_bfe_u32 v4, v0, 5, 1
    s_lshl_b32 s57, s2, 8
    """)
    p("""
    """)
    if O.get("split"): p("""
    s_and_b32 s29, s24, 2
    s_lshl_b32 s29, s29, 1
    s_and_b32 s27, s25, 3
    s_add_u32 s29, s29, s27
    s_and_b32 s30, s24, 1
    s_lshl_b32 s26, s30, 1
    s_add_u32 s26, s26, s29
    s_mul_i32 s30, s30, 6
    s_add_u32 s30, s30, s29
    s_add_u32 s30, s30, 2
    s_cmp_lt_u32 s29, 2
    s_cselect_b32 s26, s26, s30        ; r
    """)
    else: p("""
    s_and_b32 s26, s24, 3
    s_lshl_b32 s26, s26, 2
    s_and_b32 s27, s25, 3
    s_add_u32 s26, s26, s27            ; r
    """)
    p("""
    s_lshr_b32 s27, s24, 2
    s_lshl_b32 s27, s27, 3
    s_lshr_b32 s29, s25, 2
    s_add_u32 s27, s27, s29            ; f
    s_and_b32 s35, s28, 1
    s_lshr_b32 s36, s28, 1
    v_lshrrev_b32 v6, 2, v2
    v_and_b32 v7, 3, v2
    v_lshrrev_b32 v8, 4, v2
    v_xor_b32 v8, v8, v7
    s_lshl_b32 s29, s26, 7
    s_lshl_b32 s30, s28, 5
    s_add_u32 s29, s29, s30
    v_add_u32 v9, s29, v6
    v_mul_u32_u24 v9, 1280, v9
    v_lshl_add_u32 v5, v8, 4, v9
    s_lshl_b32 s29, s35, 4
    v_add_u32 v9, s29, v6
    v_mul_u32_u24 v9, 3072, v9
    s_lshl_b32 s29, s36, 1
    v_xor_b32 v8, s29, v7
    s_mul_i32 s29, s27, 192
    v_lshl_add_u32 v9, v8, 4, v9
    v_add_u32 v6, s29, v9
    s_lshl_b32 s31, s28, 11
    s_mul_i32 s32, s28, 3072
    s_add_u32 s32, s32, 8192
    s_waitcnt lgkmcnt(0)
    s_cmp_eq_u32 s36, 0
    s_cselect_b32 s6, s44, s46
    s_cselect_b32 s7, s45, s47
    s_and_b32 s38, s25, 3
    s_mul_i32 s38, s38, 5
    """)
    if O.get("rotf"):
        p("s_lshr_b32 s39, s25, 2"); p("s_add_u32 s38, s38, s39")
    if not O.get("norq"):
        p("s_and_b32 s39, s24, 3"); p("s_add_u32 s38, s38, s39")
    p("""
    s_cmp_ge_u32 s38, 20
    s_cselect_b32 s39, 20, 0
    s_sub_u32 s38, s38, s39
    """)
    srd(p, 12, 4, 5, 2048 * 640 * 2)
    srd(p, 16, 6, 7, 640 * 1536 * 2)
    srd_off(p, 40, 10, 11, hex(WS_H), 2048 * 1536 * 2)
    p("""
    v_bfe_u32 v8, v3, 2, 2
    v_xor_b32 v8, v8, v4
    v_lshlrev_b32 v8, 4, v8
    v_lshl_add_u32 v8, v3, 6, v8
    s_lshl_b32 s29, s35, 12
    v_add_u32 v10, s29, v8
    v_xor_b32 v11, 32, v10
    v_and_b32 v7, 3, v2
    v_lshlrev_b32 v7, 3, v7
    v_bfe_u32 v9, v2, 2, 2
    v_lshl_add_u32 v7, v9, 6, v7
    v_lshl_add_u32 v7, v4, 9, v7
    v_bfe_u32 v9, v2, 4, 1
    v_mul_u32_u24 v8, 6144, v9
    v_add_u32 v7, v7, v8
    v_lshlrev_b32 v9, 5, v9
    v_add_u32 v7, 8192, v7
    """)
    for tn in range(3):
        p(f"""
        s_mul_i32 s29, s36, 3
        s_add_u32 s29, s29, {tn}
        s_lshr_b32 s30, s29, 1
        s_lshl_b32 s30, s30, 10
        s_and_b32 s29, s29, 1
        s_lshl_b32 s29, s29, 5
        v_xor_b32 v8, s29, v9
        v_add3_u32 v{12+tn}, v7, v8, s30
        """)
    for i in range(5): p(f"v_add_u32 v{15+i}, 40960, v{10+i}")
    p("""
    s_lshl_b32 s29, s26, 2
    s_lshl_b32 s30, s35, 1
    s_add_u32 s29, s29, s30
    s_mul_i32 s29, s29, 96
    s_mul_i32 s30, s27, 6
    s_add_u32 s29, s29, s30
    s_mul_i32 s30, s36, 3
    s_add_u32 s29, s29, s30
    s_lshl_b32 s29, s29, 10
    v_lshlrev_b32 v20, 4, v2
    v_add_u32 v20, s29, v20
    s_mov_b32 s37, 98304
    """)
    p("""
    s_mul_i32 s29, s3, 3856
    s_lshr_b32 s29, s29, 16
    s_mul_i32 s30, s29, 17
    s_sub_u32 s30, s3, s30             ; stage
    s_lshl_b32 s53, s30, 7
    s_mov_b32 s54, 0
    s_mov_b32 s55, 4
    s_mov_b32 s46, 1966080
    s_cmp_ge_u32 s30, 12
    s_cbranch_scc0 B_rp_wd
    s_sub_u32 s53, s30, 12
    s_mul_i32 s53, s53, 160
    s_mov_b32 s54, 5120
    s_mov_b32 s50, s48
    s_mov_b32 s51, s49
    s_mov_b32 s46, 819200
    s_cmp_eq_u32 s30, 16
    s_cselect_b32 s53, 16, s53
    s_cselect_b32 s54, 20480, s54
    s_cselect_b32 s55, 2, s55
    """)
    p.label("B_rp_wd")
    p("""
    s_mov_b32 s44, s50
    s_mov_b32 s45, s51
    s_mov_b32 s47, 0x00020000
    s_cmp_lt_u32 s3, 136
    s_cselect_b32 s46, s46, 0
    s_mul_i32 s53, s53, 1280
    s_mul_i32 s30, s29, 160
    s_add_u32 s53, s53, s30
    s_mul_i32 s30, s28, 320
    v_add_u32 v9, s30, v2
    s_add_u32 s96, s29, 96
    s_cmp_lt_u32 s3, 136
    s_cselect_b32 s96, s96, 200
    s_lshl_b32 s97, s26, 1
    s_add_u32 s97, s97, 32
    """)
    for kk in range(5):
        p(f"""
        v_add_u32 v24, {64*kk}, v9
        v_mul_u32_u24 v25, 6554, v24
        v_lshrrev_b32 v25, 16, v25
        v_mul_u32_u24 v7, 10, v25
        v_sub_u32 v7, v24, v7
        v_mul_u32_u24 v24, 1280, v25
        v_lshl_add_u32 v24, v7, 4, v24
        v_lshrrev_b32 v25, s55, v25
        v_mul_u32_u24 v25, s54, v25
        v_add_u32 v{170+kk}, v24, v25
        """)
    p(f"""
    s_mul_i32 s54, s28, 5120
    s_add_u32 s52, s54, 40960
    v_bfe_u32 v25, v2, 2, 3
    v_mul_u32_u24 v25, 160, v25
    v_and_b32 v7, 3, v2
    v_lshl_add_u32 v25, v7, 3, v25
    v_add_u32 v25, s52, v25
    v_mov_b32 v8, 2400
    """)
    for kk in range(5):
        p(f"""
        v_add_u32 v7, {2*kk}, v4
        v_cmp_lt_u32 vcc, 4, v7
        v_lshlrev_b32 v7, 5, v7
        s_nop 0
        v_cndmask_b32 v24, 0, v8, vcc
        v_add3_u32 v{175+kk}, v25, v7, v24
        """)
    p(f"""
    s_mul_i32 s29, s3, 20480
    v_lshlrev_b32 v180, 4, v9
    v_add_u32 v180, s29, v180
    v_add_u32 v181, 0x1000, v180
    v_lshlrev_b32 v21, 4, v2
    v_add_u32 v21, s54, v21
    v_add_u32 v1, 0x1000, v21
    s_lshr_b32 s29, s25, 2
    s_mul_i32 s29, s29, {WP_CB}
    s_add_u32 s29, s29, {hex(WS_W)}
    """)
    srd_off(p, 4, 10, 11, hex(WS_W), 8 * WP_CB)
    srd_off(p, 48, 10, 11, "s29", WP_CB)
    p("s_setprio 0")
    p("s_cmp_ge_u32 s25, 30" if O.get("split") else "s_cmp_eq_u32 s27, 15")
    p("s_cbranch_scc1 B_start_done")
    if O.get("f1go", "4") != "2": poll(p, "B_start", 60, "s57", 4, "lg", "s56", sleep=2, limit=60)
    else: p.label("B_start_done")
    p("s_barrier")
    S.stamp()
    p("""
    s_lshr_b32 s29, s25, 2
    s_add_u32 s55, s25, s29
    s_and_b32 s55, s55, 3
    s_mul_i32 s55, s55, 3
    s_add_u32 s57, s29, 96
    s_lshl_b32 s57, s57, 8
    """)
    NST = 20
    def dma_list(st):
        if st == "rp":
            return [[f"s_add_u32 m0, s52, {1024*kk}", "s_nop 0", f"buffer_load_dwordx4 v{170+kk}, s[44:47], s53 offen lds"] for kk in range(5)]
        if st >= NST: return w_list(st - NST)
        slot = sl1(st) * 20480
        g = []
        for pc in range(2):
            g.append([f"s_add_u32 m0, s31, {slot + pc*1024}", ("s_lshl_b32 s33, s38, 6" if pc == 0 else "s_add_u32 s33, s33, 20480"),
                      "buffer_load_dwordx4 v5, s[12:15], s33 offen lds"])
        for j in range(3):
            off = f" offset:{64*j}" if j else ""
            mid = ["s_mul_i32 s34, s38, 98304"] if j == 0 else (["s_add_u32 s38, s38, 1"] if j == 1 else [])
            g.append([f"s_add_u32 m0, s32, {slot + j*960}"] + (mid if mid else ["s_cmp_eq_u32 s38, 20", "s_cselect_b32 s38, 0, s38"]) +
                      [f"buffer_load_dwordx4 v6, s[16:19], s34 offen{off} lds"])
        return g
    emit(p, dma_list(0) + dma_list("rp") + dma_list(1))
    FR = 32; ACC = 72; RP = 184
    def reads(t):
        st, ks = divmod(t, 2)
        slot = sl1(st)
        k = slot // 2; so = (slot % 2) * 20480
        b = FR + 20 * (t % 2)
        out = []
        for tm in range(2):
            out.append(f"ds_read_b128 v[{b+4*tm}:{b+4*tm+3}], v{10+5*k+ks} offset:{so + tm*2048}")
        for tn in range(3):
            for a in range(2):
                r = b + 8 + 4 * tn + 2 * a
                out.append(f"ds_read_b64_tr_b16 v[{r}:{r+1}], v{12+5*k+tn} offset:{so + ks*3072 + a*256}")
        return out
    def mfmas(t):
        b = FR + 20 * (t % 2)
        out = []
        for tn in range(3):
            for tm in range(2):
                d = ACC + 16 * (3 * tm + tn)
                out.append(mfma32(d, b + 8 + 4 * tn, b + 4 * tm, "0" if t == 0 else None))
        return out
    p("s_waitcnt vmcnt(5)")
    for kk in range(5):
        for a in range(2):
            p(f"ds_read_b64_tr_b16 v[{RP+4*kk+2*a}:{RP+4*kk+2*a+1}], v{175+kk} offset:{1280*a}")
    p("s_waitcnt vmcnt(0) lgkmcnt(0)")
    p("s_barrier")
    for l in reads(0): p(l)
    queue = dma_list(2) + dma_list(3) + [[f"buffer_store_dwordx4 v[{RP+4*kk}:{RP+4*kk+3}], v{180 if kk < 4 else 181}, s[4:7], 0 offen offset:{1024*(kk%4)} sc1"] for kk in range(5)]
    T = 2 * NST
    B1 = int(O.get("boost1", 0))
    for t in range(T):
        pr, k4 = divmod(t, 4)
        mf = mfmas(t)
        rd = reads(t + 1) if t < T - 1 else []
        if k4 == 3 and t < T - 1:
            assert not queue
            if pr == 8: poll(p, "B_pollw", 60, "s57", 0, "ge", 17 << 17, sleep=4)
            p("s_waitcnt vmcnt(0) lgkmcnt(0)")
            p("s_barrier")
            if pr == 0:
                p("s_cmp_ge_u32 s3, 136"); p("s_cbranch_scc1 B_sigw")
                signal(p, "B_sigw", "s96", 1)
            queue = dma_list(2 * pr + 4) + dma_list(2 * pr + 5)
            if O.get("f1st") and pr in (0, 1, 2, 4, 6, 8): S.stamp()
        else:
            p("s_waitcnt lgkmcnt(0)")
        for i, m in enumerate(mf):
            if B1 and i == 0: p("s_setprio 2")
            p(m)
            if B1 and i == B1 - 1: p("s_setprio 0")
            for l in rd[2 * i:2 * i + 2]: p(l)
            if queue and (i >= 1):
                for l in queue.pop(0): p(l)
    S.stamp()
    p(f"s_setprio {HP}")
    p(f"s_mov_b32 s44, {hex(f2u(-math.log2(math.e)))}")
    p(f"s_mov_b32 s45, {hex(f2u(-math.log2(math.e)))}")
    p("s_load_dwordx2 s[8:9], s[0:1], 64")
    p("s_nop 7")
    order = [(tm, tn) for tn in range(3) for tm in range(2)]
    for idx, (tm, tn) in enumerate(order):
        d = ACC + 16 * (3 * tm + tn)
        t = FR + 12 * (idx % 2)
        for i in range(4): p(f"v_pk_mul_f32 v[{t+2*i}:{t+2*i+1}], v[{d+2*i}:{d+2*i+1}], s[44:45]")
        for i in range(8): p(f"v_exp_f32 v{t+i}, v{t+i}")
        for i in range(4): p(f"v_pk_mul_f32 v[{d+2*i}:{d+2*i+1}], v[{d+2*i}:{d+2*i+1}], v[{d+8+2*i}:{d+9+2*i}]")
        for i in range(4): p(f"v_pk_add_f32 v[{t+2*i}:{t+2*i+1}], v[{t+2*i}:{t+2*i+1}], 1.0 op_sel_hi:[1,0]")
        for i in range(8): p(f"v_rcp_f32 v{t+i}, v{t+i}")
        p("s_nop 0")
        for i in range(4): p(f"v_pk_mul_f32 v[{d+2*i}:{d+2*i+1}], v[{d+2*i}:{d+2*i+1}], v[{t+2*i}:{t+2*i+1}]")
        for i in range(4): p(f"v_cvt_pk_bf16_f32 v{t+8+i}, v{d+2*i}, v{d+2*i+1}")
        so = "0" if tm == 0 else "s37"
        p(f"buffer_store_dwordx4 v[{t+8}:{t+11}], v20, s[40:43], {so} offen offset:{1024*tn} sc1")
    p("""
    s_lshl_b32 s26, s24, 2
    s_and_b32 s27, s25, 3
    s_add_u32 s26, s26, s27            ; mb
    s_lshr_b32 s27, s25, 2             ; cb
    s_add_u32 s57, s26, 32
    s_lshl_b32 s57, s57, 8
    s_mul_i32 s29, s27, 160
    v_lshlrev_b32 v9, 4, v2
    s_add_u32 s39, s25, s27
    s_and_b32 s39, s39, 3
    s_mul_i32 s39, s39, 3
    s_cmp_ge_u32 s27, 5
    s_cselect_b32 s52, 5, 0
    s_sub_u32 s52, s27, s52
    s_mov_b32 s53, s52
    s_lshl_b32 s30, s26, 1
    s_add_u32 s30, s30, s35
    s_mul_i32 s32, s30, 96
    s_lshl_b32 s33, s36, 2
    s_add_u32 s32, s32, s33
    s_lshl_b32 s32, s32, 10
    v_add_u32 v25, s32, v9
    v_and_b32 v3, 15, v0               ; m16
    v_lshlrev_b32 v6, 4, v3
    v_lshl_add_u32 v6, v4, 8, v6
    s_mul_i32 s32, s36, 10240
    v_add_u32 v28, s32, v6
    v_bfe_u32 v7, v2, 4, 1
    v_lshl_add_u32 v26, v7, 9, v28
    v_add_u32 v27, 40960, v26
    v_add_u32 v29, 40960, v28
    s_lshl_b32 s32, s26, 6
    s_lshl_b32 s33, s28, 4
    s_add_u32 s32, s32, s33
    v_add_u32 v24, s32, v3
    v_lshlrev_b32 v22, 2, v24
    """)
    srd_off(p, 20, 10, 11, hex(WS_G), 8192)
    p("s_setprio 0")
    p("s_waitcnt vmcnt(0)")
    p("s_barrier")
    signal(p, "B_sigh", "s97", 2)
    emit(p, w_list(2) + w_list(3))
    poll(p, "B_pollh", 60, "s57", 0, "ge", 17 << 17)
    p("s_barrier")
    S.stamp()
    XR = 32; WF = 96; ACC = 120
    def x_list(st):
        g = []
        for ks in range(4):
            r = XR + 4 * ((4 * st + ks) % 16)
            pre = {0: ["s_lshl_b32 s33, s39, 13"], 1: ["s_add_u32 s39, s39, 1"], 2: ["s_cmp_eq_u32 s39, 12", "s_cselect_b32 s39, 0, s39"]}.get(ks, [])
            g.append(pre + [f"buffer_load_dwordx4 v[{r}:{r+3}], v25, s[40:43], s33 offen offset:{1024*ks} sc1"])
        return g
    for st in range(4): emit(p, x_list(st))
    p("buffer_load_dword v23, v22, s[20:23], 0 offen sc1")
    def reads2(t):
        st, ks = divmod(t, 4)
        slot = sl2(st)
        k = slot // 2; so = (slot % 2) * 20480
        b = WF + 12 * (t % 2)
        return [f"ds_read_b128 v[{b+4*j}:{b+4*j+3}], v{(26 if j < 2 else 28) + k} offset:{so + ks*2560 + j*1024}" for j in range(3)]
    def mfmas2(t):
        b = WF + 12 * (t % 2)
        x = XR + 4 * (t % 16)
        return [mfma32(ACC + 16 * j, b + 4 * j, x, "0" if t == 0 else None) for j in range(3)]
    for l in reads2(0): p(l)
    T = 4 * NST2
    log = [("x", s) for s in range(4) for _ in range(4)] + [("g", 0)]
    def younger2(tags):
        last = max(i for i, e in enumerate(log) if e in tags)
        return len(log) - 1 - last
    queue = []
    B2_ = int(O.get("boost2", 0))
    for t in range(T):
        st, ks = divmod(t, 4)
        mf = mfmas2(t)
        rd = reads2(t + 1) if t < T - 1 else []
        if t % 8 == 7 and t < T - 1:
            assert not any(q[0][0] == "w" for q in queue)
            tags = [("w", st + 1), ("w", st + 2), ("x", 0)]
            p(f"s_waitcnt vmcnt({younger2(tags)}) lgkmcnt(0)")
            p("s_barrier")
            if st + 3 < NST2 + 2:
                queue = [(("w", s), g) for s in (st + 3, st + 4) for g in w_list(s)] + queue
        elif ks == 0:
            assert log.count(("x", st)) == 4
            p(f"s_waitcnt vmcnt({younger2([('x', st)])}) lgkmcnt(0)")
        else:
            p("s_waitcnt lgkmcnt(0)")
        if ks == 0 and st >= 1 and st + 3 < NST2:
            queue += [(("x", st + 3), g) for g in x_list(st + 3)]
        for i, m in enumerate(mf):
            if B2_ and i == 0: p("s_setprio 2")
            p(m)
            if B2_ and i == B2_ - 1: p("s_setprio 0")
            if i == 0:
                for l in rd: p(l)
            if queue:
                tag, g = queue.pop(0)
                for l in g: p(l)
                log.append(tag)
    assert not queue
    S.stamp()
    p(f"s_setprio {HP}")
    p("""
    v_bfe_u32 v4, v0, 4, 2             ; q
    s_mul_i32 s32, s28, 10240
    s_add_u32 s32, s32, 40960
    v_add_u32 v30, s32, v9
    s_lshl_b32 s33, s35, 8
    v_lshlrev_b32 v6, 4, v3
    v_lshl_add_u32 v6, v4, 9, v6
    v_add_u32 v6, s33, v6
    s_mul_i32 s32, s36, 10240
    s_add_u32 s32, s32, 40960
    v_add_u32 v31, s32, v6
    v_add_u32 v29, 20480, v31
    s_barrier
    """)
    for g in range(10):
        p(f"ds_write_b128 v30, v[{ACC+4*g}:{ACC+4*g+3}] offset:{1024*g}")
    p("""
    s_lshl_b32 s30, s26, 1
    s_add_u32 s30, s30, s36
    s_mul_i32 s32, s30, 40960
    v_add_u32 v25, s32, v6
    v_lshrrev_b32 v7, 1, v4
    v_mul_u32_u24 v7, 2560, v7
    v_and_b32 v8, 1, v4
    v_lshl_add_u32 v7, v8, 8, v7
    v_lshl_add_u32 v26, v3, 4, v7
    v_add_u32 v27, 40960, v26
    v_mul_u32_u24 v28, 1280, v24
    v_lshl_add_u32 v28, v4, 3, v28
    v_add_u32 v28, s29, v28
    v_sub_f32 v22, 1.0, v23
    """)
    srd_off(p, 12, 10, 11, hex(WS_O), 2048 * 640 * 2)
    p("s_waitcnt vmcnt(0) lgkmcnt(0)")
    srd(p, 40, 8, 9, 2048 * 640 * 2)
    p("s_barrier")
    BB = 10
    B2 = 200; XO = 32; WR = 112; A2 = 10
    A2r = [10, 14, 192, 196, 18]
    A2r = [10, 14, 192, 196, 4]
    for u in range(5):
        p(f"ds_read_b128 v[{B2+4*u}:{B2+4*u+3}], v31 offset:{2048*u}")
        p(f"ds_read_b128 v[{XO+4*u}:{XO+4*u+3}], v29 offset:{2048*u}")
    def oreads(i):
        sg, ks = divmod(i, 4)
        slot = sl2(sg)
        k = slot // 2; so = (slot % 2) * 20480
        b = WR + 20 * (i % 4)
        return [f"ds_read_b128 v[{b+4*u}:{b+4*u+3}], v{26+k} offset:{so + ks*5120 + u*512}" for u in range(5)]
    p("s_waitcnt lgkmcnt(0)")
    for i in range(4):
        for l in oreads(i): p(l)
        if i == 0:
            for u in range(5):
                a = B2 + 4 * u; b = XO + 4 * u
                p(f"v_pk_add_f32 v[{a}:{a+1}], v[{a}:{a+1}], v[{b}:{b+1}]")
                p(f"v_pk_add_f32 v[{a+2}:{a+3}], v[{a+2}:{a+3}], v[{b+2}:{b+3}]")
            for r in range(20): p(f"v_mul_f32 v{B2+r}, v{B2+r}, v22")
        if i % 2 == 1: p("s_waitcnt lgkmcnt(0)")
    p("s_barrier")
    p("s_setprio 0")
    emit(p, w_list(NST2 + 2) + w_list(NST2 + 3) + w_list(NST2 + 4))
    p("s_add_u32 s57, s57, 0x2000")
    poll(p, "B_pollo", 60, "s57", 0, "ge", 32 << 17)
    p("s_waitcnt vmcnt(0)")
    p("s_barrier")
    S.stamp()
    for i in range(20):
        if i % 4 == 0:
            p("s_lshl_b32 s33, s53, 13"); p("s_add_u32 s53, s53, 1")
        if i % 4 == 2:
            p("s_add_u32 s33, s33, 4096"); p("s_cmp_eq_u32 s53, 5"); p("s_cselect_b32 s53, 0, s53")
        p(f"buffer_load_dwordx4 v[{XO+4*i}:{XO+4*i+3}], v25, s[12:15], s33 offen offset:{2048*(i%2)} sc1")
    for i in range(20):
        b = WR + 20 * (i % 4); x = XO + 4 * i
        if i >= 1:
            n = min(5 * (min(i + 3, 19) - i), 10)
            p(f"s_waitcnt vmcnt({19-i}) lgkmcnt({n})")
        else:
            p(f"s_waitcnt vmcnt({19-i})")
        for u in range(5):
            d = A2r[u]
            c = "0" if i == 0 else f"v[{d}:{d+3}]"
            p(f"v_mfma_f32_16x16x32_bf16 v[{d}:{d+3}], v[{b+4*u}:{b+4*u+3}], v[{x}:{x+3}], {c}")
        if i + 4 < 20:
            for l in oreads(i + 4): p(l)
    p("s_nop 3")
    for u in range(5):
        d = A2r[u]; b = B2 + 4 * u
        for r in range(4): p(f"v_fmac_f32 v{b+r}, v{d+r}, v23")
        p(f"v_cvt_pk_bf16_f32 v{XO+2*u}, v{b}, v{b+1}")
        p(f"v_cvt_pk_bf16_f32 v{XO+2*u+1}, v{b+2}, v{b+3}")
        p(f"buffer_store_dwordx2 v[{XO+2*u}:{XO+2*u+1}], v28, s[40:43], 0 offen offset:{32*u}")
    if O.get("span"):
        p("""
        s_waitcnt vmcnt(0)
        s_memrealtime s[66:67]
        s_load_dwordx2 s[68:69], s[0:1], 72
        s_waitcnt lgkmcnt(0)
        s_mov_b32 s72, s68
        s_mov_b32 s73, s69
        s_mov_b32 s74, 256
        s_mov_b32 s75, 0x00020000
        s_not_b32 s64, s64
        v_mov_b32 v60, s64
        v_mov_b32 v61, s66
        v_mov_b32 v62, 0
        s_mov_b64 exec, 1
        buffer_atomic_umax v60, v62, s[72:75], 0 offen offset:4 sc1
        buffer_atomic_umax v61, v62, s[72:75], 0 offen offset:8 sc1
        """)
    S.stamp(); S.rt()
    S.dump(10, 11, 28, region=0, vt=60)
    p("s_endpgm")

def gen_fused(p):
    name = "fused_kernel"
    head(p, name)
    p("s_cmp_ge_u32 s2, 512")
    p("s_cbranch_scc1 CODE_END")
    S = Stamps(p)
    S.stamp(); S.rt()
    if O.get("span"): p("s_memrealtime s[64:65]")
    p("s_load_dwordx4 s[4:7], s[0:1], 0")
    p("s_load_dwordx4 s[8:11], s[0:1], 72")
    p("""
    v_lshrrev_b32 v1, 6, v0
    v_and_b32 v2, 63, v0
    s_cmp_ge_u32 s2, 256
    v_readfirstlane_b32 s28, v1
    s_cbranch_scc1 B_role
    s_setprio 1
    """)
    n0 = S.n
    if O.get("split"):
        gen_params_a(p)
        gen_qkv(p, S)
    else:
        gen_qkv1(p, S)
    gen_att(p, S)
    p.raw(".p2align 6")
    p.label("B_role")
    S.n = n0
    gen_b(p, S)
    return kd(name, NVGPR), f"; @launch kernel={name} grid=(512,1,1) block=(256,1,1) lds=81920"
```

```python
from common import *
import common
from att import S0, NM, OO, PP, QA, QB, QT, KM, KT, VV, NVGPR, LTHRESH, BIG, m2b

O = common.OPT

def emit(p, gs):
    for g in gs:
        for l in g: p(l)

def flag_srd(p):
    srd_off(p, 60, 10, 11, hex(WS_F), 0x20000)

def poll(p, lab, srdn, off_s, imm, cmp, target, sleep=2, limit=1 << 20):
    p(f"""
    s_cmp_lg_u32 s28, 0
    s_cbranch_scc1 {lab}_done
    s_add_u32 s98, s{srdn}, {off_s}
    s_addc_u32 s99, s{srdn+1}, 0
    s_mov_b32 s59, 0
    """)
    p.label(lab)
    p(f"""
    s_load_dword s58, s[98:99], {imm} glc
    s_add_u32 s59, s59, 1
    s_waitcnt lgkmcnt(0)
    s_cmp_{cmp}_u32 s58, {target}
    s_cbranch_scc1 {lab}_done
    s_cmp_gt_u32 s59, {limit}
    s_cbranch_scc1 {lab}_done
    s_sleep {sleep}
    s_branch {lab}
    """)
    p.label(f"{lab}_done")

def vpoll_init(p, lab):
    srd(p, 52, 8, 9, 256)
    p(f"""
    s_cmp_lg_u32 s28, 0
    s_cbranch_scc1 {lab}_done
    v_mov_b32 v222, 0
    s_mov_b32 s59, 0
    """)
    p.label(lab)
    p(f"""
    buffer_load_dword v223, v222, s[52:55], 0 offen sc1
    s_add_u32 s59, s59, 1
    s_waitcnt vmcnt(0)
    v_readfirstlane_b32 s58, v223
    s_cmp_lg_u32 s58, 0
    s_cbranch_scc1 {lab}_done
    s_cmp_gt_u32 s59, 0x100000
    s_cbranch_scc1 {lab}_done
    s_sleep 8
    s_branch {lab}
    """)
    p.label(f"{lab}_done")

def sig_lines(lab, line_s, n, imm=0):
    out = ["s_cmp_lg_u32 s28, 0", f"s_cbranch_scc1 {lab}", f"s_lshl_b32 s58, {line_s}, 8", "s_add_u32 s100, s60, s58", "s_addc_u32 s101, s61, 0", "s_mov_b32 s95, 0x20000"]
    out += [f"s_atomic_add s95, s[100:101], {256*k + imm}" for k in range(n)]
    out.append(f"{lab}:")
    return out
def signal(p, lab, line_s, n, imm=0):
    for l in sig_lines(lab, line_s, n, imm): p(l)

def aux_prefetch(p, lo, hi, idx_s, srdn, vtmp):
    if not O.get("aux"): return
    srd(p, srdn, lo, hi, 640 * 1536 * 2)
    p(f"""
    s_mul_i32 s58, {idx_s}, 122880
    v_lshlrev_b32 v{vtmp}, 4, v0
    v_add_u32 v{vtmp}, s58, v{vtmp}
    """)
    for i in range(30):
        p(f"s_mov_b32 s58, {4096*i}")
        p(f"buffer_load_dwordx4 v[216:219], v{vtmp}, s[{srdn}:{srdn+3}], s58 offen")

STRADDLE = 0x12481248
def mod10(p, d, t):
    p(f"""
    s_cmp_ge_u32 {d}, 10
    s_cselect_b32 {t}, 10, 0
    s_sub_u32 {d}, {d}, {t}
    """)
def gen_params_a(p):
    p("""
    s_and_b32 s24, s2, 7
    s_lshr_b32 s25, s2, 3
    s_lshr_b32 s29, s24, 1             ; x/2
    s_and_b32 s30, s24, 1              ; x%2
    s_cmp_ge_u32 s25, 30
    s_cbranch_scc1 A_gate
    s_add_u32 s48, s2, 256
    s_mov_b32 s56, 136
    s_cmp_ge_u32 s25, 20
    s_cbranch_scc1 A_kv
    s_mul_i32 s31, s29, 20
    s_add_u32 s31, s31, s25            ; i
    s_lshr_b32 s27, s31, 3
    s_and_b32 s31, s31, 7
    s_lshl_b32 s26, s30, 1
    s_add_u32 s26, s26, s31
    s_mul_i32 s32, s30, 6
    s_add_u32 s32, s32, s31
    s_add_u32 s32, s32, 2
    s_cmp_lt_u32 s31, 2
    s_cselect_b32 s26, s26, s32        ; mt
    s_lshr_b32 s32, s25, 3
    s_lshl_b32 s32, s32, 1
    s_mov_b32 s38, s31
    s_branch A_par
    A_kv:
    s_sub_u32 s32, s25, 20
    s_and_b32 s31, s32, 1
    s_lshr_b32 s32, s32, 1
    s_lshl_b32 s26, s30, 1
    s_add_u32 s26, s26, s31
    s_mul_i32 s27, s29, 5
    s_add_u32 s27, s27, s32
    s_add_u32 s27, s27, 10
    s_mul_i32 s38, s31, 5
    A_par:
    s_lshl_b32 s32, s32, 1
    s_add_u32 s38, s38, s32
    """)
def gen_params_b(p):
    p("""
    s_lshr_b32 s29, s24, 1
    s_and_b32 s30, s24, 1
    s_mul_i32 s32, s25, 43
    s_lshr_b32 s32, s32, 8             ; j/6
    s_mul_i32 s31, s32, 6
    s_sub_u32 s31, s25, s31            ; j%6
    s_mul_i32 s26, s30, 6
    s_add_u32 s26, s26, s31
    s_add_u32 s26, s26, 4
    s_mul_i32 s27, s29, 5
    s_add_u32 s27, s27, s32
    s_add_u32 s27, s27, 10
    s_lshl_b32 s38, s32, 1
    s_add_u32 s38, s38, s31
    s_mov_b32 s48, 200
    s_mov_b32 s56, 104
    """)
def gen_qkv(p, S):
    p.label("QKV_tile")
    mod10(p, "s38", "s39")
    p("""
    s_lshl_b32 s29, s26, 7
    s_lshl_b32 s30, s28, 5
    s_add_u32 s30, s30, s29
    v_lshrrev_b32 v101, 3, v2
    v_and_b32 v102, 7, v2
    v_lshrrev_b32 v103, 1, v101
    v_xor_b32 v102, v102, v103
    v_lshlrev_b32 v102, 4, v102
    v_add_u32 v101, s30, v101
    v_mul_u32_u24 v101, 1280, v101
    v_add_u32 v99, v101, v102
    v_xor_b32 v100, 64, v99
    v_add_u32 v100, 10240, v100
    s_lshl_b32 s31, s28, 12
    v_lshrrev_b32 v101, 2, v2
    s_lshl_b32 s32, s28, 4
    v_add_u32 v101, s32, v101
    v_mul_u32_u24 v101, 3840, v101
    v_and_b32 v102, 3, v2
    v_lshlrev_b32 v102, 4, v102
    s_lshl_b32 s32, s27, 7
    v_add3_u32 v104, v101, v102, s32
    s_lshl_b32 s32, s28, 11
    s_add_u32 s32, s32, 49152
    s_mov_b32 s37, s38
    s_waitcnt lgkmcnt(0)
    """)
    srd(p, 12, 4, 5, 2048 * 640 * 2)
    srd(p, 16, 6, 7, 640 * 1920 * 2)
    def item(it):
        if it[0] == "x":
            _, sg, hf = it
            base = (sg % 3) * 16384 + hf * 2048
            a = "s_lshl_b32 s33, s38, 7" if hf == 0 else "s_add_u32 s33, s33, 20480"
            b = ["s_nop 0"] if hf == 0 else ["s_add_u32 s38, s38, 1", "s_cmp_eq_u32 s38, 10", "s_cselect_b32 s38, 0, s38"]
            return [[f"s_add_u32 m0, s31, {base}", a, "buffer_load_dwordx4 v99, s[12:15], s33 offen lds"],
                    [f"s_add_u32 m0, s31, {base + 1024}"] + b + ["buffer_load_dwordx4 v100, s[12:15], s33 offen lds"]]
        _, h = it
        base = (h % 4) * 8192
        return [[f"s_add_u32 m0, s32, {base}", "s_mul_i32 s34, s37, 245760", "buffer_load_dwordx4 v104, s[16:19], s34 offen lds"],
                [f"s_add_u32 m0, s32, {base + 960}", "s_add_u32 s37, s37, 1", "s_cmp_eq_u32 s37, 10", "s_cselect_b32 s37, 0, s37",
                 "buffer_load_dwordx4 v104, s[16:19], s34 offen offset:64 lds"]]
    order = []
    for h in range(10): order += [("w", h), ("x", h, 0), ("x", h, 1)]
    def need(it): return it[1]
    def free_after(it): return it[1] - 3 if it[0] == "x" else it[1] - 4
    NPRO = int(O.get("qpro", 6))
    for it in order[:NPRO]: emit(p, item(it))
    p("""
    s_and_b32 s35, s28, 1              ; wm
    s_lshr_b32 s36, s28, 1             ; wn
    v_and_b32 v101, 31, v2               ; l32
    v_lshrrev_b32 v102, 5, v2            ; hh
    v_lshrrev_b32 v103, 1, v101
    v_and_b32 v103, 7, v103
    v_xor_b32 v103, v103, v102
    v_lshlrev_b32 v103, 4, v103
    s_lshl_b32 s40, s35, 13
    v_lshlrev_b32 v105, 7, v101
    v_add3_u32 v106, v105, v103, s40
    v_xor_b32 v107, 32, v106
    v_xor_b32 v108, 64, v106
    v_xor_b32 v109, 96, v106
    v_bfe_u32 v105, v2, 2, 2
    v_lshlrev_b32 v103, 6, v105
    v_bfe_u32 v105, v2, 4, 1
    v_lshl_add_u32 v103, v105, 5, v103
    v_lshl_add_u32 v103, v102, 9, v103
    s_lshl_b32 s40, s36, 10
    s_add_u32 s40, s40, 49152
    v_add_u32 v110, s40, v103
    s_cmp_ge_u32 s27, 10
    s_cselect_b32 s39, 1, 0
    s_cmp_ge_u32 s27, 20
    s_cselect_b32 s39, 2, s39          ; section
    s_mul_i32 s40, s39, 10
    s_sub_u32 s45, s27, s40            ; block within the section
    s_lshl_b32 s40, s45, 6
    s_lshl_b32 s41, s36, 5
    s_add_u32 s40, s40, s41            ; nbase
    s_lshr_b32 s41, s26, 1
    s_mul_i32 s41, s41, 20480
    s_and_b32 s42, s26, 1
    s_lshl_b32 s42, s42, 1
    s_add_u32 s42, s42, s35            ; pair
    s_cmp_eq_u32 s39, 0
    s_cselect_b32 s43, {WS_Q}, {WS_KV}
    s_mov_b32 s44, 163840
    ; counters of this tile: heads h0..h0+3
    s_mul_i32 s46, s45, 3277
    s_lshr_b32 s46, s46, 10
    s_add_u32 s46, s46, s56
    v_mov_b32 v144, 0x40000000
    """.replace("{WS_Q}", hex(WS_Q)).replace("{WS_KV}", hex(WS_KV)))
    srd_off(p, 20, 10, 11, "s43", 32 * HEAD_STRIDE)
    flag_srd(p)
    srd(p, 52, 8, 9, 256)
    p("v_mov_b32 v114, 0")
    p("s_cmp_eq_u32 s39, 2")
    p("s_cbranch_scc1 A_vpath")
    ACC = 184; FR = 32; OFF = 128
    def reads(t):
        sg, ks = divmod(t, 4)
        b = FR + 12 * (t % 4)
        out = []
        for tm in range(2):
            out.append(f"ds_read_b128 v[{b+4*tm}:{b+4*tm+3}], v{106+ks} offset:{(sg % 3)*16384 + tm*4096}")
        for a in range(2):
            r = b + 8 + 2 * a
            out.append(f"ds_read_b64_tr_b16 v[{r}:{r+1}], v110 offset:{(sg % 4)*8192 + ks*2048 + a*256}")
        return out
    def mfmas(t, vrole):
        b = FR + 12 * (t % 4)
        out = []
        for tm in range(2):
            x = b + 4 * tm; w = b + 8
            a_, b_ = (x, w) if vrole else (w, x)
            out.append(mfma32(ACC + 16 * tm, a_, b_, "0" if t == 0 else None))
        return out
    def mainloop(vrole):
        log = [need(it) for it in order[:NPRO] for _ in range(2)]
        nxt = NPRO
        def younger(h):
            assert log.count(h) == 6
            last = max(i for i, e in enumerate(log) if e <= h)
            return len(log) - 1 - last
        p(f"s_waitcnt vmcnt({younger(0)})")
        p("s_barrier")
        for l in reads(0) + reads(1): p(l)
        for u in range(20):
            sg, k2 = divmod(u, 2)
            mf = mfmas(2 * u, vrole) + mfmas(2 * u + 1, vrole)
            rd = (reads(2 * u + 2) + reads(2 * u + 3)) if u < 19 else []
            extra = []
            if k2 == 1 and u < 19:
                p(f"s_waitcnt vmcnt({younger(sg + 1)}) lgkmcnt(0)")
                p("s_barrier")
                done = sg
            else:
                p("s_waitcnt lgkmcnt(0)")
                done = sg - 1
            cnt = 0
            while nxt < len(order) and free_after(order[nxt]) <= done and cnt < 2:
                extra += item(order[nxt]); log += [need(order[nxt])] * 2; nxt += 1; cnt += 1
            if 2 * u == int(O.get("b2start", 16)):
                lab = "A_go" + ("v" if vrole else "q")
                extra.append(["s_cmp_ge_u32 s2, 256", f"s_cbranch_scc1 {lab}"] + sig_lines(lab, "s48", 1))
            for l in rd[0:3]: p(l)
            fill = [rd[3:6], rd[6:8], sum(extra[:2], []), sum(extra[2:], [])]
            for i, m in enumerate(mf):
                p(m)
                for l in fill[i]: p(l)
        S.stamp()
        p("buffer_load_dword v115, v114, s[52:55], 0 offen sc1")
    p("""
    v_and_b32 v103, 1, v2
    v_lshl_add_u32 v110, v103, 4, v110
    v_bfe_u32 v103, v2, 1, 1
    v_lshl_add_u32 v110, v103, 3, v110
    v_lshlrev_b32 v122, 4, v101
    v_add_u32 v122, s41, v122
    s_lshl_b32 s56, s42, 11
    s_lshl_b32 s57, s42, 9
    s_add_u32 s57, s57, 8192
    s_lshr_b32 s47, s40, 3
    v_add_u32 v123, s47, v102
    s_lshl_b32 s47, s44, 1
    """)
    MK = [40, 42]
    for k in range(2):
        m = MK[k]
        p(f"""
        v_add_u32 v124, {2*k}, v123
        v_mul_u32_u24 v125, 13108, v124
        v_lshrrev_b32 v125, 16, v125
        v_mul_u32_u24 v126, 5, v125
        v_sub_u32 v126, v124, v126
        v_mul_lo_u32 v125, v125, s47
        v_add_u32 v125, v125, v122
        v_cmp_lt_u32 vcc, 2, v126
        v_mov_b32 v124, s44
        v_add_u32 v127, 1, v126
        v_cndmask_b32 v124, 0, v124, vcc
        v_cndmask_b32 v127, v126, v127, vcc
        v_and_b32 v127, 1, v127
        v_lshl_add_u32 v124, v127, 9, v124
        v_add3_u32 v124, v124, v125, s56
        v_cmp_eq_u32 s[{m}:{m+1}], 2, v126
        v_add_u32 v125, s57, v125
        s_nop 0
        v_cndmask_b32 v{OFF+k}, v124, v144, s[{m}:{m+1}]
        v_cndmask_b32 v{OFF+4+k}, v144, v125, s[{m}:{m+1}]
        """)
    p("s_cmp_eq_u32 s39, 0")
    p(f"s_cselect_b32 s56, {hex(QSCALE)}, 1.0")
    p("s_mov_b32 s57, s56")
    n0 = S.n
    mainloop(False)
    p("s_nop 7")
    p("s_nop 1")
    for i in range(16):
        p(f"v_pk_mul_f32 v[{ACC+2*i}:{ACC+2*i+1}], v[{ACC+2*i}:{ACC+2*i+1}], s[56:57]")
    for k in range(2):
        for tm in range(2):
            d = ACC + 16 * tm + 8 * k
            t0 = FR + 4 * (2 * k + tm)
            for i in range(4): p(f"v_cvt_pk_bf16_f32 v{t0+i}, v{d+2*i}, v{d+2*i+1}")
            p(f"buffer_store_dwordx4 v[{t0}:{t0+3}], v{OFF+k}, s[20:23], 0 offen offset:{1024*tm} sc1")
    for k in range(2):
        a = FR + 8 * k; b = a + 4
        t = 148 + 8 * k; m = MK[k]
        p(f"s_cmp_eq_u64 s[{m}:{m+1}], 0")
        p(f"s_cbranch_scc1 A_notail{k}")
        for i, src in enumerate((a, a + 1, b, b + 1, a + 2, a + 3, b + 2, b + 3)):
            p(f"v_mov_b32 v{t+i}, v{src}")
        p(f"buffer_store_dwordx4 v[{t}:{t+3}], v{OFF+4+k}, s[20:23], 0 offen sc1")
        p(f"buffer_store_dwordx4 v[{t+4}:{t+7}], v{OFF+4+k}, s[20:23], s44 offen sc1")
        p.label(f"A_notail{k}")
    p("s_branch A_publish")
    p.label("A_vpath")
    p(f"""
    v_and_b32 v103, 3, v2
    v_lshl_add_u32 v110, v103, 3, v110
    s_mul_i32 s45, s42, 2560
    s_add_u32 s45, s45, s41
    s_add_u32 s45, s45, 10240
    v_mul_u32_u24 v122, 320, v102
    v_add_u32 v122, s45, v122
    v_add_u32 v124, s40, v101
    v_mul_u32_u24 v125, 3277, v124
    v_lshrrev_b32 v125, 16, v125
    v_mul_u32_u24 v126, 20, v125
    v_sub_u32 v126, v124, v126
    v_mul_lo_u32 v125, v125, s44
    v_lshl_add_u32 v126, v126, 4, v122
    v_add_u32 v{OFF}, v125, v126
    """)
    S.n = n0
    mainloop(True)
    p("s_nop 7")
    p("s_nop 2")
    for tm in range(2):
        d = ACC + 16 * tm
        for half in range(2):
            t0 = FR + 4 * (2 * tm + half)
            for i in range(4):
                p(f"v_cvt_pk_bf16_f32 v{t0+i}, v{d+8*half+2*i}, v{d+8*half+2*i+1}")
            p(f"buffer_store_dwordx4 v[{t0}:{t0+3}], v{OFF}, s[20:23], 0 offen offset:{(2*tm+half)*640} sc1")
    p("s_branch A_publish")
    p.label("A_gate")
    p("s_load_dwordx2 s[34:35], s[0:1], 56")
    p("""
    s_lshl_b32 s31, s29, 1
    s_add_u32 s31, s31, s25
    s_sub_u32 s31, s31, 30
    s_lshl_b32 s26, s30, 1
    s_add_u32 s26, s26, s31
    s_mul_i32 s32, s30, 6
    s_add_u32 s32, s32, s31
    s_add_u32 s32, s32, 2
    s_cmp_lt_u32 s31, 2
    s_cselect_b32 s26, s26, s32        ; mt
    s_lshl_b32 s29, s26, 7
    s_lshl_b32 s30, s28, 5
    s_add_u32 s30, s30, s29
    s_waitcnt lgkmcnt(0)
    """)
    srd(p, 12, 4, 5, 2048 * 640 * 2)
    srd(p, 16, 34, 35, 1280)
    srd_off(p, 20, 10, 11, hex(WS_G), 8192)
    flag_srd(p)
    p("""
    v_and_b32 v5, 15, v2
    v_lshrrev_b32 v6, 4, v2
    v_lshlrev_b32 v7, 4, v5
    v_add_u32 v8, s30, v6
    v_mul_u32_u24 v9, 1280, v8
    v_add_u32 v9, v9, v7
    v_lshlrev_b32 v8, 2, v8
    """)
    GW = 20; XR = 40; NR = 8; Z = 200
    for j in range(5):
        p(f"buffer_load_dwordx4 v[{GW+4*j}:{GW+4*j+3}], v7, s[16:19], 0 offen offset:{256*j}")
    for rg in range(NR):
        p(f"s_mov_b32 s33, {rg*4*1280}")
        for j in range(5):
            r = XR + 20 * rg + 4 * j
            p(f"buffer_load_dwordx4 v[{r}:{r+3}], v9, s[12:15], s33 offen offset:{256*j}")
    for rg in range(NR): p(f"v_mov_b32 v{Z+rg}, 0")
    for rg in range(NR):
        p(f"s_waitcnt vmcnt({5*(NR-1-rg)})")
        for j in range(20):
            p(f"v_dot2_f32_bf16 v{Z+rg}, v{XR+20*rg+j}, v{GW+j}, v{Z+rg}")
    p("s_nop 3")
    for sh in (8, 4, 2, 1):
        for rg in range(NR):
            p(f"v_add_f32_dpp v{Z+rg}, v{Z+rg}, v{Z+rg} row_ror:{sh} row_mask:0xf bank_mask:0xf")
    p(f"s_mov_b32 s34, {hex(f2u(-math.log2(math.e)))}")
    for rg in range(NR): p(f"v_mul_f32 v{Z+rg}, s34, v{Z+rg}")
    for rg in range(NR): p(f"v_exp_f32 v{Z+rg}, v{Z+rg}")
    for rg in range(NR): p(f"v_add_f32 v{Z+rg}, 1.0, v{Z+rg}")
    for rg in range(NR): p(f"v_rcp_f32 v{Z+rg}, v{Z+rg}")
    p("v_cmp_eq_u32 vcc, 0, v5")
    p("s_and_saveexec_b64 s[56:57], vcc")
    for rg in range(NR):
        p(f"buffer_store_dword v{Z+rg}, v8, s[20:23], 0 offen offset:{16*rg} sc1")
    p("s_mov_b64 exec, -1")
    p("s_lshl_b32 s46, s26, 1")
    p("s_add_u32 s46, s46, 32")
    p("s_waitcnt vmcnt(0)")
    p("s_barrier")
    vpoll_init(p, "G_init")
    signal(p, "G_sig", "s46", 2)
    p("s_branch AT_start")
    p.label("A_publish")
    p("s_waitcnt vmcnt(0)")
    p("v_readfirstlane_b32 s49, v115")
    p("s_barrier")
    p("s_cmp_lg_u32 s49, 0")
    p("s_cbranch_scc1 A_init_done")
    vpoll_init(p, "A_init")
    signal(p, "A_sig", "s46", 4)
    S.stamp()
    p("s_cmp_ge_u32 s2, 256")
    p("s_cbranch_scc1 B_after")
    p.label("AT_start")

def gen_qkv1(p, S):
    p("""
    s_and_b32 s24, s2, 7
    s_lshr_b32 s25, s2, 3
    s_and_b32 s26, s24, 3
    s_lshl_b32 s26, s26, 2
    s_and_b32 s27, s25, 3
    s_add_u32 s26, s26, s27            ; mt
    s_lshr_b32 s27, s24, 2
    s_lshl_b32 s27, s27, 3
    s_lshr_b32 s29, s25, 2
    s_add_u32 s27, s27, s29            ; nt
    s_lshl_b32 s29, s26, 7             ; 128*mt
    s_lshl_b32 s30, s28, 5
    s_add_u32 s30, s30, s29
    s_cmp_eq_u32 s27, 15
    s_cbranch_scc1 A_gate
    v_lshrrev_b32 v5, 3, v2
    v_and_b32 v6, 7, v2
    v_lshrrev_b32 v7, 1, v5
    v_xor_b32 v6, v6, v7
    v_lshlrev_b32 v6, 4, v6
    v_add_u32 v5, s30, v5
    v_mul_u32_u24 v5, 1280, v5
    v_add_u32 v3, v5, v6
    v_xor_b32 v4, 64, v3
    v_add_u32 v4, 10240, v4
    s_lshl_b32 s31, s28, 12
    s_and_b32 s35, s28, 1              ; wm
    s_lshr_b32 s36, s28, 1             ; wn
    v_lshrrev_b32 v5, 2, v2
    s_lshl_b32 s32, s36, 4
    v_add_u32 v5, s32, v5
    v_mul_u32_u24 v5, 3840, v5
    v_and_b32 v6, 3, v2
    v_lshlrev_b32 v6, 4, v6
    s_lshl_b32 s32, s27, 8
    s_lshl_b32 s33, s35, 7
    s_add_u32 s32, s32, s33
    v_add3_u32 v8, v5, v6, s32
    s_lshl_b32 s32, s28, 11
    s_add_u32 s32, s32, 49152
    s_and_b32 s38, s25, 3
    s_mul_i32 s38, s38, 3
    s_lshr_b32 s39, s25, 2
    s_add_u32 s38, s38, s39
    s_cmp_ge_u32 s38, 10
    s_cselect_b32 s39, 10, 0
    s_sub_u32 s38, s38, s39
    s_lshl_b32 s37, s38, 1
    s_waitcnt lgkmcnt(0)
    """)
    srd(p, 12, 4, 5, 2048 * 640 * 2)
    srd(p, 16, 6, 7, 640 * 1920 * 2)
    def item(it):
        if it[0] == "x":
            _, sg, hf = it
            base = (sg % 3) * 16384 + hf * 2048
            a = "s_lshl_b32 s33, s38, 7" if hf == 0 else "s_add_u32 s33, s33, 20480"
            b = ["s_nop 0"] if hf == 0 else ["s_add_u32 s38, s38, 1", "s_cmp_eq_u32 s38, 10", "s_cselect_b32 s38, 0, s38"]
            return [[f"s_add_u32 m0, s31, {base}", a, "buffer_load_dwordx4 v3, s[12:15], s33 offen lds"],
                    [f"s_add_u32 m0, s31, {base + 1024}"] + b + ["buffer_load_dwordx4 v4, s[12:15], s33 offen lds"]]
        _, h = it
        base = (h % 4) * 8192
        return [[f"s_add_u32 m0, s32, {base}", "s_mul_i32 s34, s37, 122880", "buffer_load_dwordx4 v8, s[16:19], s34 offen lds"],
                [f"s_add_u32 m0, s32, {base + 960}", "s_add_u32 s37, s37, 1", "s_cmp_eq_u32 s37, 20", "s_cselect_b32 s37, 0, s37",
                 "buffer_load_dwordx4 v8, s[16:19], s34 offen offset:64 lds"]]
    order = []
    for h in range(20):
        if h % 2 == 0: order += [("x", h // 2, 0), ("x", h // 2, 1)]
        order.append(("w", h))
    def need(it): return 2 * it[1] if it[0] == "x" else it[1]
    def free_after(it): return 2 * (it[1] - 3) + 1 if it[0] == "x" else it[1] - 4
    NPRO = int(O.get("qpro", 7))
    for it in order[:NPRO]: emit(p, item(it))
    p("""
    v_and_b32 v5, 31, v2               ; l32
    v_lshrrev_b32 v6, 5, v2            ; hh
    v_lshrrev_b32 v7, 1, v5
    v_and_b32 v7, 7, v7
    v_xor_b32 v7, v7, v6
    v_lshlrev_b32 v7, 4, v7
    s_lshl_b32 s40, s35, 13
    v_lshlrev_b32 v9, 7, v5
    v_add3_u32 v10, v9, v7, s40
    v_xor_b32 v11, 32, v10
    v_xor_b32 v12, 64, v10
    v_xor_b32 v13, 96, v10
    v_bfe_u32 v9, v2, 2, 2
    v_lshlrev_b32 v7, 6, v9
    v_bfe_u32 v9, v2, 4, 1
    v_lshl_add_u32 v7, v9, 5, v7
    v_lshl_add_u32 v7, v6, 9, v7
    s_lshl_b32 s40, s36, 11
    s_add_u32 s40, s40, 49152
    v_add_u32 v14, s40, v7
    s_cmp_ge_u32 s27, 5
    s_cselect_b32 s39, 1, 0
    s_cmp_ge_u32 s27, 10
    s_cselect_b32 s39, 2, s39          ; section
    s_mul_i32 s40, s39, 5
    s_sub_u32 s45, s27, s40            ; nt'
    s_lshl_b32 s40, s45, 7
    s_lshl_b32 s41, s36, 6
    s_add_u32 s40, s40, s41            ; nbase
    s_lshr_b32 s41, s26, 1
    s_mul_i32 s41, s41, 20480
    s_and_b32 s42, s26, 1
    s_lshl_b32 s42, s42, 1
    s_add_u32 s42, s42, s35            ; pair
    s_cmp_eq_u32 s39, 0
    s_cselect_b32 s43, {WS_Q}, {WS_KV}
    s_mov_b32 s44, 163840
    s_mul_i32 s96, s45, 6554
    s_lshr_b32 s96, s96, 10            ; h0 = 128nt'/20 ; the tile feeds 7 heads (8 for nt' = 2)
    s_lshl_b32 s97, s39, 5
    s_add_u32 s96, s96, s97
    s_add_u32 s96, s96, 136
    s_mov_b32 s97, s45
    v_mov_b32 v144, 0x40000000
    v_mov_b32 v18, 0
    s_add_u32 s3, s2, 256
    """.replace("{WS_Q}", hex(WS_Q)).replace("{WS_KV}", hex(WS_KV)))
    srd_off(p, 20, 10, 11, "s43", 32 * HEAD_STRIDE)
    flag_srd(p)
    p("s_cmp_eq_u32 s39, 2")
    p("s_cbranch_scc1 A_vpath")
    ACC = 64; FR = 32; OFF = 128
    def reads(t):
        h, k2 = divmod(t, 2); sg, ks = divmod(t, 4)
        b = FR + 16 * (t % 2)
        out = []
        for tm in range(2):
            out.append(f"ds_read_b128 v[{b+4*tm}:{b+4*tm+3}], v{10+ks} offset:{(sg % 3)*16384 + tm*4096}")
        for tn in range(2):
            for a in range(2):
                r = b + 8 + 4 * tn + 2 * a
                out.append(f"ds_read_b64_tr_b16 v[{r}:{r+1}], v14 offset:{(h % 4)*8192 + k2*4096 + tn*1024 + a*256}")
        return out
    def mfmas(t, vrole):
        b = FR + 16 * (t % 2)
        out = []
        for tm in range(2):
            for tn in range(2):
                d = ACC + 16 * (2 * tm + tn)
                x = b + 4 * tm; w = b + 8 + 4 * tn
                a_, b_ = (x, w) if vrole else (w, x)
                out.append(mfma32(d, a_, b_, "0" if t == 0 else None))
        return out
    def mainloop(vrole, lab):
        log = [need(it) for it in order[:NPRO] for _ in range(2)]
        nxt = NPRO
        def younger(h):
            last = max(i for i, e in enumerate(log) if e <= h)
            return len(log) - 1 - last
        p(f"s_waitcnt vmcnt({younger(0)})")
        p("s_barrier")
        for l in reads(0): p(l)
        started = False
        for t in range(40):
            h, k2 = divmod(t, 2)
            mf = mfmas(t, vrole)
            rd = reads(t + 1) if t < 39 else []
            extra = []
            if k2 == 1 and t < 39:
                p(f"s_waitcnt vmcnt({younger(h + 1)}) lgkmcnt(0)")
                p("s_barrier")
                done = h
            else:
                p("s_waitcnt lgkmcnt(0)")
                done = h - 1
            cnt = 0
            while nxt < len(order) and free_after(order[nxt]) <= done and cnt < (2 if k2 == 1 else 1):
                extra += item(order[nxt]); log += [need(order[nxt])] * 2; nxt += 1; cnt += 1
            if O.get("erp") == "2" and t == 2 * int(O.get("bq", 4)):
                extra.append(sig_lines("A_gq" + lab, "s3", 1, 0))
            if t == 2 * int(O.get("bstart", 99)):
                extra.append(sig_lines("A_go" + lab, "s3", 1, 4))
            for l in rd[0:2]: p(l)
            fill = [rd[2:4], rd[4:6], sum(extra[:2], []), sum(extra[2:], [])]
            for i, m in enumerate(mf):
                p(m)
                for l in fill[i]: p(l)
        S.stamp()
        p("buffer_load_dword v19, v18, s[52:55], 0 offen sc1")
    srd(p, 52, 8, 9, 256)
    p("""
    v_and_b32 v7, 1, v2
    v_lshl_add_u32 v14, v7, 4, v14
    v_bfe_u32 v7, v2, 1, 1
    v_lshl_add_u32 v14, v7, 3, v14
    v_lshlrev_b32 v26, 4, v5
    v_add_u32 v26, s41, v26
    s_lshl_b32 s45, s42, 11
    s_lshl_b32 s46, s42, 9
    s_add_u32 s46, s46, 8192
    s_lshr_b32 s47, s40, 3
    v_add_u32 v27, s47, v6
    s_lshl_b32 s47, s44, 1
    """)
    MK = [40, 42, 48, 50]
    p("s_mov_b32 s56, s45"); p("s_mov_b32 s57, s46")
    for k in range(4):
        m = MK[k]
        p(f"""
        v_add_u32 v28, {2*k}, v27
        v_mul_u32_u24 v29, 13108, v28
        v_lshrrev_b32 v29, 16, v29
        v_mul_u32_u24 v30, 5, v29
        v_sub_u32 v30, v28, v30
        v_mul_lo_u32 v29, v29, s47
        v_add_u32 v29, v29, v26
        v_cmp_lt_u32 vcc, 2, v30
        v_mov_b32 v28, s44
        v_add_u32 v31, 1, v30
        v_cndmask_b32 v28, 0, v28, vcc
        v_cndmask_b32 v31, v30, v31, vcc
        v_and_b32 v31, 1, v31
        v_lshl_add_u32 v28, v31, 9, v28
        v_add3_u32 v28, v28, v29, s56
        v_cmp_eq_u32 s[{m}:{m+1}], 2, v30
        v_add_u32 v29, s57, v29
        s_nop 0
        v_cndmask_b32 v{OFF+k}, v28, v144, s[{m}:{m+1}]
        v_cndmask_b32 v{OFF+4+k}, v144, v29, s[{m}:{m+1}]
        """)
    n0 = S.n
    mainloop(False, "Aq")
    p("s_cmp_lg_u32 s39, 0")
    p("s_cbranch_scc1 A_noscale")
    p(f"s_mov_b32 s56, {hex(QSCALE)}")
    p(f"s_mov_b32 s57, {hex(QSCALE)}")
    p("s_nop 6")
    for i in range(32):
        p(f"v_pk_mul_f32 v[{ACC+2*i}:{ACC+2*i+1}], v[{ACC+2*i}:{ACC+2*i+1}], s[56:57]")
    p.label("A_noscale")
    p("s_nop 7")
    p("s_nop 1")
    for k in range(4):
        tn, half = divmod(k, 2)
        for tm in range(2):
            d = ACC + 16 * (2 * tm + tn) + 8 * half
            t0 = FR + 4 * (2 * k + tm)
            for i in range(4): p(f"v_cvt_pk_bf16_f32 v{t0+i}, v{d+2*i}, v{d+2*i+1}")
            p(f"buffer_store_dwordx4 v[{t0}:{t0+3}], v{OFF+k}, s[20:23], 0 offen offset:{1024*tm} sc1")
    for k in range(4):
        a = FR + 8 * k; b = a + 4
        t = 148 + 8 * k; m = MK[k]
        p(f"s_cmp_eq_u64 s[{m}:{m+1}], 0")
        p(f"s_cbranch_scc1 A_notail{k}")
        for i, src in enumerate((a, a + 1, b, b + 1, a + 2, a + 3, b + 2, b + 3)):
            p(f"v_mov_b32 v{t+i}, v{src}")
        p(f"buffer_store_dwordx4 v[{t}:{t+3}], v{OFF+4+k}, s[20:23], 0 offen sc1")
        p(f"buffer_store_dwordx4 v[{t+4}:{t+7}], v{OFF+4+k}, s[20:23], s44 offen sc1")
        p.label(f"A_notail{k}")
    p("s_branch A_publish")
    p.label("A_vpath")
    srd(p, 52, 8, 9, 256)
    p("""
    v_and_b32 v7, 3, v2
    v_lshl_add_u32 v14, v7, 3, v14
    s_mul_i32 s45, s42, 2560
    s_add_u32 s45, s45, s41
    s_add_u32 s45, s45, 10240
    v_mul_u32_u24 v26, 320, v6
    v_add_u32 v26, s45, v26
    v_add_u32 v27, s40, v5
    """)
    for tn in range(2):
        p(f"""
        v_add_u32 v28, {32*tn}, v27
        v_mul_u32_u24 v29, 3277, v28
        v_lshrrev_b32 v29, 16, v29
        v_mul_u32_u24 v30, 20, v29
        v_sub_u32 v30, v28, v30
        v_mul_lo_u32 v29, v29, s44
        v_lshl_add_u32 v30, v30, 4, v26
        v_add_u32 v{OFF+tn}, v29, v30
        """)
    S.n = n0
    mainloop(True, "Av")
    p("s_nop 7")
    p("s_nop 2")
    for tm in range(2):
        for tn in range(2):
            d = ACC + 16 * (2 * tm + tn)
            for half in range(2):
                t0 = FR + 4 * (4 * tm + 2 * tn + half)
                for i in range(4):
                    p(f"v_cvt_pk_bf16_f32 v{t0+i}, v{d+8*half+2*i}, v{d+8*half+2*i+1}")
                p(f"buffer_store_dwordx4 v[{t0}:{t0+3}], v{OFF+tn}, s[20:23], 0 offen offset:{(2*tm+half)*640} sc1")
    p("s_branch A_publish")
    p.label("A_gate")
    p("s_load_dwordx2 s[34:35], s[0:1], 56")
    p("s_waitcnt lgkmcnt(0)")
    srd(p, 12, 4, 5, 2048 * 640 * 2)
    srd(p, 16, 34, 35, 1280)
    srd_off(p, 20, 10, 11, hex(WS_G), 8192)
    flag_srd(p)
    srd(p, 52, 8, 9, 256)
    p("""
    v_and_b32 v5, 15, v2
    v_lshrrev_b32 v6, 4, v2
    v_lshlrev_b32 v7, 4, v5
    v_add_u32 v8, s30, v6
    v_mul_u32_u24 v9, 1280, v8
    v_add_u32 v9, v9, v7
    v_lshlrev_b32 v8, 2, v8
    """)
    GW = 20; XR = 40; NR = 8; Z = 200
    for j in range(5):
        p(f"buffer_load_dwordx4 v[{GW+4*j}:{GW+4*j+3}], v7, s[16:19], 0 offen offset:{256*j}")
    for rg in range(NR):
        p(f"s_mov_b32 s33, {rg*4*1280}")
        for j in range(5):
            r = XR + 20 * rg + 4 * j
            p(f"buffer_load_dwordx4 v[{r}:{r+3}], v9, s[12:15], s33 offen offset:{256*j}")
    for rg in range(NR): p(f"v_mov_b32 v{Z+rg}, 0")
    for rg in range(NR):
        p(f"s_waitcnt vmcnt({5*(NR-1-rg)})")
        for j in range(20):
            p(f"v_dot2_f32_bf16 v{Z+rg}, v{XR+20*rg+j}, v{GW+j}, v{Z+rg}")
    p("s_nop 3")
    for sh in (8, 4, 2, 1):
        for rg in range(NR):
            p(f"v_add_f32_dpp v{Z+rg}, v{Z+rg}, v{Z+rg} row_ror:{sh} row_mask:0xf bank_mask:0xf")
    p(f"s_mov_b32 s34, {hex(f2u(-math.log2(math.e)))}")
    for rg in range(NR): p(f"v_mul_f32 v{Z+rg}, s34, v{Z+rg}")
    for rg in range(NR): p(f"v_exp_f32 v{Z+rg}, v{Z+rg}")
    for rg in range(NR): p(f"v_add_f32 v{Z+rg}, 1.0, v{Z+rg}")
    for rg in range(NR): p(f"v_rcp_f32 v{Z+rg}, v{Z+rg}")
    p("v_cmp_eq_u32 vcc, 0, v5")
    p("s_and_saveexec_b64 s[50:51], vcc")
    for rg in range(NR):
        p(f"buffer_store_dword v{Z+rg}, v8, s[20:23], 0 offen offset:{16*rg} sc1")
    p("s_mov_b64 exec, -1")
    p("s_lshl_b32 s46, s26, 1")
    p("s_add_u32 s46, s46, 32")
    p("s_waitcnt vmcnt(0)")
    p("s_barrier")
    vpoll_init(p, "G_init")
    signal(p, "G_sig", "s46", 2)
    p("s_branch AT_start")
    p.label("A_publish")
    if O.get("f1go", "3") == "3": signal(p, "A_go3", "s3", 1, 4)
    p("s_waitcnt vmcnt(0)")
    p("v_readfirstlane_b32 s49, v19")
    p("s_barrier")
    p("s_cmp_lg_u32 s49, 0")
    p("s_cbranch_scc1 A_init_done")
    vpoll_init(p, "A_init")
    L = sig_lines("A_sig", "s96", 8)
    for l in L[:-2] + ["s_cmp_lg_u32 s97, 2", "s_cbranch_scc1 A_sig"] + L[-2:]: p(l)
    if O.get("f1go", "3") == "4": signal(p, "A_go4", "s3", 1, 4)
    S.stamp()
    p.label("AT_start")

def gen_att(p, S):
    pre = "AT"
    p("""
    s_and_b32 s24, s2, 31              ; head
    s_lshr_b32 s25, s2, 5              ; qb
    v_and_b32 v3, 31, v0               ; l32
    v_bfe_u32 v4, v0, 5, 1             ; hh
    s_mul_i32 s26, s24, 163840
    s_mul_i32 s27, s25, 20480
    s_add_u32 s27, s27, s26
    v_lshlrev_b32 v5, 4, v2
    v_lshlrev_b32 v6, 4, v3
    s_mul_i32 s29, s28, 5120
    v_add_u32 v8, s29, v5
    v_add_u32 v9, 0x1000, v8
    s_lshl_b32 s30, s28, 11
    v_add_u32 v10, s30, v5
    s_lshl_b32 s30, s28, 9
    s_add_u32 s30, s30, 8192
    v_lshl_add_u32 v11, v4, 3, v6
    v_add_u32 v11, s30, v11
    s_mov_b32 s44, 0                   ; 0 = first attempt, 1 = exact max known
    s_mov_b32 s46, 0x000fffff
    s_mov_b32 s47, 0x000fffff
    s_bitcmp1_b32 {STR}, s24      ; heads that come from two column blocks
    s_cselect_b32 s50, {T2}, {T1}
    s_lshl_b32 s50, s50, 17
    s_lshl_b32 s43, s24, 8
    s_add_u32 s51, s43, 0x6800         ; counter of the later keys (line 104 + head)
    v_mov_b32 v220, s51
    s_add_u32 s51, s2, 256
    """.replace("{STR}", "0x12481248" if O.get("split") else "0x02081040").replace("{T2}", "48" if O.get("split") else "96").replace("{T1}", "24" if O.get("split") else "48"))
    p(f"s_add_u32 s27, s27, {hex(WS_Q)}")
    srd_off(p, 16, 10, 11, "s27", CHUNK)
    srd_off(p, 12, 10, 11, "s26", HEAD_STRIDE)
    srd_off(p, 32, 10, 11, hex(WS_O), 2048 * 640 * 2)
    def dma_half(h):
        out = []
        if h == 0:
            out.append(["s_add_u32 m0, s37, s29", "s_nop 0", "buffer_load_dwordx4 v8, s[12:15], s36 offen sc1 lds"])
            so = "s36"
        else:
            out.append([f"s_add_u32 m0, m0, {20480-4096}", "s_add_u32 s45, s36, 20480", "buffer_load_dwordx4 v8, s[12:15], s45 offen sc1 lds"])
            so = "s45"
        for j in (1, 2, 3):
            out.append([f"buffer_load_dwordx4 v8, s[12:15], {so} offen offset:{1024*j} sc1 lds"])
        out.append(["s_add_u32 m0, m0, 0x1000", "s_nop 0", f"buffer_load_dwordx4 v9, s[12:15], {so} offen sc1 lds"])
        return out
    p.label(f"{pre}_pass")
    p("""
    v_lshlrev_b32 v5, 4, v2
    v_add_u32 v7, 8192, v6
    v_mul_u32_u24 v13, 320, v4
    v_add_u32 v13, v13, v6
    v_add_u32 v13, 10240, v13
    v_or_b32 v1, 4, v3
    v_cmp_eq_u32 vcc, 28, v1           ; rows 24 and 28 of V^T carry the ones (row sums)
    v_mov_b32 v1, 0x3f803f80
    s_mov_b32 s36, 0
    v_cndmask_b32 v1, 0, v1, vcc
    s_mov_b32 s37, 0
    """)
    for i in range(32): p(f"v_mov_b32 v{VV+i}, v1")
    for i in range(32): p(f"v_mov_b32 v{OO+i}, 0")
    for i in range(4): p(f"v_mov_b32 v{S0+32+28+i}, 0")
    for i in range(2): p(f"v_mov_b32 v{PP+12+i}, 0")
    p("s_cmp_eq_u32 s44, 1")
    p(f"s_cbranch_scc1 {pre}_nowait")
    if O.get("split"): poll(p, "AT_poll", 60, "s43", 136 * 256, "ge", "s50")
    else:
        p(f"""
        s_cmp_lg_u32 s28, 0
        s_cbranch_scc1 AT_poll_done
        s_add_u32 s98, s60, s43
        s_addc_u32 s99, s61, 0
        s_mov_b32 s59, 0
        AT_poll:
        s_load_dword s56, s[98:99], {136*256} glc
        s_load_dword s57, s[98:99], {168*256} glc
        s_load_dword s58, s[98:99], {200*256} glc
        s_add_u32 s59, s59, 1
        s_waitcnt lgkmcnt(0)
        s_add_u32 s58, s58, s56
        s_add_u32 s58, s58, s57
        s_cmp_ge_u32 s58, s50
        s_cbranch_scc1 AT_poll_done
        s_cmp_gt_u32 s59, 0x100000
        s_cbranch_scc1 AT_poll_done
        s_sleep 2
        s_branch AT_poll
        AT_poll_done:
        """)
    if O.get("f1go", "3") == "0": signal(p, "AT_go", "s51", 1, 4)
    p("s_barrier")
    S.stamp()
    p(f"buffer_load_dwordx4 v[{QA}:{QA+3}], v10, s[16:19], 0 offen sc1")
    p(f"buffer_load_dwordx4 v[{QB}:{QB+3}], v10, s[16:19], 0 offen offset:1024 sc1")
    p(f"buffer_load_dwordx2 v[{QT}:{QT+1}], v11, s[16:19], 0 offen sc1")
    p.label(f"{pre}_nowait")
    emit(p, dma_half(0) + dma_half(1))
    if O.get("f1go", "3") == "1": signal(p, "AT_go", "s51", 1, 4)
    p("s_waitcnt vmcnt(5)")
    p("s_barrier")
    def hb(b): return 20480 * (b // 8)
    def rd_km(b):
        r = KM + 4 * (b % 2)
        return f"ds_read_b128 v[{r}:{r+3}], v5 offset:{hb(b) + 1024*(b%8)}"
    def rd_kt(b):
        r = KT + 4 * ((b // 2) % 2)
        return f"ds_read_b128 v[{r}:{r+3}], v7 offset:{hb(b) + 512*((b%8)//2)}"
    def rd_v(b):
        out = []
        for g in range(2):
            r = VV + 8 * (b % 4) + 4 * g
            out.append(f"ds_read_b128 v[{r}:{r+3}], v13 offset:{hb(b) + 640*(2*(b%8)+g)}")
        return out
    p(rd_kt(0)); p(rd_km(0)); p(rd_km(1))
    p("s_mov_b64 exec, s[46:47]")
    for l in rd_v(0) + rd_v(1): p(l)
    p("s_mov_b64 exec, -1")
    p(f"s_mov_b32 s36, {BIG}")
    p(f"s_mov_b32 s37, {BIG}")
    p("s_cmp_eq_u32 s44, 1")
    p(f"s_cbranch_scc1 {pre}_havemax")
    p("s_waitcnt lgkmcnt(5)")
    p(mfma32(S0, KM, QA, "0")); p(mfma32(S0 + 16, KM, QB, "0"))
    p("s_nop 9")
    p(m2b(S0, KT, QT))
    p("s_nop 15"); p("s_nop 3")
    def finish_max():
        for t in range(2):
            d = NM + 16 * t
            p(f"v_mov_b32 v{d+1}, v{d}")
        p("s_nop 1")
        for t in range(2):
            d = NM + 16 * t
            p(f"v_permlane32_swap_b32 v{d}, v{d+1}")
        for t in range(2):
            d = NM + 16 * t
            p(f"v_max_f32 v{d}, v{d}, v{d+1}")
            p(f"v_sub_f32 v{d}, 0, v{d}")
        for k in range(1, 16):
            for t in range(2): p(f"v_mov_b32 v{NM+16*t+k}, v{NM+16*t}")
    for t in range(2):
        b = S0 + 16 * t; d = NM + 16 * t
        p(f"v_max3_f32 v{d}, v{b}, v{b+1}, v{b+2}")
        for k in range(3, 15, 2):
            p(f"v_max3_f32 v{d}, v{d}, v{b+k}, v{b+k+1}")
        p(f"v_max_f32 v{d}, v{d}, v{b+15}")
    finish_max()
    p.label(f"{pre}_havemax")
    p("s_waitcnt lgkmcnt(0)")
    p("s_nop 0")
    p(mfma32(S0, KM, QA, NM)); p(mfma32(S0 + 16, KM, QB, NM + 16))
    p("s_mov_b32 s38, 0")
    p(f"s_mov_b32 s39, {BIG}")
    p("s_waitcnt vmcnt(0)")
    p("s_barrier")
    p("s_nop 5")
    p(m2b(S0, KT, QT))
    p("s_nop 15"); p("s_nop 2")
    S.stamp()
    p(f"s_branch {pre}_mid")
    def iteration(j):
        i = j - 2
        cur = S0 + 32 * (i % 2); nxt = S0 + 32 * ((i + 1) % 2)
        km = KM + 4 * ((i + 1) % 2)
        kt = KT + 4 * (((i + 1) // 2) % 2) + 2 * ((i + 1) % 2)
        vb = VV + 8 * (i % 4); vprev = VV + 8 * ((i - 1) % 4)
        def E(k, lo=0, hi=4):
            for r in range(lo, hi): p(f"v_exp_f32 v{cur+4*k+r}, v{cur+4*k+r}")
        def C(k, base=cur):
            p(f"v_cvt_pk_bf16_f32 v{PP+2*k}, v{base+4*k}, v{base+4*k+1}")
            p(f"v_cvt_pk_bf16_f32 v{PP+2*k+1}, v{base+4*k+2}, v{base+4*k+3}")
        E(0); C(7, nxt)
        p("s_waitcnt lgkmcnt(0)")
        p(mfma32(nxt, km, QA, NM))
        E(1); C(0)
        p(mfma32(OO + 16, vprev + 4, PP + 12))
        E(2); C(1)
        p(mfma32(nxt + 16, km, QB, NM + 16))
        if j % 2 == 0:
            p("s_mov_b64 exec, s[46:47]")
            for l in rd_v(j) + rd_v(j + 1): p(l)
            p("s_mov_b64 exec, -1")
        E(3); C(2)
        D0 = int(O.get("d0", 4 if O.get("split") else 2))
        dl = dma_half(0) + dma_half(1)
        g = dl[2 * (j - D0)] if D0 <= j < D0 + 5 else []
        g2 = dl[2 * (j - D0) + 1] if D0 <= j < D0 + 5 else []
        if not O.get("split"):
            g = dl[j - D0] if D0 <= j < D0 + 10 else []
            g2 = []
        elif D0 <= 4:
            k = j - D0
            g = dl[2 * k] if 0 <= k < 2 else (dl[k + 2] if 2 <= k < 8 else [])
            g2 = dl[2 * k + 1] if 0 <= k < 2 else []
        if j == D0 - 2 and O.get("split"): p("buffer_load_dword v221, v220, s[60:63], 0 offen sc1")
        if j == D0 and O.get("split"):
            p("s_waitcnt vmcnt(0)")
            p("v_readfirstlane_b32 s58, v221")
            p("s_cmp_lt_u32 s58, s50")
            p("s_cbranch_scc1 AT_wait2")
            p.label("AT_back2")
        for l in g[:-1]:
            if l != "s_nop 0": p(l)
        p(mfma32(OO, vb, PP))
        for l in g[-1:]: p(l)
        E(4); C(3)
        p(m2b(nxt, kt, QT))
        p(rd_km(j))
        if j % 2 == 0: p(rd_kt(j))
        E(5); C(4); E(6, 0, 2)
        for l in g2[:-1]:
            if l != "s_nop 0": p(l)
        p(mfma32(OO, vb + 4, PP + 4))
        for l in g2[-1:]: p(l)
        E(6, 2, 4); C(5); E(7, 0, 2)
        p(mfma32(OO + 16, vb, PP + 8))
        E(7, 2, 4); C(6)
    p.raw(".p2align 6")
    p.label(f"{pre}_loop")
    p("s_waitcnt vmcnt(0) lgkmcnt(0)")
    p("s_barrier")
    p("v_add_u32 v5, s39, v5")
    p("v_add_u32 v7, s39, v7")
    p("v_add_u32 v13, s39, v13")
    p("s_sub_u32 s39, 0, s39")
    p(f"s_add_u32 s36, s36, {BIG}")
    p(f"s_sub_u32 s37, {BIG}, s37")
    iteration(0); iteration(1)
    p("s_cmp_eq_u32 s38, 4")
    p(f"s_cbranch_scc1 {pre}_done")
    p.label(f"{pre}_mid")
    for j in range(2, 16): iteration(j)
    p("s_add_u32 s38, s38, 1")
    p(f"s_branch {pre}_loop")
    p.label(f"{pre}_done")
    S.stamp()
    cur = S0 + 32
    p(f"v_cvt_pk_bf16_f32 v{PP+14}, v{cur+28}, v{cur+29}")
    p(f"v_cvt_pk_bf16_f32 v{PP+15}, v{cur+30}, v{cur+31}")
    p("""
    s_lshl_b32 s30, s25, 3
    s_lshl_b32 s31, s28, 1
    """)
    p(mfma32(OO + 16, VV + 8 * 3 + 4, PP + 12))
    p(f"v_rcp_f32 v{OO+13}, v{OO+12}")
    p("""
    s_add_u32 s30, s30, s31
    s_mul_i32 s30, s30, 40960
    s_and_b32 s41, s24, 1
    s_mul_i32 s41, s41, 20480
    s_add_u32 s30, s30, s41
    s_lshr_b32 s42, s24, 1             ; h/2
    s_lshl_b32 s31, s42, 10
    s_add_u32 s31, s31, s30
    v_lshlrev_b32 v14, 4, v2
    v_add_u32 v14, s31, v14
    s_lshr_b32 s40, s42, 2
    s_add_u32 s40, s40, 16
    s_lshl_b32 s40, s40, 10
    s_add_u32 s40, s40, s30
    s_and_b32 s41, s42, 1
    s_lshl_b32 s41, s41, 9
    s_add_u32 s40, s40, s41
    s_and_b32 s41, s42, 2
    s_lshl_b32 s41, s41, 2
    s_add_u32 s40, s40, s41
    v_add_u32 v15, s40, v6
    s_mov_b32 s41, 40960
    """)
    p(f"s_mov_b32 s42, {hex(LTHRESH)}")
    for t in range(2):
        o = OO + 16 * t
        if t == 1: p(f"v_rcp_f32 v{o+13}, v{o+12}"); p("s_nop 0")
        for k in range(12): p(f"v_mul_f32 v{o+k}, v{o+k}, v{o+13}")
        for k in range(6): p(f"v_cvt_pk_bf16_f32 v{S0+8*t+k}, v{o+2*k}, v{o+2*k+1}")
        so = "0" if t == 0 else "s41"
        p(f"buffer_store_dwordx4 v[{S0+8*t}:{S0+8*t+3}], v14, s[32:35], {so} offen sc1")
    p("s_mov_b32 exec_hi, 0")
    for t in range(2):
        so = "0" if t == 0 else "s41"
        p(f"buffer_store_dwordx2 v[{S0+8*t+4}:{S0+8*t+5}], v15, s[32:35], {so} offen sc1")
    p("s_mov_b64 exec, -1")
    p(f"v_cmp_ngt_f32 vcc, s42, v{OO+12}")
    p(f"v_cmp_ngt_f32 s[48:49], s42, v{OO+16+12}")
    p("""
    s_or_b64 vcc, vcc, s[48:49]
    s_cmp_lg_u64 vcc, 0
    s_cselect_b32 s43, 1, 0
    s_cmp_eq_u32 s44, 1
    s_cselect_b32 s43, 0, s43
    v_mov_b32 v1, s43
    s_lshl_b32 s45, s28, 2
    v_mov_b32 v12, s45
    ds_write_b32 v12, v1
    s_lshl_b32 s30, s25, 2
    s_add_u32 s30, s30, s28
    s_bitcmp0_b32 s24, 0
    s_cselect_b32 s31, 64, 0
    s_add_u32 s30, s30, s31
    s_lshl_b32 s30, s30, 8
    s_add_u32 s100, s60, s30
    s_addc_u32 s101, s61, 0
    s_mov_b32 s95, 0x20000
    v_mov_b32 v12, 0
    s_waitcnt lgkmcnt(0)
    s_barrier
    ds_read_b128 v[172:175], v12
    s_waitcnt lgkmcnt(0)
    v_or_b32 v172, v172, v173
    v_or3_b32 v172, v172, v174, v175
    s_nop 0
    v_readfirstlane_b32 s43, v172
    s_waitcnt vmcnt(0)
    s_cmp_lg_u32 s43, 0
    """)
    p(f"s_cbranch_scc1 {pre}_fallback")
    p("s_atomic_add s95, s[100:101], 0")
    S.dump(10, 11, 28, region=0, vt=218)
    p("s_endpgm")
    if O.get("split"):
        p.label("AT_wait2")
        p("s_mov_b32 s59, 0")
        p.label("AT_wait2l")
        p("""
    s_sleep 4
    buffer_load_dword v221, v220, s[60:63], 0 offen sc1
    s_add_u32 s59, s59, 1
    s_waitcnt vmcnt(0)
    v_readfirstlane_b32 s58, v221
    s_cmp_ge_u32 s58, s50
    s_cbranch_scc1 AT_back2
    s_cmp_gt_u32 s59, 0x100000
    s_cbranch_scc1 AT_back2
    s_branch AT_wait2l
    """)
    p.label(f"{pre}_fallback")
    p("s_mov_b32 s36, 0")
    p("s_mov_b32 s37, 0")
    p("v_lshlrev_b32 v5, 4, v2")
    p("v_add_u32 v7, 8192, v6")
    p(f"v_mov_b32 v{NM}, 0xff800000")
    p(f"v_mov_b32 v{NM+16}, 0xff800000")
    p.label(f"{pre}_fb_chunk")
    p("s_barrier")
    emit(p, dma_half(0))
    p("s_waitcnt vmcnt(0)")
    p("s_barrier")
    for b in range(8):
        p(f"ds_read_b128 v[{KM}:{KM+3}], v5 offset:{1024*b}")
        p(f"ds_read_b128 v[{KT}:{KT+3}], v7 offset:{512*(b//2)}")
        p("s_waitcnt lgkmcnt(0)")
        p(mfma32(S0, KM, QA, "0")); p(mfma32(S0 + 16, KM, QB, "0"))
        p("s_nop 9")
        p(m2b(S0, KT + 2 * (b % 2), QT))
        p("s_nop 15"); p("s_nop 3")
        for t in range(2):
            bb = S0 + 16 * t; d = NM + 16 * t
            for k in range(0, 16, 2):
                p(f"v_max3_f32 v{d}, v{d}, v{bb+k}, v{bb+k+1}")
    p("s_add_u32 s36, s36, 20480")
    p("s_cmp_lt_u32 s36, 163840")
    p(f"s_cbranch_scc1 {pre}_fb_chunk")
    finish_max()
    p("s_mov_b32 s44, 1")
    p("s_barrier")
    p(f"s_branch {pre}_pass")

NST2 = 12
RS0 = 3
def sl1(st): return st % 4
def sl2(st): return st % 4
def w_list(st):
    slot = sl2(st) * 20480
    if st < NST2:
        h = ["s_mul_i32 s56, s55, 20480"]; t = ["s_add_u32 s55, s55, 1", "s_cmp_eq_u32 s55, 12", "s_cselect_b32 s55, 0, s55"]
    else:
        h = [f"s_mov_b32 s56, {st*20480}"]; t = ["s_nop 0"]
    g = [[f"s_add_u32 m0, s54, {slot}"] + h + ["buffer_load_dwordx4 v21, s[48:51], s56 offen sc1 lds"]]
    for k in (1, 2, 3):
        g.append([f"buffer_load_dwordx4 v21, s[48:51], s56 offen offset:{1024*k} sc1 lds"])
    g.append([f"s_add_u32 m0, s54, {slot + 4096}"] + t + ["buffer_load_dwordx4 v1, s[48:51], s56 offen sc1 lds"])
    return g

def gen_b(p, S):
    HP = O.get("hiprio", "3")
    p("""
    s_sub_u32 s3, s2, 256
    s_and_b32 s24, s3, 7
    s_lshr_b32 s25, s3, 3
    s_lshl_b32 s57, s2, 8
    v_mov_b32 v22, s57
    s_waitcnt lgkmcnt(0)
    """)
    flag_srd(p)
    srd(p, 20, 8, 9, 256)
    p("""
    s_add_u32 s98, s60, s57
    s_addc_u32 s99, s61, 0
    s_load_dwordx2 s[80:81], s[98:99], 0 glc
    s_load_dwordx16 s[64:79], s[0:1], 0
    """)
    p("""
    s_cmp_lg_u32 s3, 255
    s_cbranch_scc1 B_noclear
    v_lshlrev_b32 v24, 8, v0
    v_mov_b32 v28, 0
    buffer_store_dword v28, v24, s[60:63], 0 offen sc1
    s_waitcnt vmcnt(0)
    s_barrier
    v_mov_b32 v25, 1
    v_lshlrev_b32 v24, 12, v0
    buffer_store_dword v25, v24, s[20:23], 0 offen sc1
    """)
    p.label("B_noclear")
    if not O.get("nocode"):
        p("""
        s_getpc_b64 s[12:13]
        BPC:
        s_sub_u32 s12, s12, BPC-fused_kernel
        s_subb_u32 s13, s13, 0
        s_mov_b32 s14, CODE_END-fused_kernel
        s_mov_b32 s15, 0x00020000
        s_lshl_b32 s29, s25, 11
        v_lshlrev_b32 v24, 3, v0
        v_add_u32 v24, s29, v24
        buffer_load_dwordx2 v[220:221], v24, s[12:15], 0 offen
        """)
    real = p
    p = Prog()
    p("""
    s_mov_b64 s[4:5], s[64:65]
    s_mov_b64 s[44:45], s[72:73]
    s_mov_b64 s[46:47], s[74:75]
    s_mov_b64 s[48:49], s[68:69]
    s_mov_b64 s[50:51], s[76:77]
    """)
    p("""
    v_and_b32 v3, 31, v0
    v_bfe_u32 v4, v0, 5, 1
    s_lshl_b32 s57, s2, 8
    """)
    p("""
    """)
    if O.get("split"): p("""
    s_and_b32 s29, s24, 2
    s_lshl_b32 s29, s29, 1
    s_and_b32 s27, s25, 3
    s_add_u32 s29, s29, s27
    s_and_b32 s30, s24, 1
    s_lshl_b32 s26, s30, 1
    s_add_u32 s26, s26, s29
    s_mul_i32 s30, s30, 6
    s_add_u32 s30, s30, s29
    s_add_u32 s30, s30, 2
    s_cmp_lt_u32 s29, 2
    s_cselect_b32 s26, s26, s30        ; r
    """)
    else: p("""
    s_and_b32 s26, s24, 3
    s_lshl_b32 s26, s26, 2
    s_and_b32 s27, s25, 3
    s_add_u32 s26, s26, s27            ; r
    """)
    p("""
    s_lshr_b32 s27, s24, 2
    s_lshl_b32 s27, s27, 3
    s_lshr_b32 s29, s25, 2
    s_add_u32 s27, s27, s29            ; f
    s_and_b32 s35, s28, 1
    s_lshr_b32 s36, s28, 1
    v_lshrrev_b32 v6, 2, v2
    v_and_b32 v7, 3, v2
    v_lshrrev_b32 v8, 4, v2
    v_sub_u32 v8, 0, v8
    v_and_b32 v8, 3, v8
    v_xor_b32 v8, v8, v7
    s_lshl_b32 s29, s26, 7
    s_lshl_b32 s30, s28, 5
    s_add_u32 s29, s29, s30
    v_add_u32 v9, s29, v6
    v_mul_u32_u24 v9, 1280, v9
    v_lshl_add_u32 v5, v8, 4, v9
    s_lshl_b32 s29, s35, 4
    v_add_u32 v9, s29, v6
    v_mul_u32_u24 v9, 3072, v9
    v_xor_b32 v8, v4, v7
    s_mul_i32 s29, s27, 192
    v_lshl_add_u32 v9, v8, 4, v9
    v_add_u32 v6, s29, v9
    s_lshl_b32 s31, s28, 11
    s_mul_i32 s32, s28, 3072
    s_add_u32 s32, s32, 8192
    s_cmp_eq_u32 s36, 0
    s_cselect_b32 s6, s44, s46
    s_cselect_b32 s7, s45, s47
    s_and_b32 s38, s25, 3
    s_mul_i32 s38, s38, 5
    """)
    if O.get("rotf"):
        p("s_lshr_b32 s39, s25, 2"); p("s_add_u32 s38, s38, s39")
    if not O.get("norq"):
        p("s_and_b32 s39, s24, 3"); p("s_add_u32 s38, s38, s39")
    p("""
    s_cmp_ge_u32 s38, 20
    s_cselect_b32 s39, 20, 0
    s_sub_u32 s38, s38, s39
    """)
    srd(p, 12, 4, 5, 2048 * 640 * 2)
    srd(p, 16, 6, 7, 640 * 1536 * 2)
    srd_off(p, 40, 10, 11, hex(WS_H), 2048 * 1536 * 2)
    p("""
    v_and_b32 v3, 15, v2               ; m16
    v_lshrrev_b32 v23, 4, v2           ; q
    v_lshrrev_b32 v8, 2, v3
    v_sub_u32 v8, 0, v8
    v_and_b32 v8, 3, v8
    v_xor_b32 v8, v8, v23
    v_lshlrev_b32 v8, 4, v8
    v_lshl_add_u32 v8, v3, 6, v8
    s_lshl_b32 s29, s35, 12
    v_add_u32 v10, s29, v8
    v_and_b32 v7, 1, v2
    v_lshlrev_b32 v7, 3, v7
    v_bfe_u32 v9, v2, 1, 1
    v_lshl_add_u32 v7, v9, 5, v7
    v_bfe_u32 v9, v2, 2, 2
    v_lshl_add_u32 v7, v9, 6, v7
    v_mul_u32_u24 v8, 3072, v4
    v_add_u32 v7, v7, v8
    v_bfe_u32 v9, v2, 4, 1             ; q%2
    v_lshl_add_u32 v7, v9, 9, v7
    v_lshlrev_b32 v9, 4, v9
    v_add_u32 v7, 8192, v7
    s_lshl_b32 s30, s36, 11
    v_add3_u32 v11, v7, v9, s30
    v_xor_b32 v12, 16, v11
    s_lshl_b32 s29, s36, 4
    v_xor_b32 v8, s29, v9
    v_add_u32 v8, 1024, v8
    v_add_u32 v13, v7, v8
    """)
    for i in range(4): p(f"v_add_u32 v{14+i}, 40960, v{10+i}")
    p("""
    s_lshl_b32 s29, s26, 2
    s_lshl_b32 s30, s35, 1
    s_add_u32 s29, s29, s30
    s_mul_i32 s29, s29, 96
    s_mul_i32 s30, s27, 6
    s_add_u32 s29, s29, s30
    s_lshl_b32 s29, s29, 10
    v_lshlrev_b32 v18, 4, v3
    v_lshl_add_u32 v18, v23, 9, v18    ; q*512 + m16*16
    s_lshl_b32 s30, s36, 12
    s_add_u32 s30, s30, s29
    v_add_u32 v20, s30, v18
    s_lshl_b32 s30, s36, 3
    s_add_u32 s30, s30, s29
    s_add_u32 s30, s30, 2048
    v_add_u32 v19, s30, v18
    s_mov_b32 s37, 98304
    """)
    p("""
    s_mul_i32 s29, s3, 3856
    s_lshr_b32 s29, s29, 16
    s_mul_i32 s30, s29, 17
    s_sub_u32 s30, s3, s30             ; stage
    s_lshl_b32 s53, s30, 7
    s_lshl_b32 s54, s28, 5
    s_add_u32 s53, s53, s54
    s_mov_b32 s54, 0
    s_mov_b32 s55, 4
    s_mov_b32 s46, 1966080
    s_cmp_ge_u32 s30, 12
    s_cbranch_scc0 B_rp_wd
    s_sub_u32 s30, s30, 12
    s_lshl_b32 s30, s30, 2
    s_add_u32 s30, s30, s28            ; position 0..19
    s_cmp_ge_u32 s30, 10
    s_cselect_b32 s52, 20, 0           ; 20*parity
    s_cselect_b32 s53, 10, 0
    s_sub_u32 s30, s30, s53
    s_lshr_b32 s53, s29, 2
    s_add_u32 s53, s53, s29
    s_add_u32 s30, s30, s53
    s_cmp_ge_u32 s30, 10
    s_cselect_b32 s53, 10, 0
    s_sub_u32 s30, s30, s53
    s_mul_i32 s53, s30, 80
    s_mul_i32 s58, s30, 320
    s_sub_u32 s58, s58, 2544
    s_mov_b32 s54, 30720
    s_mov_b32 s50, s48
    s_mov_b32 s51, s49
    s_mov_b32 s46, 819200
    s_cmp_ge_u32 s30, 8
    s_cselect_b32 s53, s58, s53
    s_cselect_b32 s54, 46080, s54
    s_cselect_b32 s55, 2, s55
    s_add_u32 s53, s53, s52
    """)
    p.label("B_rp_wd")
    p("""
    s_mov_b32 s44, s50
    s_mov_b32 s45, s51
    s_mov_b32 s47, 0x00020000
    s_cmp_lt_u32 s3, 136
    s_cselect_b32 s46, s46, 0
    s_mul_i32 s53, s53, 1280
    s_mul_i32 s30, s29, 160
    s_add_u32 s53, s53, s30
    s_mul_i32 s30, s28, 320
    v_add_u32 v9, s30, v2
    s_add_u32 s96, s29, 96
    s_cmp_lt_u32 s3, 136
    s_cselect_b32 s96, s96, 200
    s_lshl_b32 s97, s26, 1
    s_add_u32 s97, s97, 32
    """)
    for kk in range(5):
        p(f"""
        v_add_u32 v24, {64*kk}, v2
        v_mul_u32_u24 v25, 6554, v24
        v_lshrrev_b32 v25, 16, v25
        v_mul_u32_u24 v7, 10, v25
        v_sub_u32 v7, v24, v7
        v_mul_u32_u24 v24, 1280, v25
        v_lshl_add_u32 v24, v7, 4, v24
        v_lshrrev_b32 v25, s55, v25
        v_mul_u32_u24 v25, s54, v25
        v_add_u32 v{208+kk}, v24, v25
        """)
    p(f"""
    s_mul_i32 s54, s28, 5120
    s_add_u32 s52, s54, 40960
    v_bfe_u32 v25, v2, 2, 3
    v_mul_u32_u24 v25, 160, v25
    v_and_b32 v7, 3, v2
    v_lshl_add_u32 v25, v7, 3, v25
    v_add_u32 v25, s52, v25
    v_mov_b32 v8, 2400
    """)
    for kk in range(5):
        p(f"""
        v_add_u32 v7, {2*kk}, v4
        v_cmp_lt_u32 vcc, 4, v7
        v_lshlrev_b32 v7, 5, v7
        s_nop 0
        v_cndmask_b32 v24, 0, v8, vcc
        v_add3_u32 v{213+kk}, v25, v7, v24
        """)
    p(f"""
    s_mul_i32 s29, s3, 20480
    v_lshlrev_b32 v218, 4, v9
    v_add_u32 v218, s29, v218
    v_add_u32 v219, 0x1000, v218
    v_lshlrev_b32 v21, 4, v2
    v_add_u32 v21, s54, v21
    v_add_u32 v1, 0x1000, v21
    s_lshr_b32 s29, s25, 2
    s_mul_i32 s29, s29, {WP_CB}
    s_add_u32 s29, s29, {hex(WS_W)}
    """)
    srd_off(p, 4, 10, 11, hex(WS_W), 8 * WP_CB)
    srd_off(p, 48, 10, 11, "s29", WP_CB)
    setup = p.lines
    p = real
    p("s_waitcnt lgkmcnt(0)")
    for l in setup: p.raw(l)
    if O.get("split"):
        p("s_cmp_ge_u32 s25, 30")
        p("s_cbranch_scc1 B_skipq")
        gen_params_b(p)
        p("s_mov_b64 s[4:5], s[64:65]")
        p("s_mov_b64 s[6:7], s[66:67]")
        poll(p, "B_start0", 60, "s57", 0, "lg", "s80", sleep=2, limit=40)
        p("s_barrier")
        S.n = 0; S.stamp()
        p("s_setprio %s" % O.get("q2prio", "0"))
        p("s_branch QKV_tile")
        p.label("B_after")
        S.n = 3 if common.STAMP else 0
        p("s_setprio 0")
        for l in setup:
            if l.strip().startswith("s_") or l.endswith(":"): p.raw(l.replace("B_rp_wd", "B_rp_wd2"))
        if O.get("f1go", "3") in ("0", "1"): poll(p, "B_start", 60, "s57", 4, "lg", "s81", sleep=2, limit=60)
        p("s_branch B_go")
        p.label("B_skipq")
        p("s_mov_b64 s[82:83], s[52:53]"); p("s_mov_b64 s[84:85], s[54:55]")
        vpoll_init(p, "B_init")
        p("s_mov_b64 s[52:53], s[82:83]"); p("s_mov_b64 s[54:55], s[84:85]")
        p.label("B_go")
    else:
        if O.get("erp"):
            if O.get("erp") == "2": poll(p, "B_start0", 60, "s57", 0, "lg", "s80", sleep=2, limit=40); p("s_barrier")
            for kk in range(5):
                p(f"s_add_u32 m0, s52, {1024*kk}"); p("s_nop 0")
                p(f"buffer_load_dwordx4 v{208+kk}, s[44:47], s53 offen lds")
            p("s_waitcnt vmcnt(0)")
            for kk in range(5):
                for a in range(2):
                    p(f"ds_read_b64_tr_b16 v[{184+4*kk+2*a}:{184+4*kk+2*a+1}], v{213+kk} offset:{1280*a}")
            p("s_waitcnt lgkmcnt(0)")
            for kk in range(5):
                p(f"buffer_store_dwordx4 v[{184+4*kk}:{184+4*kk+3}], v{218 if kk < 4 else 219}, s[4:7], 0 offen offset:{1024*(kk%4)} sc1")
        p("s_mov_b64 s[82:83], s[52:53]"); p("s_mov_b64 s[84:85], s[54:55]")
        vpoll_init(p, "B_init")
        p("s_mov_b64 s[52:53], s[82:83]"); p("s_mov_b64 s[54:55], s[84:85]")
        p("s_cmp_eq_u32 s27, 15")
        p("s_cbranch_scc1 B_start_done")
        if O.get("f1go", "3") != "2": poll(p, "B_start", 60, "s57", 4, "lg", "s81", sleep=2, limit=60)
        else: p.label("B_start_done")
    p("s_barrier")
    S.n = 0
    S.stamp()
    p("""
    s_lshr_b32 s29, s25, 2
    s_add_u32 s55, s25, s29
    s_and_b32 s55, s55, 3
    s_mul_i32 s55, s55, 3
    s_add_u32 s57, s29, 96
    s_lshl_b32 s57, s57, 8
    """)
    NST = 20
    def dma_list(st):
        if st == "rp":
            return [[f"s_add_u32 m0, s52, {1024*kk}", "s_nop 0", f"buffer_load_dwordx4 v{208+kk}, s[44:47], s53 offen lds"] for kk in range(5)]
        if st >= NST: return w_list(st - NST)
        slot = sl1(st) * 20480
        g = []
        for pc in range(2):
            g.append([f"s_add_u32 m0, s31, {slot + pc*1024}", ("s_lshl_b32 s33, s38, 6" if pc == 0 else "s_add_u32 s33, s33, 20480"),
                      "buffer_load_dwordx4 v5, s[12:15], s33 offen lds"])
        for j in range(3):
            off = f" offset:{64*j}" if j else ""
            mid = ["s_mul_i32 s34, s38, 98304"] if j == 0 else (["s_add_u32 s38, s38, 1"] if j == 1 else [])
            g.append([f"s_add_u32 m0, s32, {slot + j*960}"] + (mid if mid else ["s_cmp_eq_u32 s38, 20", "s_cselect_b32 s38, 0, s38"]) +
                      [f"buffer_load_dwordx4 v6, s[16:19], s34 offen{off} lds"])
        return g
    emit(p, dma_list(0) + dma_list("rp") + dma_list(1))
    FR = 32; ACC = 112; RP = ACC + 76
    def m16(d, a, b, first):
        return f"v_mfma_f32_16x16x32_bf16 v[{d}:{d+3}], v[{a}:{a+3}], v[{b}:{b+3}], " + ("0" if first else f"v[{d}:{d+3}]")
    def acc(mat, tn, tm): return ACC + 4 * (4 * (2 * tn + mat) + tm)
    def reads(st):
        slot = sl1(st)
        k = slot // 2; so = (slot % 2) * 20480
        b = FR + 40 * (st % 2)
        out = [f"ds_read_b128 v[{b+4*tm}:{b+4*tm+3}], v{10+4*k} offset:{so + tm*1024}" for tm in range(4)]
        for tn in range(3):
            for mat in range(2):
                for a in range(2):
                    r = b + 16 + 4 * (2 * tn + mat) + 2 * a
                    out.append(f"ds_read_b64_tr_b16 v[{r}:{r+1}], v{11+4*k+tn} offset:{so + mat*6144 + a*256}")
        return out
    def mfmas(st):
        b = FR + 40 * (st % 2)
        return [m16(acc(mat, tn, tm), b + 16 + 4 * (2 * tn + mat), b + 4 * tm, st == 0) for tn in range(3) for mat in range(2) for tm in range(4)]
    p("s_waitcnt vmcnt(5)")
    for kk in range(5):
        for a in range(2):
            p(f"ds_read_b64_tr_b16 v[{RP+4*kk+2*a}:{RP+4*kk+2*a+1}], v{213+kk} offset:{1280*a}")
    p("s_waitcnt vmcnt(0) lgkmcnt(0)")
    p("s_barrier")
    rd = reads(0)
    for l in rd[:12]: p(l)
    for kk in range(5):
        p(f"buffer_store_dwordx4 v[{RP+4*kk}:{RP+4*kk+3}], v{218 if kk < 4 else 219}, s[4:7], 0 offen offset:{1024*(kk%4)} sc1")
    p("s_waitcnt lgkmcnt(8)")
    for l in rd[12:]: p(l)
    queue = dma_list(2) + dma_list(3)
    for st in range(NST):
        pr = st // 2
        mf = mfmas(st)
        rd = reads(st + 1) if st < NST - 1 else []
        if st % 2 == 1 and st < NST - 1:
            assert not queue
            p("s_waitcnt vmcnt(0) lgkmcnt(0)")
            if pr == 8:
                p("v_readfirstlane_b32 s58, v22")
                p(f"s_cmp_ge_u32 s58, {17 << 17}")
                p("s_cbranch_scc1 B_pollw_done")
                poll(p, "B_pollw", 60, "s57", 0, "ge", 17 << 17, sleep=4)
            p("s_barrier")
            if pr == 0:
                p("s_cmp_ge_u32 s3, 136"); p("s_cbranch_scc1 B_sigw")
                signal(p, "B_sigw", "s96", 1)
            queue = dma_list(2 * pr + 4) + dma_list(2 * pr + 5)
            if pr == 7: queue.append(["buffer_load_dword v22, off, s[60:63], s57 sc1"])
            if O.get("f1st") and pr in (0, 4): S.stamp()
        else:
            p("s_waitcnt lgkmcnt(0)")
        for i, m in enumerate(mf):
            p(m)
            if i == 12 and rd: p("s_waitcnt lgkmcnt(8)")
            for l in rd[i:i + 1]: p(l)
            if queue and i % 2 == 1:
                for l in queue.pop(0): p(l)
    S.stamp()
    p(f"s_setprio {HP}")
    p(f"s_mov_b32 s44, {hex(f2u(-math.log2(math.e)))}")
    p(f"s_mov_b32 s45, {hex(f2u(-math.log2(math.e)))}")
    p("s_load_dwordx2 s[8:9], s[0:1], 64")
    p("s_nop 3")
    def silu(items, t):
        prs = [(g + 2 * i, u + 2 * i) for g, u in items for i in range(2)]
        n = len(prs)
        for i, (g, u) in enumerate(prs): p(f"v_pk_mul_f32 v[{t+2*i}:{t+2*i+1}], v[{g}:{g+1}], s[44:45]")
        for i in range(2 * n): p(f"v_exp_f32 v{t+i}, v{t+i}")
        for i, (g, u) in enumerate(prs): p(f"v_pk_mul_f32 v[{g}:{g+1}], v[{g}:{g+1}], v[{u}:{u+1}]")
        for i in range(n): p(f"v_pk_add_f32 v[{t+2*i}:{t+2*i+1}], v[{t+2*i}:{t+2*i+1}], 1.0 op_sel_hi:[1,0]")
        for i in range(2 * n): p(f"v_rcp_f32 v{t+i}, v{t+i}")
        p("s_nop 0")
        for i, (g, u) in enumerate(prs): p(f"v_pk_mul_f32 v[{g}:{g+1}], v[{g}:{g+1}], v[{t+2*i}:{t+2*i+1}]")
        for i, (g, u) in enumerate(prs): p(f"v_cvt_pk_bf16_f32 v{t+8+i}, v{g}, v{g+1}")
    for tm in range(4):
        t = FR + 12 * tm
        silu([(acc(0, 0, tm), acc(1, 0, tm)), (acc(0, 1, tm), acc(1, 1, tm))], t)
        so = "0" if tm < 2 else "s37"
        p(f"buffer_store_dwordx4 v[{t+8}:{t+11}], v20, s[40:43], {so} offen offset:{256*(tm%2)} sc1")
    for h in range(2):
        t = FR + 48 + 12 * h
        silu([(acc(0, 2, 2 * h), acc(1, 2, 2 * h)), (acc(0, 2, 2 * h + 1), acc(1, 2, 2 * h + 1))], t)
        so = "0" if h == 0 else "s37"
        p(f"buffer_store_dwordx2 v[{t+8}:{t+9}], v19, s[40:43], {so} offen sc1")
        p(f"buffer_store_dwordx2 v[{t+10}:{t+11}], v19, s[40:43], {so} offen offset:256 sc1")
    p("""
    s_lshl_b32 s26, s24, 2
    s_and_b32 s27, s25, 3
    s_add_u32 s26, s26, s27            ; mb
    s_lshr_b32 s27, s25, 2             ; cb
    s_add_u32 s57, s26, 32
    s_lshl_b32 s57, s57, 8
    s_mul_i32 s29, s27, 160
    v_lshlrev_b32 v9, 4, v2
    s_add_u32 s39, s25, s27
    s_and_b32 s39, s39, 3
    s_mul_i32 s39, s39, 3
    s_lshr_b32 s53, s27, 2
    s_add_u32 s53, s53, s27
    s_lshl_b32 s30, s26, 1
    s_add_u32 s30, s30, s35
    s_mul_i32 s32, s30, 96
    s_lshl_b32 s33, s36, 2
    s_add_u32 s32, s32, s33
    s_lshl_b32 s32, s32, 10
    v_add_u32 v25, s32, v18            ; H offset: + q*512 + m16*16
    v_lshrrev_b32 v7, 1, v23
    v_mul_u32_u24 v7, 2560, v7
    v_and_b32 v8, 1, v23
    v_lshl_add_u32 v7, v8, 8, v7
    v_lshl_add_u32 v26, v3, 4, v7
    v_add_u32 v27, 40960, v26
    s_mul_i32 s32, s36, 10240
    v_add_u32 v28, s32, v26
    v_add_u32 v29, s32, v27
    v_mov_b32 v4, v23
    s_lshl_b32 s32, s26, 6
    s_lshl_b32 s33, s35, 5
    s_add_u32 s32, s32, s33
    s_lshl_b32 s33, s36, 4
    s_add_u32 s32, s32, s33
    v_add_u32 v24, s32, v3
    v_lshlrev_b32 v22, 2, v24
    """)
    srd_off(p, 20, 10, 11, hex(WS_G), 8192)
    p("s_setprio 0")
    p("s_waitcnt vmcnt(0)")
    p("s_barrier")
    signal(p, "B_sigh", "s97", 2)
    emit(p, w_list(2) + w_list(3))
    poll(p, "B_pollh", 60, "s57", 0, "ge", 17 << 17)
    p("s_barrier")
    XR = 32; WF = 96; ACC = 136
    def x_list(st):
        g = []
        for ks in range(4):
            r = XR + 4 * ((4 * st + ks) % 16)
            pre = {0: ["s_lshl_b32 s33, s39, 13"], 1: ["s_add_u32 s39, s39, 1"], 2: ["s_cmp_eq_u32 s39, 12", "s_cselect_b32 s39, 0, s39"]}.get(ks, [])
            g.append(pre + [f"buffer_load_dwordx4 v[{r}:{r+3}], v25, s[40:43], s33 offen offset:{2048*(ks//2) + 256*(ks%2)} sc1"])
        return g
    for st in range(4): emit(p, x_list(st))
    p("buffer_load_dword v23, v22, s[20:23], 0 offen sc1")
    def reads2(t):
        st, ks = divmod(t, 2)
        slot = sl2(st)
        k = slot // 2; so = (slot % 2) * 20480
        b = WF + 20 * (t % 2)
        return [f"ds_read_b128 v[{b+4*u}:{b+4*u+3}], v{28+k} offset:{so + ks*5120 + u*512}" for u in range(5)]
    def mfmas2(t):
        b = WF + 20 * (t % 2)
        x = XR + 8 * (t % 8)
        return [m16(ACC + 20 * h + 4 * u, b + 4 * u, x + 4 * h, t == 0) for u in range(5) for h in range(2)]
    for l in reads2(0): p(l)
    T = 2 * NST2
    log = [("x", s) for s in range(4) for _ in range(4)] + [("g", 0)]
    def younger2(tags):
        last = max(i for i, e in enumerate(log) if e in tags)
        return len(log) - 1 - last
    queue = []
    for t in range(T):
        st, ks = divmod(t, 2)
        mf = mfmas2(t)
        rd = reads2(t + 1) if t < T - 1 else []
        if t % 4 == 3 and t < T - 1:
            assert not any(q[0][0] == "w" for q in queue)
            tags = [("w", st + 1), ("w", st + 2), ("x", 0)]
            p(f"s_waitcnt vmcnt({younger2(tags)}) lgkmcnt(0)")
            p("s_barrier")
            if st + 3 < NST2 + 2:
                queue = [(("w", s), g) for s in (st + 3, st + 4) for g in w_list(s)] + queue
        elif ks == 0:
            assert log.count(("x", st)) == 4
            p(f"s_waitcnt vmcnt({younger2([('x', st)])}) lgkmcnt(0)")
        else:
            p("s_waitcnt lgkmcnt(0)")
        if ks == 0 and st >= 1 and st + 3 < NST2:
            queue += [(("x", st + 3), g) for g in x_list(st + 3)]
        for i, m in enumerate(mf):
            p(m)
            for l in rd[i:i + 1]: p(l)
            if queue and i % 2 == 1:
                tag, g = queue.pop(0)
                for l in g: p(l)
                log.append(tag)
    assert not queue
    S.stamp()
    p(f"s_setprio {HP}")
    p("""
    s_mul_i32 s32, s28, 5120
    s_add_u32 s32, s32, 61440
    v_add_u32 v30, s32, v9
    s_xor_b32 s32, s28, 2
    s_mul_i32 s32, s32, 5120
    s_add_u32 s32, s32, 61440
    v_add_u32 v31, s32, v9
    s_lshl_b32 s30, s26, 1
    s_add_u32 s30, s30, s35
    s_mul_i32 s32, s30, 40960
    s_lshl_b32 s33, s36, 8
    s_add_u32 s32, s32, s33
    v_add_u32 v25, s32, v18            ; O offset
    s_waitcnt vmcnt(0)
    s_barrier
    s_cmp_eq_u32 s36, 0
    s_cbranch_scc1 B_keep0
    """)
    B2 = 200
    for kq in (1, 0):
        if kq == 0: p.label("B_keep0")
        for u in range(5):
            s_ = ACC + 20 * (1 - kq) + 4 * u
            p(f"ds_write_b128 v30, v[{s_}:{s_+3}] offset:{1024*u}")
        for r in range(20): p(f"v_mov_b32 v{B2+r}, v{ACC+20*kq+r}")
        if kq == 1: p("s_branch B_kept")
    p.label("B_kept")
    emit(p, w_list(NST2 + 2))
    p("""
    v_mul_u32_u24 v28, 1280, v24
    v_lshl_add_u32 v28, v4, 3, v28
    v_add_u32 v28, s29, v28
    v_sub_f32 v22, 1.0, v23
    """)
    srd_off(p, 12, 10, 11, hex(WS_O), 2048 * 640 * 2)
    p("s_waitcnt lgkmcnt(0)")
    srd(p, 40, 8, 9, 2048 * 640 * 2)
    p("s_barrier")
    B2 = 200; XO = 32; WR = 112; A2 = 10
    A2r = [10, 14, 192, 196, 18]
    A2r = [10, 14, 192, 196, 4]
    for u in range(5):
        p(f"ds_read_b128 v[{XO+4*u}:{XO+4*u+3}], v31 offset:{1024*u}")
    def oreads(i):
        sg, ks = divmod(i, 4)
        slot = sl2(sg)
        k = slot // 2; so = (slot % 2) * 20480
        b = WR + 20 * (i % 4)
        return [f"ds_read_b128 v[{b+4*u}:{b+4*u+3}], v{26+k} offset:{so + ks*5120 + u*512}" for u in range(5)]
    for i in range(4):
        for l in oreads(i): p(l)
        if i == 1:
            p("s_waitcnt lgkmcnt(10)")
            for u in range(5):
                a = B2 + 4 * u; b = XO + 4 * u
                p(f"v_pk_add_f32 v[{a}:{a+1}], v[{a}:{a+1}], v[{b}:{b+1}]")
                p(f"v_pk_add_f32 v[{a+2}:{a+3}], v[{a+2}:{a+3}], v[{b+2}:{b+3}]")
            for r in range(20): p(f"v_mul_f32 v{B2+r}, v{B2+r}, v22")
        if i % 2 == 1: p("s_waitcnt lgkmcnt(0)")
    p("s_barrier")
    p("s_setprio 0")
    emit(p, w_list(NST2 + 3) + w_list(NST2 + 4))
    poll(p, "B_polle", 60, "s57", 0x2000, "ge", 16 << 17)
    p("""
    s_sub_u32 s57, s57, 0x2000
    s_add_u32 s98, s60, s57
    s_addc_u32 s99, s61, 0
    s_barrier
    s_load_dword s56, s[98:99], 0 glc
    """)
    def xloads(half):
        for i in range(10 * half, 10 * half + 10):
            p("s_lshl_b32 s33, s53, 11")
            if half: p("s_add_u32 s33, s33, 20480")
            p("s_add_u32 s53, s53, 1"); p("s_cmp_eq_u32 s53, 10"); p("s_cselect_b32 s53, 0, s53")
            p(f"buffer_load_dwordx4 v[{XO+4*i}:{XO+4*i+3}], v25, s[12:15], s33 offen sc1")
    def steps(lo, hi, last):
        for i in range(lo, hi):
            b = WR + 20 * (i % 4); x = XO + 4 * i
            n = min(5 * (min(i + 3, 19) - i), 10)
            p(f"s_waitcnt vmcnt({last-i}) lgkmcnt({n})")
            if i == 4: p("s_barrier")
            for u in range(5):
                d = A2r[u]
                c = "0" if i == 0 else f"v[{d}:{d+3}]"
                p(f"v_mfma_f32_16x16x32_bf16 v[{d}:{d+3}], v[{b+4*u}:{b+4*u+3}], v[{x}:{x+3}], {c}")
            if i + 4 < 20:
                for l in oreads(i + 4): p(l)
    xloads(0)
    p("s_waitcnt lgkmcnt(0)")
    p(f"s_cmp_ge_u32 s56, {16 << 17}")
    p("s_cbranch_scc1 B_both")
    steps(0, 10, 9)
    poll(p, "B_pollo", 60, "s57", 0, "ge", 16 << 17)
    p("s_barrier")
    xloads(1)
    p("s_branch B_second")
    p.label("B_both")
    xloads(1)
    steps(0, 10, 19)
    p("s_barrier")
    p.label("B_second")
    steps(10, 20, 19)
    p("s_nop 3")
    for u in range(5):
        d = A2r[u]; b = B2 + 4 * u
        for r in range(4): p(f"v_fmac_f32 v{b+r}, v{d+r}, v23")
        p(f"v_cvt_pk_bf16_f32 v{XO+2*u}, v{b}, v{b+1}")
        p(f"v_cvt_pk_bf16_f32 v{XO+2*u+1}, v{b+2}, v{b+3}")
        p(f"buffer_store_dwordx2 v[{XO+2*u}:{XO+2*u+1}], v28, s[40:43], 0 offen offset:{32*u}")
    if O.get("span"):
        p("""
        s_waitcnt vmcnt(0)
        s_memrealtime s[66:67]
        s_load_dwordx2 s[68:69], s[0:1], 72
        s_waitcnt lgkmcnt(0)
        s_mov_b32 s72, s68
        s_mov_b32 s73, s69
        s_mov_b32 s74, 256
        s_mov_b32 s75, 0x00020000
        s_not_b32 s64, s64
        v_mov_b32 v60, s64
        v_mov_b32 v61, s66
        v_mov_b32 v62, 0
        s_mov_b64 exec, 1
        buffer_atomic_umax v60, v62, s[72:75], 0 offen offset:4 sc1
        buffer_atomic_umax v61, v62, s[72:75], 0 offen offset:8 sc1
        """)
    S.stamp()
    S.dump(10, 11, 28, region=0, vt=60)
    p("s_endpgm")

def gen_fused(p):
    name = "fused_kernel"
    head(p, name)
    p("s_cmp_ge_u32 s2, 512")
    p("s_cbranch_scc1 CODE_END")
    S = Stamps(p, base=82)
    S.stamp()
    if O.get("span"): p("s_memrealtime s[64:65]")
    p("s_load_dwordx4 s[4:7], s[0:1], 0")
    p("s_load_dwordx4 s[8:11], s[0:1], 72")
    p("""
    v_lshrrev_b32 v1, 6, v0
    v_and_b32 v2, 63, v0
    s_cmp_ge_u32 s2, 256
    v_readfirstlane_b32 s28, v1
    s_cbranch_scc1 B_role
    s_setprio 1
    """)
    n0 = S.n
    if O.get("split"):
        gen_params_a(p)
        gen_qkv(p, S)
    else:
        gen_qkv1(p, S)
    gen_att(p, S)
    p.raw(".p2align 6")
    p.label("B_role")
    S.n = n0
    gen_b(p, S)
    return kd(name, NVGPR), f"; @launch kernel={name} grid=(512,1,1) block=(256,1,1) lds=81920"
```

```python
from common import *
import common
from att import S0, NM, OO, PP, QA, QB, QT, KM, KT, VV, NVGPR, LTHRESH, BIG, m2b

O = common.OPT
KNAME = "gated_mix__mha_block__swiglu_ffn__prompt_kernel"

def emit(p, gs):
    for g in gs:
        for l in g: p(l)

def flag_srd(p):
    srd_off(p, 60, 10, 11, hex(WS_F), 0x20000)

def poll(p, lab, srdn, off_s, imm, cmp, target, sleep=2, limit=1 << 20):
    p(f"""
    s_cmp_lg_u32 s28, 0
    s_cbranch_scc1 {lab}_done
    s_add_u32 s98, s{srdn}, {off_s}
    s_addc_u32 s99, s{srdn+1}, 0
    s_mov_b32 s59, 0
    """)
    p.label(lab)
    p(f"""
    s_load_dword s58, s[98:99], {imm} glc
    s_add_u32 s59, s59, 1
    s_waitcnt lgkmcnt(0)
    s_cmp_{cmp}_u32 s58, {target}
    s_cbranch_scc1 {lab}_done
    s_cmp_gt_u32 s59, {limit}
    s_cbranch_scc1 {lab}_done
    s_sleep {sleep}
    s_branch {lab}
    """)
    p.label(f"{lab}_done")

def vpoll_init(p, lab):
    srd(p, 52, 8, 9, 256)
    p(f"""
    s_cmp_lg_u32 s28, 0
    s_cbranch_scc1 {lab}_done
    v_mov_b32 v222, 0
    s_mov_b32 s59, 0
    """)
    p.label(lab)
    p(f"""
    buffer_load_dword v223, v222, s[52:55], 0 offen sc1
    s_add_u32 s59, s59, 1
    s_waitcnt vmcnt(0)
    v_readfirstlane_b32 s58, v223
    s_cmp_lg_u32 s58, 0
    s_cbranch_scc1 {lab}_done
    s_cmp_gt_u32 s59, 0x100000
    s_cbranch_scc1 {lab}_done
    s_sleep 8
    s_branch {lab}
    """)
    p.label(f"{lab}_done")

def sig_lines(lab, line_s, n, imm=0):
    out = ["s_cmp_lg_u32 s28, 0", f"s_cbranch_scc1 {lab}", f"s_lshl_b32 s58, {line_s}, 8", "s_add_u32 s100, s60, s58", "s_addc_u32 s101, s61, 0", "s_mov_b32 s95, 0x20000"]
    out += [f"s_atomic_add s95, s[100:101], {256*k + imm}" for k in range(n)]
    out.append(f"{lab}:")
    return out
def signal(p, lab, line_s, n, imm=0):
    for l in sig_lines(lab, line_s, n, imm): p(l)

def aux_prefetch(p, lo, hi, idx_s, srdn, vtmp):
    if not O.get("aux"): return
    srd(p, srdn, lo, hi, 640 * 1536 * 2)
    p(f"""
    s_mul_i32 s58, {idx_s}, 122880
    v_lshlrev_b32 v{vtmp}, 4, v0
    v_add_u32 v{vtmp}, s58, v{vtmp}
    """)
    for i in range(30):
        p(f"s_mov_b32 s58, {4096*i}")
        p(f"buffer_load_dwordx4 v[216:219], v{vtmp}, s[{srdn}:{srdn+3}], s58 offen")

STRADDLE = 0x12481248
def mod10(p, d, t):
    p(f"""
    s_cmp_ge_u32 {d}, 10
    s_cselect_b32 {t}, 10, 0
    s_sub_u32 {d}, {d}, {t}
    """)
def gen_params_a(p):
    p("""
    s_and_b32 s24, s2, 7
    s_lshr_b32 s25, s2, 3
    s_lshr_b32 s29, s24, 1             ; x/2
    s_and_b32 s30, s24, 1              ; x%2
    s_cmp_ge_u32 s25, 30
    s_cbranch_scc1 A_gate
    s_add_u32 s48, s2, 256
    s_mov_b32 s56, 136
    s_cmp_ge_u32 s25, 20
    s_cbranch_scc1 A_kv
    s_mul_i32 s31, s29, 20
    s_add_u32 s31, s31, s25            ; i
    s_lshr_b32 s27, s31, 3
    s_and_b32 s31, s31, 7
    s_lshl_b32 s26, s30, 1
    s_add_u32 s26, s26, s31
    s_mul_i32 s32, s30, 6
    s_add_u32 s32, s32, s31
    s_add_u32 s32, s32, 2
    s_cmp_lt_u32 s31, 2
    s_cselect_b32 s26, s26, s32        ; mt
    s_lshr_b32 s32, s25, 3
    s_lshl_b32 s32, s32, 1
    s_mov_b32 s38, s31
    s_branch A_par
    A_kv:
    s_sub_u32 s32, s25, 20
    s_and_b32 s31, s32, 1
    s_lshr_b32 s32, s32, 1
    s_lshl_b32 s26, s30, 1
    s_add_u32 s26, s26, s31
    s_mul_i32 s27, s29, 5
    s_add_u32 s27, s27, s32
    s_add_u32 s27, s27, 10
    s_mul_i32 s38, s31, 5
    A_par:
    s_lshl_b32 s32, s32, 1
    s_add_u32 s38, s38, s32
    """)
def gen_params_b(p):
    p("""
    s_lshr_b32 s29, s24, 1
    s_and_b32 s30, s24, 1
    s_mul_i32 s32, s25, 43
    s_lshr_b32 s32, s32, 8             ; j/6
    s_mul_i32 s31, s32, 6
    s_sub_u32 s31, s25, s31            ; j%6
    s_mul_i32 s26, s30, 6
    s_add_u32 s26, s26, s31
    s_add_u32 s26, s26, 4
    s_mul_i32 s27, s29, 5
    s_add_u32 s27, s27, s32
    s_add_u32 s27, s27, 10
    s_lshl_b32 s38, s32, 1
    s_add_u32 s38, s38, s31
    s_mov_b32 s48, 200
    s_mov_b32 s56, 104
    """)
def gen_qkv(p, S):
    p.label("QKV_tile")
    mod10(p, "s38", "s39")
    p("""
    s_lshl_b32 s29, s26, 7
    s_lshl_b32 s30, s28, 5
    s_add_u32 s30, s30, s29
    v_lshrrev_b32 v101, 3, v2
    v_and_b32 v102, 7, v2
    v_lshrrev_b32 v103, 1, v101
    v_xor_b32 v102, v102, v103
    v_lshlrev_b32 v102, 4, v102
    v_add_u32 v101, s30, v101
    v_mul_u32_u24 v101, 1280, v101
    v_add_u32 v99, v101, v102
    v_xor_b32 v100, 64, v99
    v_add_u32 v100, 10240, v100
    s_lshl_b32 s31, s28, 12
    v_lshrrev_b32 v101, 2, v2
    s_lshl_b32 s32, s28, 4
    v_add_u32 v101, s32, v101
    v_mul_u32_u24 v101, 3840, v101
    v_and_b32 v102, 3, v2
    v_lshlrev_b32 v102, 4, v102
    s_lshl_b32 s32, s27, 7
    v_add3_u32 v104, v101, v102, s32
    s_lshl_b32 s32, s28, 11
    s_add_u32 s32, s32, 49152
    s_mov_b32 s37, s38
    s_waitcnt lgkmcnt(0)
    """)
    srd(p, 12, 4, 5, 2048 * 640 * 2)
    srd(p, 16, 6, 7, 640 * 1920 * 2)
    def item(it):
        if it[0] == "x":
            _, sg, hf = it
            base = (sg % 3) * 16384 + hf * 2048
            a = "s_lshl_b32 s33, s38, 7" if hf == 0 else "s_add_u32 s33, s33, 20480"
            b = ["s_nop 0"] if hf == 0 else ["s_add_u32 s38, s38, 1", "s_cmp_eq_u32 s38, 10", "s_cselect_b32 s38, 0, s38"]
            return [[f"s_add_u32 m0, s31, {base}", a, "buffer_load_dwordx4 v99, s[12:15], s33 offen lds"],
                    [f"s_add_u32 m0, s31, {base + 1024}"] + b + ["buffer_load_dwordx4 v100, s[12:15], s33 offen lds"]]
        _, h = it
        base = (h % 4) * 8192
        return [[f"s_add_u32 m0, s32, {base}", "s_mul_i32 s34, s37, 245760", "buffer_load_dwordx4 v104, s[16:19], s34 offen lds"],
                [f"s_add_u32 m0, s32, {base + 960}", "s_add_u32 s37, s37, 1", "s_cmp_eq_u32 s37, 10", "s_cselect_b32 s37, 0, s37",
                 "buffer_load_dwordx4 v104, s[16:19], s34 offen offset:64 lds"]]
    order = []
    for h in range(10): order += [("w", h), ("x", h, 0), ("x", h, 1)]
    def need(it): return it[1]
    def free_after(it): return it[1] - 3 if it[0] == "x" else it[1] - 4
    NPRO = int(O.get("qpro", 6))
    for it in order[:NPRO]: emit(p, item(it))
    p("""
    s_and_b32 s35, s28, 1              ; wm
    s_lshr_b32 s36, s28, 1             ; wn
    v_and_b32 v101, 31, v2               ; l32
    v_lshrrev_b32 v102, 5, v2            ; hh
    v_lshrrev_b32 v103, 1, v101
    v_and_b32 v103, 7, v103
    v_xor_b32 v103, v103, v102
    v_lshlrev_b32 v103, 4, v103
    s_lshl_b32 s40, s35, 13
    v_lshlrev_b32 v105, 7, v101
    v_add3_u32 v106, v105, v103, s40
    v_xor_b32 v107, 32, v106
    v_xor_b32 v108, 64, v106
    v_xor_b32 v109, 96, v106
    v_bfe_u32 v105, v2, 2, 2
    v_lshlrev_b32 v103, 6, v105
    v_bfe_u32 v105, v2, 4, 1
    v_lshl_add_u32 v103, v105, 5, v103
    v_lshl_add_u32 v103, v102, 9, v103
    s_lshl_b32 s40, s36, 10
    s_add_u32 s40, s40, 49152
    v_add_u32 v110, s40, v103
    s_cmp_ge_u32 s27, 10
    s_cselect_b32 s39, 1, 0
    s_cmp_ge_u32 s27, 20
    s_cselect_b32 s39, 2, s39          ; section
    s_mul_i32 s40, s39, 10
    s_sub_u32 s45, s27, s40            ; block within the section
    s_lshl_b32 s40, s45, 6
    s_lshl_b32 s41, s36, 5
    s_add_u32 s40, s40, s41            ; nbase
    s_lshr_b32 s41, s26, 1
    s_mul_i32 s41, s41, 20480
    s_and_b32 s42, s26, 1
    s_lshl_b32 s42, s42, 1
    s_add_u32 s42, s42, s35            ; pair
    s_cmp_eq_u32 s39, 0
    s_cselect_b32 s43, {WS_Q}, {WS_KV}
    s_mov_b32 s44, 163840
    ; counters of this tile: heads h0..h0+3
    s_mul_i32 s46, s45, 3277
    s_lshr_b32 s46, s46, 10
    s_add_u32 s46, s46, s56
    v_mov_b32 v144, 0x40000000
    """.replace("{WS_Q}", hex(WS_Q)).replace("{WS_KV}", hex(WS_KV)))
    srd_off(p, 20, 10, 11, "s43", 32 * HEAD_STRIDE)
    flag_srd(p)
    srd(p, 52, 8, 9, 256)
    p("v_mov_b32 v114, 0")
    p("s_cmp_eq_u32 s39, 2")
    p("s_cbranch_scc1 A_vpath")
    ACC = 184; FR = 32; OFF = 128
    def reads(t):
        sg, ks = divmod(t, 4)
        b = FR + 12 * (t % 4)
        out = []
        for tm in range(2):
            out.append(f"ds_read_b128 v[{b+4*tm}:{b+4*tm+3}], v{106+ks} offset:{(sg % 3)*16384 + tm*4096}")
        for a in range(2):
            r = b + 8 + 2 * a
            out.append(f"ds_read_b64_tr_b16 v[{r}:{r+1}], v110 offset:{(sg % 4)*8192 + ks*2048 + a*256}")
        return out
    def mfmas(t, vrole):
        b = FR + 12 * (t % 4)
        out = []
        for tm in range(2):
            x = b + 4 * tm; w = b + 8
            a_, b_ = (x, w) if vrole else (w, x)
            out.append(mfma32(ACC + 16 * tm, a_, b_, "0" if t == 0 else None))
        return out
    def mainloop(vrole):
        log = [need(it) for it in order[:NPRO] for _ in range(2)]
        nxt = NPRO
        def younger(h):
            assert log.count(h) == 6
            last = max(i for i, e in enumerate(log) if e <= h)
            return len(log) - 1 - last
        p(f"s_waitcnt vmcnt({younger(0)})")
        p("s_barrier")
        for l in reads(0) + reads(1): p(l)
        for u in range(20):
            sg, k2 = divmod(u, 2)
            mf = mfmas(2 * u, vrole) + mfmas(2 * u + 1, vrole)
            rd = (reads(2 * u + 2) + reads(2 * u + 3)) if u < 19 else []
            extra = []
            if k2 == 1 and u < 19:
                p(f"s_waitcnt vmcnt({younger(sg + 1)}) lgkmcnt(0)")
                p("s_barrier")
                done = sg
            else:
                p("s_waitcnt lgkmcnt(0)")
                done = sg - 1
            cnt = 0
            while nxt < len(order) and free_after(order[nxt]) <= done and cnt < 2:
                extra += item(order[nxt]); log += [need(order[nxt])] * 2; nxt += 1; cnt += 1
            if 2 * u == int(O.get("b2start", 16)):
                lab = "A_go" + ("v" if vrole else "q")
                extra.append(["s_cmp_ge_u32 s2, 256", f"s_cbranch_scc1 {lab}"] + sig_lines(lab, "s48", 1))
            for l in rd[0:3]: p(l)
            fill = [rd[3:6], rd[6:8], sum(extra[:2], []), sum(extra[2:], [])]
            for i, m in enumerate(mf):
                p(m)
                for l in fill[i]: p(l)
        S.stamp()
        p("buffer_load_dword v115, v114, s[52:55], 0 offen sc1")
    p("""
    v_and_b32 v103, 1, v2
    v_lshl_add_u32 v110, v103, 4, v110
    v_bfe_u32 v103, v2, 1, 1
    v_lshl_add_u32 v110, v103, 3, v110
    v_lshlrev_b32 v122, 4, v101
    v_add_u32 v122, s41, v122
    s_lshl_b32 s56, s42, 11
    s_lshl_b32 s57, s42, 9
    s_add_u32 s57, s57, 8192
    s_lshr_b32 s47, s40, 3
    v_add_u32 v123, s47, v102
    s_lshl_b32 s47, s44, 1
    """)
    MK = [40, 42]
    for k in range(2):
        m = MK[k]
        p(f"""
        v_add_u32 v124, {2*k}, v123
        v_mul_u32_u24 v125, 13108, v124
        v_lshrrev_b32 v125, 16, v125
        v_mul_u32_u24 v126, 5, v125
        v_sub_u32 v126, v124, v126
        v_mul_lo_u32 v125, v125, s47
        v_add_u32 v125, v125, v122
        v_cmp_lt_u32 vcc, 2, v126
        v_mov_b32 v124, s44
        v_add_u32 v127, 1, v126
        v_cndmask_b32 v124, 0, v124, vcc
        v_cndmask_b32 v127, v126, v127, vcc
        v_and_b32 v127, 1, v127
        v_lshl_add_u32 v124, v127, 9, v124
        v_add3_u32 v124, v124, v125, s56
        v_cmp_eq_u32 s[{m}:{m+1}], 2, v126
        v_add_u32 v125, s57, v125
        s_nop 0
        v_cndmask_b32 v{OFF+k}, v124, v144, s[{m}:{m+1}]
        v_cndmask_b32 v{OFF+4+k}, v144, v125, s[{m}:{m+1}]
        """)
    p("s_cmp_eq_u32 s39, 0")
    p(f"s_cselect_b32 s56, {hex(QSCALE)}, 1.0")
    p("s_mov_b32 s57, s56")
    n0 = S.n
    mainloop(False)
    p("s_nop 7")
    p("s_nop 1")
    for i in range(16):
        p(f"v_pk_mul_f32 v[{ACC+2*i}:{ACC+2*i+1}], v[{ACC+2*i}:{ACC+2*i+1}], s[56:57]")
    for k in range(2):
        for tm in range(2):
            d = ACC + 16 * tm + 8 * k
            t0 = FR + 4 * (2 * k + tm)
            for i in range(4): p(f"v_cvt_pk_bf16_f32 v{t0+i}, v{d+2*i}, v{d+2*i+1}")
            p(f"buffer_store_dwordx4 v[{t0}:{t0+3}], v{OFF+k}, s[20:23], 0 offen offset:{1024*tm} sc1")
    for k in range(2):
        a = FR + 8 * k; b = a + 4
        t = 148 + 8 * k; m = MK[k]
        p(f"s_cmp_eq_u64 s[{m}:{m+1}], 0")
        p(f"s_cbranch_scc1 A_notail{k}")
        for i, src in enumerate((a, a + 1, b, b + 1, a + 2, a + 3, b + 2, b + 3)):
            p(f"v_mov_b32 v{t+i}, v{src}")
        p(f"buffer_store_dwordx4 v[{t}:{t+3}], v{OFF+4+k}, s[20:23], 0 offen sc1")
        p(f"buffer_store_dwordx4 v[{t+4}:{t+7}], v{OFF+4+k}, s[20:23], s44 offen sc1")
        p.label(f"A_notail{k}")
    p("s_branch A_publish")
    p.label("A_vpath")
    p(f"""
    v_and_b32 v103, 3, v2
    v_lshl_add_u32 v110, v103, 3, v110
    s_mul_i32 s45, s42, 2560
    s_add_u32 s45, s45, s41
    s_add_u32 s45, s45, 10240
    v_mul_u32_u24 v122, 320, v102
    v_add_u32 v122, s45, v122
    v_add_u32 v124, s40, v101
    v_mul_u32_u24 v125, 3277, v124
    v_lshrrev_b32 v125, 16, v125
    v_mul_u32_u24 v126, 20, v125
    v_sub_u32 v126, v124, v126
    v_mul_lo_u32 v125, v125, s44
    v_lshl_add_u32 v126, v126, 4, v122
    v_add_u32 v{OFF}, v125, v126
    """)
    S.n = n0
    mainloop(True)
    p("s_nop 7")
    p("s_nop 2")
    for tm in range(2):
        d = ACC + 16 * tm
        for half in range(2):
            t0 = FR + 4 * (2 * tm + half)
            for i in range(4):
                p(f"v_cvt_pk_bf16_f32 v{t0+i}, v{d+8*half+2*i}, v{d+8*half+2*i+1}")
            p(f"buffer_store_dwordx4 v[{t0}:{t0+3}], v{OFF}, s[20:23], 0 offen offset:{(2*tm+half)*640} sc1")
    p("s_branch A_publish")
    p.label("A_gate")
    p("s_load_dwordx2 s[34:35], s[0:1], 56")
    p("""
    s_lshl_b32 s31, s29, 1
    s_add_u32 s31, s31, s25
    s_sub_u32 s31, s31, 30
    s_lshl_b32 s26, s30, 1
    s_add_u32 s26, s26, s31
    s_mul_i32 s32, s30, 6
    s_add_u32 s32, s32, s31
    s_add_u32 s32, s32, 2
    s_cmp_lt_u32 s31, 2
    s_cselect_b32 s26, s26, s32        ; mt
    s_lshl_b32 s29, s26, 7
    s_lshl_b32 s30, s28, 5
    s_add_u32 s30, s30, s29
    s_waitcnt lgkmcnt(0)
    """)
    srd(p, 12, 4, 5, 2048 * 640 * 2)
    srd(p, 16, 34, 35, 1280)
    srd_off(p, 20, 10, 11, hex(WS_G), 8192)
    flag_srd(p)
    p("""
    v_and_b32 v5, 15, v2
    v_lshrrev_b32 v6, 4, v2
    v_lshlrev_b32 v7, 4, v5
    v_add_u32 v8, s30, v6
    v_mul_u32_u24 v9, 1280, v8
    v_add_u32 v9, v9, v7
    v_lshlrev_b32 v8, 2, v8
    """)
    GW = 20; XR = 40; NR = 8; Z = 200
    for j in range(5):
        p(f"buffer_load_dwordx4 v[{GW+4*j}:{GW+4*j+3}], v7, s[16:19], 0 offen offset:{256*j}")
    for rg in range(NR):
        p(f"s_mov_b32 s33, {rg*4*1280}")
        for j in range(5):
            r = XR + 20 * rg + 4 * j
            p(f"buffer_load_dwordx4 v[{r}:{r+3}], v9, s[12:15], s33 offen offset:{256*j}")
    for rg in range(NR): p(f"v_mov_b32 v{Z+rg}, 0")
    for rg in range(NR):
        p(f"s_waitcnt vmcnt({5*(NR-1-rg)})")
        for j in range(20):
            p(f"v_dot2_f32_bf16 v{Z+rg}, v{XR+20*rg+j}, v{GW+j}, v{Z+rg}")
    p("s_nop 3")
    for sh in (8, 4, 2, 1):
        for rg in range(NR):
            p(f"v_add_f32_dpp v{Z+rg}, v{Z+rg}, v{Z+rg} row_ror:{sh} row_mask:0xf bank_mask:0xf")
    p(f"s_mov_b32 s34, {hex(f2u(-math.log2(math.e)))}")
    for rg in range(NR): p(f"v_mul_f32 v{Z+rg}, s34, v{Z+rg}")
    for rg in range(NR): p(f"v_exp_f32 v{Z+rg}, v{Z+rg}")
    for rg in range(NR): p(f"v_add_f32 v{Z+rg}, 1.0, v{Z+rg}")
    for rg in range(NR): p(f"v_rcp_f32 v{Z+rg}, v{Z+rg}")
    p("v_cmp_eq_u32 vcc, 0, v5")
    p("s_and_saveexec_b64 s[56:57], vcc")
    for rg in range(NR):
        p(f"buffer_store_dword v{Z+rg}, v8, s[20:23], 0 offen offset:{16*rg} sc1")
    p("s_mov_b64 exec, -1")
    p("s_lshl_b32 s46, s26, 1")
    p("s_add_u32 s46, s46, 32")
    p("s_waitcnt vmcnt(0)")
    p("s_barrier")
    vpoll_init(p, "G_init")
    signal(p, "G_sig", "s46", 2)
    p("s_branch AT_start")
    p.label("A_publish")
    p("s_waitcnt vmcnt(0)")
    p("v_readfirstlane_b32 s49, v115")
    p("s_barrier")
    p("s_cmp_lg_u32 s49, 0")
    p("s_cbranch_scc1 A_init_done")
    vpoll_init(p, "A_init")
    signal(p, "A_sig", "s46", 4)
    S.stamp()
    p("s_cmp_ge_u32 s2, 256")
    p("s_cbranch_scc1 B_after")
    p.label("AT_start")

def gen_qkv1(p, S):
    p("""
    s_and_b32 s24, s2, 7
    s_lshr_b32 s25, s2, 3
    s_and_b32 s26, s24, 3
    s_lshl_b32 s26, s26, 2
    s_and_b32 s27, s25, 3
    s_add_u32 s26, s26, s27            ; mt
    s_lshr_b32 s27, s24, 2
    s_lshl_b32 s27, s27, 3
    s_lshr_b32 s29, s25, 2
    s_add_u32 s27, s27, s29            ; nt
    s_lshl_b32 s29, s26, 7             ; 128*mt
    s_lshl_b32 s30, s28, 5
    s_add_u32 s30, s30, s29
    s_cmp_eq_u32 s27, 15
    s_cbranch_scc1 A_gate
    v_lshrrev_b32 v5, 3, v2
    v_and_b32 v6, 7, v2
    v_lshrrev_b32 v7, 1, v5
    v_xor_b32 v6, v6, v7
    v_lshlrev_b32 v6, 4, v6
    v_add_u32 v5, s30, v5
    v_mul_u32_u24 v5, 1280, v5
    v_add_u32 v3, v5, v6
    v_xor_b32 v4, 64, v3
    v_add_u32 v4, 10240, v4
    s_lshl_b32 s31, s28, 12
    s_and_b32 s35, s28, 1              ; wm
    s_lshr_b32 s36, s28, 1             ; wn
    v_lshrrev_b32 v5, 2, v2
    s_lshl_b32 s32, s36, 4
    v_add_u32 v5, s32, v5
    v_mul_u32_u24 v5, 3840, v5
    v_and_b32 v6, 3, v2
    v_lshlrev_b32 v6, 4, v6
    s_lshl_b32 s32, s27, 8
    s_lshl_b32 s33, s35, 7
    s_add_u32 s32, s32, s33
    v_add3_u32 v8, v5, v6, s32
    s_lshl_b32 s32, s28, 11
    s_add_u32 s32, s32, 49152
    s_and_b32 s38, s25, 3
    s_mul_i32 s38, s38, 3
    s_lshr_b32 s39, s25, 2
    s_add_u32 s38, s38, s39
    s_cmp_ge_u32 s38, 10
    s_cselect_b32 s39, 10, 0
    s_sub_u32 s38, s38, s39
    s_lshl_b32 s37, s38, 1
    s_waitcnt lgkmcnt(0)
    """)
    srd(p, 12, 4, 5, 2048 * 640 * 2)
    srd(p, 16, 6, 7, 640 * 1920 * 2)
    def item(it):
        if it[0] == "x":
            _, sg, hf = it
            base = (sg % 3) * 16384 + hf * 2048
            a = "s_lshl_b32 s33, s38, 7" if hf == 0 else "s_add_u32 s33, s33, 20480"
            b = ["s_nop 0"] if hf == 0 else ["s_add_u32 s38, s38, 1", "s_cmp_eq_u32 s38, 10", "s_cselect_b32 s38, 0, s38"]
            return [[f"s_add_u32 m0, s31, {base}", a, "buffer_load_dwordx4 v3, s[12:15], s33 offen lds"],
                    [f"s_add_u32 m0, s31, {base + 1024}"] + b + ["buffer_load_dwordx4 v4, s[12:15], s33 offen lds"]]
        _, h = it
        base = (h % 4) * 8192
        return [[f"s_add_u32 m0, s32, {base}", "s_mul_i32 s34, s37, 122880", "buffer_load_dwordx4 v8, s[16:19], s34 offen lds"],
                [f"s_add_u32 m0, s32, {base + 960}", "s_add_u32 s37, s37, 1", "s_cmp_eq_u32 s37, 20", "s_cselect_b32 s37, 0, s37",
                 "buffer_load_dwordx4 v8, s[16:19], s34 offen offset:64 lds"]]
    order = []
    for h in range(20):
        if h % 2 == 0: order += [("x", h // 2, 0), ("x", h // 2, 1)]
        order.append(("w", h))
    def need(it): return 2 * it[1] if it[0] == "x" else it[1]
    def free_after(it): return 2 * (it[1] - 3) + 1 if it[0] == "x" else it[1] - 4
    NPRO = int(O.get("qpro", 7))
    if O.get("qst"): S.stamp()
    for n_, it in enumerate(order[:NPRO]):
        emit(p, item(it))
        if O.get("qst") and n_ == 2: S.stamp()
    if O.get("qst"): S.stamp()
    p("""
    v_and_b32 v5, 31, v2               ; l32
    v_lshrrev_b32 v6, 5, v2            ; hh
    v_lshrrev_b32 v7, 1, v5
    v_and_b32 v7, 7, v7
    v_xor_b32 v7, v7, v6
    v_lshlrev_b32 v7, 4, v7
    s_lshl_b32 s40, s35, 13
    v_lshlrev_b32 v9, 7, v5
    v_add3_u32 v10, v9, v7, s40
    v_xor_b32 v11, 32, v10
    v_xor_b32 v12, 64, v10
    v_xor_b32 v13, 96, v10
    v_bfe_u32 v9, v2, 2, 2
    v_lshlrev_b32 v7, 6, v9
    v_bfe_u32 v9, v2, 4, 1
    v_lshl_add_u32 v7, v9, 5, v7
    v_lshl_add_u32 v7, v6, 9, v7
    s_lshl_b32 s40, s36, 11
    s_add_u32 s40, s40, 49152
    v_add_u32 v14, s40, v7
    s_cmp_ge_u32 s27, 5
    s_cselect_b32 s39, 1, 0
    s_cmp_ge_u32 s27, 10
    s_cselect_b32 s39, 2, s39          ; section
    s_mul_i32 s40, s39, 5
    s_sub_u32 s45, s27, s40            ; nt'
    s_lshl_b32 s40, s45, 7
    s_lshl_b32 s41, s36, 6
    s_add_u32 s40, s40, s41            ; nbase
    s_lshr_b32 s41, s26, 1
    s_mul_i32 s41, s41, 20480
    s_and_b32 s42, s26, 1
    s_lshl_b32 s42, s42, 1
    s_add_u32 s42, s42, s35            ; pair
    s_cmp_eq_u32 s39, 0
    s_cselect_b32 s43, {WS_Q}, {WS_KV}
    s_mov_b32 s44, 163840
    s_mul_i32 s96, s45, 6554
    s_lshr_b32 s96, s96, 10            ; h0 = 128nt'/20 ; the tile feeds 7 heads (8 for nt' = 2)
    s_lshl_b32 s97, s39, 5
    s_add_u32 s96, s96, s97
    s_add_u32 s96, s96, 136
    s_mov_b32 s97, s45
    v_mov_b32 v144, 0x40000000
    v_mov_b32 v18, 0
    s_add_u32 s3, s2, 256
    """.replace("{WS_Q}", hex(WS_Q)).replace("{WS_KV}", hex(WS_KV)))
    srd_off(p, 20, 10, 11, "s43", 32 * HEAD_STRIDE)
    flag_srd(p)
    p("s_cmp_eq_u32 s39, 2")
    p("s_cbranch_scc1 A_vpath")
    ACC = 64; FR = 32; OFF = 128
    def reads(t):
        h, k2 = divmod(t, 2); sg, ks = divmod(t, 4)
        b = FR + 16 * (t % 2)
        out = []
        for tm in range(2):
            out.append(f"ds_read_b128 v[{b+4*tm}:{b+4*tm+3}], v{10+ks} offset:{(sg % 3)*16384 + tm*4096}")
        for tn in range(2):
            for a in range(2):
                r = b + 8 + 4 * tn + 2 * a
                out.append(f"ds_read_b64_tr_b16 v[{r}:{r+1}], v14 offset:{(h % 4)*8192 + k2*4096 + tn*1024 + a*256}")
        return out
    def mfmas(t, vrole):
        b = FR + 16 * (t % 2)
        out = []
        for tm in range(2):
            for tn in range(2):
                d = ACC + 16 * (2 * tm + tn)
                x = b + 4 * tm; w = b + 8 + 4 * tn
                a_, b_ = (x, w) if vrole else (w, x)
                out.append(mfma32(d, a_, b_, "0" if t == 0 else None))
        return out
    def mainloop(vrole, lab):
        log = [need(it) for it in order[:NPRO] for _ in range(2)]
        nxt = NPRO
        def younger(h):
            last = max(i for i, e in enumerate(log) if e <= h)
            return len(log) - 1 - last
        if O.get("qst"): S.stamp()
        p(f"s_waitcnt vmcnt({younger(0)})")
        p("s_barrier")
        if O.get("qst"): S.stamp(); S.off = True
        for l in reads(0): p(l)
        started = False
        for t in range(40):
            h, k2 = divmod(t, 2)
            mf = mfmas(t, vrole)
            rd = reads(t + 1) if t < 39 else []
            extra = []
            if k2 == 1 and t < 39:
                p(f"s_waitcnt vmcnt({younger(h + 1)}) lgkmcnt(0)")
                p("s_barrier")
                done = h
            else:
                p("s_waitcnt lgkmcnt(0)")
                done = h - 1
            cnt = 0
            while nxt < len(order) and free_after(order[nxt]) <= done and cnt < (2 if k2 == 1 else 1):
                extra += item(order[nxt]); log += [need(order[nxt])] * 2; nxt += 1; cnt += 1
            if t == 2 * int(O.get("bstart", 99)):
                extra.append(sig_lines("A_go" + lab, "s3", 1, 4))
            for l in rd[0:2]: p(l)
            fill = [rd[2:4], rd[4:6], sum(extra[:2], []), sum(extra[2:], [])]
            for i, m in enumerate(mf):
                p(m)
                for l in fill[i]: p(l)
        S.stamp()
        p("buffer_load_dword v19, v18, s[52:55], 0 offen sc1")
    srd(p, 52, 8, 9, 256)
    p("""
    v_and_b32 v7, 1, v2
    v_lshl_add_u32 v14, v7, 4, v14
    v_bfe_u32 v7, v2, 1, 1
    v_lshl_add_u32 v14, v7, 3, v14
    v_lshlrev_b32 v26, 4, v5
    v_add_u32 v26, s41, v26
    s_lshl_b32 s45, s42, 11
    s_lshl_b32 s46, s42, 9
    s_add_u32 s46, s46, 8192
    s_lshr_b32 s47, s40, 3
    v_add_u32 v27, s47, v6
    s_lshl_b32 s47, s44, 1
    """)
    MK = [40, 42, 48, 50]
    p("s_mov_b32 s56, s45"); p("s_mov_b32 s57, s46")
    for k in range(4):
        m = MK[k]
        p(f"""
        v_add_u32 v28, {2*k}, v27
        v_mul_u32_u24 v29, 13108, v28
        v_lshrrev_b32 v29, 16, v29
        v_mul_u32_u24 v30, 5, v29
        v_sub_u32 v30, v28, v30
        v_mul_lo_u32 v29, v29, s47
        v_add_u32 v29, v29, v26
        v_cmp_lt_u32 vcc, 2, v30
        v_mov_b32 v28, s44
        v_add_u32 v31, 1, v30
        v_cndmask_b32 v28, 0, v28, vcc
        v_cndmask_b32 v31, v30, v31, vcc
        v_and_b32 v31, 1, v31
        v_lshl_add_u32 v28, v31, 9, v28
        v_add3_u32 v28, v28, v29, s56
        v_cmp_eq_u32 s[{m}:{m+1}], 2, v30
        v_add_u32 v29, s57, v29
        s_nop 0
        v_cndmask_b32 v{OFF+k}, v28, v144, s[{m}:{m+1}]
        v_cndmask_b32 v{OFF+4+k}, v144, v29, s[{m}:{m+1}]
        """)
    n0 = S.n
    mainloop(False, "Aq")
    p("s_cmp_lg_u32 s39, 0")
    p("s_cbranch_scc1 A_noscale")
    p(f"s_mov_b32 s56, {hex(QSCALE)}")
    p(f"s_mov_b32 s57, {hex(QSCALE)}")
    p("s_nop 6")
    for i in range(32):
        p(f"v_pk_mul_f32 v[{ACC+2*i}:{ACC+2*i+1}], v[{ACC+2*i}:{ACC+2*i+1}], s[56:57]")
    p.label("A_noscale")
    p("s_nop 7")
    p("s_nop 1")
    for k in range(4):
        tn, half = divmod(k, 2)
        for tm in range(2):
            d = ACC + 16 * (2 * tm + tn) + 8 * half
            t0 = FR + 4 * (2 * k + tm)
            for i in range(4): p(f"v_cvt_pk_bf16_f32 v{t0+i}, v{d+2*i}, v{d+2*i+1}")
            p(f"buffer_store_dwordx4 v[{t0}:{t0+3}], v{OFF+k}, s[20:23], 0 offen offset:{1024*tm} sc1")
    for k in range(4):
        a = FR + 8 * k; b = a + 4
        t = 148 + 8 * k; m = MK[k]
        p(f"s_cmp_eq_u64 s[{m}:{m+1}], 0")
        p(f"s_cbranch_scc1 A_notail{k}")
        for i, src in enumerate((a, a + 1, b, b + 1, a + 2, a + 3, b + 2, b + 3)):
            p(f"v_mov_b32 v{t+i}, v{src}")
        p(f"buffer_store_dwordx4 v[{t}:{t+3}], v{OFF+4+k}, s[20:23], 0 offen sc1")
        p(f"buffer_store_dwordx4 v[{t+4}:{t+7}], v{OFF+4+k}, s[20:23], s44 offen sc1")
        p.label(f"A_notail{k}")
    p("s_branch A_publish")
    p.label("A_vpath")
    srd(p, 52, 8, 9, 256)
    p("""
    v_and_b32 v7, 3, v2
    v_lshl_add_u32 v14, v7, 3, v14
    s_mul_i32 s45, s42, 2560
    s_add_u32 s45, s45, s41
    s_add_u32 s45, s45, 10240
    v_mul_u32_u24 v26, 320, v6
    v_add_u32 v26, s45, v26
    v_add_u32 v27, s40, v5
    """)
    for tn in range(2):
        p(f"""
        v_add_u32 v28, {32*tn}, v27
        v_mul_u32_u24 v29, 3277, v28
        v_lshrrev_b32 v29, 16, v29
        v_mul_u32_u24 v30, 20, v29
        v_sub_u32 v30, v28, v30
        v_mul_lo_u32 v29, v29, s44
        v_lshl_add_u32 v30, v30, 4, v26
        v_add_u32 v{OFF+tn}, v29, v30
        """)
    S.n = n0; S.off = False
    mainloop(True, "Av")
    p("s_nop 7")
    p("s_nop 2")
    for tm in range(2):
        for tn in range(2):
            d = ACC + 16 * (2 * tm + tn)
            for half in range(2):
                t0 = FR + 4 * (4 * tm + 2 * tn + half)
                for i in range(4):
                    p(f"v_cvt_pk_bf16_f32 v{t0+i}, v{d+8*half+2*i}, v{d+8*half+2*i+1}")
                p(f"buffer_store_dwordx4 v[{t0}:{t0+3}], v{OFF+tn}, s[20:23], 0 offen offset:{(2*tm+half)*640} sc1")
    p("s_branch A_publish")
    p.label("A_gate")
    p("s_load_dwordx2 s[34:35], s[0:1], 56")
    p("s_waitcnt lgkmcnt(0)")
    srd(p, 12, 4, 5, 2048 * 640 * 2)
    srd(p, 16, 34, 35, 1280)
    srd_off(p, 20, 10, 11, hex(WS_G), 8192)
    flag_srd(p)
    srd(p, 52, 8, 9, 256)
    p("""
    v_and_b32 v5, 15, v2
    v_lshrrev_b32 v6, 4, v2
    v_lshlrev_b32 v7, 4, v5
    v_add_u32 v8, s30, v6
    v_mul_u32_u24 v9, 1280, v8
    v_add_u32 v9, v9, v7
    v_lshlrev_b32 v8, 2, v8
    """)
    GW = 20; XR = 40; NR = 8; Z = 200
    for j in range(5):
        p(f"buffer_load_dwordx4 v[{GW+4*j}:{GW+4*j+3}], v7, s[16:19], 0 offen offset:{256*j}")
    for rg in range(NR):
        p(f"s_mov_b32 s33, {rg*4*1280}")
        for j in range(5):
            r = XR + 20 * rg + 4 * j
            p(f"buffer_load_dwordx4 v[{r}:{r+3}], v9, s[12:15], s33 offen offset:{256*j}")
    for rg in range(NR): p(f"v_mov_b32 v{Z+rg}, 0")
    for rg in range(NR):
        p(f"s_waitcnt vmcnt({5*(NR-1-rg)})")
        for j in range(20):
            p(f"v_dot2_f32_bf16 v{Z+rg}, v{XR+20*rg+j}, v{GW+j}, v{Z+rg}")
    p("s_nop 3")
    for sh in (8, 4, 2, 1):
        for rg in range(NR):
            p(f"v_add_f32_dpp v{Z+rg}, v{Z+rg}, v{Z+rg} row_ror:{sh} row_mask:0xf bank_mask:0xf")
    p(f"s_mov_b32 s34, {hex(f2u(-math.log2(math.e)))}")
    for rg in range(NR): p(f"v_mul_f32 v{Z+rg}, s34, v{Z+rg}")
    for rg in range(NR): p(f"v_exp_f32 v{Z+rg}, v{Z+rg}")
    for rg in range(NR): p(f"v_add_f32 v{Z+rg}, 1.0, v{Z+rg}")
    for rg in range(NR): p(f"v_rcp_f32 v{Z+rg}, v{Z+rg}")
    p("v_cmp_eq_u32 vcc, 0, v5")
    p("s_and_saveexec_b64 s[50:51], vcc")
    for rg in range(NR):
        p(f"buffer_store_dword v{Z+rg}, v8, s[20:23], 0 offen offset:{16*rg} sc1")
    p("s_mov_b64 exec, -1")
    p("s_lshl_b32 s46, s26, 1")
    p("s_add_u32 s46, s46, 32")
    p("s_waitcnt vmcnt(0)")
    p("s_barrier")
    vpoll_init(p, "G_init")
    signal(p, "G_sig", "s46", 2)
    p("s_branch AT_start")
    p.label("A_publish")
    if O.get("f1go", "0") == "3": signal(p, "A_go3", "s3", 1, 4)
    p("s_waitcnt vmcnt(0)")
    p("v_readfirstlane_b32 s49, v19")
    p("s_barrier")
    p("s_cmp_lg_u32 s49, 0")
    p("s_cbranch_scc1 A_init_done")
    vpoll_init(p, "A_init")
    L = sig_lines("A_sig", "s96", 8)
    for l in L[:-2] + ["s_cmp_lg_u32 s97, 2", "s_cbranch_scc1 A_sig"] + L[-2:]: p(l)
    if O.get("f1go", "0") == "4": signal(p, "A_go4", "s3", 1, 4)
    S.stamp()
    p.label("AT_start")

def gen_att(p, S):
    pre = "AT"
    p("""
    s_and_b32 s24, s2, 31              ; head
    s_lshr_b32 s25, s2, 5              ; qb
    v_and_b32 v3, 31, v0               ; l32
    v_bfe_u32 v4, v0, 5, 1             ; hh
    s_mul_i32 s26, s24, 163840
    s_mul_i32 s27, s25, 20480
    s_add_u32 s27, s27, s26
    v_lshlrev_b32 v5, 4, v2
    v_lshlrev_b32 v6, 4, v3
    s_mul_i32 s29, s28, 5120
    v_add_u32 v8, s29, v5
    v_add_u32 v9, 0x1000, v8
    s_lshl_b32 s30, s28, 11
    v_add_u32 v10, s30, v5
    s_lshl_b32 s30, s28, 9
    s_add_u32 s30, s30, 8192
    v_lshl_add_u32 v11, v4, 3, v6
    v_add_u32 v11, s30, v11
    s_mov_b32 s44, 0                   ; 0 = first attempt, 1 = exact max known
    s_mov_b32 s46, 0x000fffff
    s_mov_b32 s47, 0x000fffff
    s_bitcmp1_b32 {STR}, s24      ; heads that come from two column blocks
    s_cselect_b32 s50, {T2}, {T1}
    s_lshl_b32 s50, s50, 17
    s_lshl_b32 s43, s24, 8
    s_add_u32 s51, s43, 0x6800         ; counter of the later keys (line 104 + head)
    v_mov_b32 v220, s51
    s_add_u32 s51, s2, 256
    """.replace("{STR}", "0x12481248" if O.get("split") else "0x02081040").replace("{T2}", "48" if O.get("split") else "96").replace("{T1}", "24" if O.get("split") else "48"))
    p(f"s_add_u32 s27, s27, {hex(WS_Q)}")
    srd_off(p, 16, 10, 11, "s27", CHUNK)
    srd_off(p, 12, 10, 11, "s26", HEAD_STRIDE)
    srd_off(p, 32, 10, 11, hex(WS_O), 2048 * 640 * 2)
    def dma_half(h):
        out = []
        if h == 0:
            out.append(["s_add_u32 m0, s37, s29", "s_nop 0", "buffer_load_dwordx4 v8, s[12:15], s36 offen sc1 lds"])
            so = "s36"
        else:
            out.append([f"s_add_u32 m0, m0, {20480-4096}", "s_add_u32 s45, s36, 20480", "buffer_load_dwordx4 v8, s[12:15], s45 offen sc1 lds"])
            so = "s45"
        for j in (1, 2, 3):
            out.append([f"buffer_load_dwordx4 v8, s[12:15], {so} offen offset:{1024*j} sc1 lds"])
        out.append(["s_add_u32 m0, m0, 0x1000", "s_nop 0", f"buffer_load_dwordx4 v9, s[12:15], {so} offen sc1 lds"])
        return out
    p.label(f"{pre}_pass")
    p("""
    v_lshlrev_b32 v5, 4, v2
    v_add_u32 v7, 8192, v6
    v_mul_u32_u24 v13, 320, v4
    v_add_u32 v13, v13, v6
    v_add_u32 v13, 10240, v13
    v_or_b32 v1, 4, v3
    v_cmp_eq_u32 vcc, 28, v1           ; rows 24 and 28 of V^T carry the ones (row sums)
    v_mov_b32 v1, 0x3f803f80
    s_mov_b32 s36, 0
    v_cndmask_b32 v1, 0, v1, vcc
    s_mov_b32 s37, 0
    """)
    for i in range(32): p(f"v_mov_b32 v{VV+i}, v1")
    for i in range(32): p(f"v_mov_b32 v{OO+i}, 0")
    for i in range(4): p(f"v_mov_b32 v{S0+32+28+i}, 0")
    for i in range(2): p(f"v_mov_b32 v{PP+12+i}, 0")
    p("s_cmp_eq_u32 s44, 1")
    p(f"s_cbranch_scc1 {pre}_nowait")
    if O.get("split"): poll(p, "AT_poll", 60, "s43", 136 * 256, "ge", "s50")
    else:
        p(f"""
        s_cmp_lg_u32 s28, 0
        s_cbranch_scc1 AT_poll_done
        s_add_u32 s98, s60, s43
        s_addc_u32 s99, s61, 0
        s_mov_b32 s59, 0
        AT_poll:
        s_load_dword s56, s[98:99], {136*256} glc
        s_load_dword s57, s[98:99], {168*256} glc
        s_load_dword s58, s[98:99], {200*256} glc
        s_add_u32 s59, s59, 1
        s_waitcnt lgkmcnt(0)
        s_add_u32 s58, s58, s56
        s_add_u32 s58, s58, s57
        s_cmp_ge_u32 s58, s50
        s_cbranch_scc1 AT_poll_done
        s_cmp_gt_u32 s59, 0x100000
        s_cbranch_scc1 AT_poll_done
        s_sleep 2
        s_branch AT_poll
        AT_poll_done:
        """)
    if O.get("f1go", "0") == "0": signal(p, "AT_go", "s51", 1, 4)
    p("s_barrier")
    S.stamp()
    p(f"buffer_load_dwordx4 v[{QA}:{QA+3}], v10, s[16:19], 0 offen sc1")
    p(f"buffer_load_dwordx4 v[{QB}:{QB+3}], v10, s[16:19], 0 offen offset:1024 sc1")
    p(f"buffer_load_dwordx2 v[{QT}:{QT+1}], v11, s[16:19], 0 offen sc1")
    p.label(f"{pre}_nowait")
    emit(p, dma_half(0) + dma_half(1))
    if O.get("f1go", "0") == "1": signal(p, "AT_go", "s51", 1, 4)
    p("s_waitcnt vmcnt(5)")
    p("s_barrier")
    def hb(b): return 20480 * (b // 8)
    def rd_km(b):
        r = KM + 4 * (b % 2)
        return f"ds_read_b128 v[{r}:{r+3}], v5 offset:{hb(b) + 1024*(b%8)}"
    def rd_kt(b):
        r = KT + 4 * ((b // 2) % 2)
        return f"ds_read_b128 v[{r}:{r+3}], v7 offset:{hb(b) + 512*((b%8)//2)}"
    def rd_v(b):
        out = []
        for g in range(2):
            r = VV + 8 * (b % 4) + 4 * g
            out.append(f"ds_read_b128 v[{r}:{r+3}], v13 offset:{hb(b) + 640*(2*(b%8)+g)}")
        return out
    p(rd_kt(0)); p(rd_km(0)); p(rd_km(1))
    p("s_mov_b64 exec, s[46:47]")
    for l in rd_v(0) + rd_v(1): p(l)
    p("s_mov_b64 exec, -1")
    p(f"s_mov_b32 s36, {BIG}")
    p(f"s_mov_b32 s37, {BIG}")
    p("s_cmp_eq_u32 s44, 1")
    p(f"s_cbranch_scc1 {pre}_havemax")
    p("s_waitcnt lgkmcnt(5)")
    p(mfma32(S0, KM, QA, "0")); p(mfma32(S0 + 16, KM, QB, "0"))
    p("s_nop 9")
    p(m2b(S0, KT, QT))
    p("s_nop 15"); p("s_nop 3")
    def finish_max():
        for t in range(2):
            d = NM + 16 * t
            p(f"v_mov_b32 v{d+1}, v{d}")
        p("s_nop 1")
        for t in range(2):
            d = NM + 16 * t
            p(f"v_permlane32_swap_b32 v{d}, v{d+1}")
        for t in range(2):
            d = NM + 16 * t
            p(f"v_max_f32 v{d}, v{d}, v{d+1}")
            p(f"v_sub_f32 v{d}, 0, v{d}")
        for k in range(1, 16):
            for t in range(2): p(f"v_mov_b32 v{NM+16*t+k}, v{NM+16*t}")
    for t in range(2):
        b = S0 + 16 * t; d = NM + 16 * t
        p(f"v_max3_f32 v{d}, v{b}, v{b+1}, v{b+2}")
        for k in range(3, 15, 2):
            p(f"v_max3_f32 v{d}, v{d}, v{b+k}, v{b+k+1}")
        p(f"v_max_f32 v{d}, v{d}, v{b+15}")
    finish_max()
    p.label(f"{pre}_havemax")
    p("s_waitcnt lgkmcnt(0)")
    p("s_nop 0")
    p(mfma32(S0, KM, QA, NM)); p(mfma32(S0 + 16, KM, QB, NM + 16))
    p("s_mov_b32 s38, 0")
    p(f"s_mov_b32 s39, {BIG}")
    p("s_waitcnt vmcnt(0)")
    p("s_barrier")
    p("s_nop 5")
    p(m2b(S0, KT, QT))
    p("s_nop 15"); p("s_nop 2")
    S.stamp()
    p(f"s_branch {pre}_mid")
    def iteration(j):
        i = j - 2
        cur = S0 + 32 * (i % 2); nxt = S0 + 32 * ((i + 1) % 2)
        km = KM + 4 * ((i + 1) % 2)
        kt = KT + 4 * (((i + 1) // 2) % 2) + 2 * ((i + 1) % 2)
        vb = VV + 8 * (i % 4); vprev = VV + 8 * ((i - 1) % 4)
        def E(k, lo=0, hi=4):
            for r in range(lo, hi): p(f"v_exp_f32 v{cur+4*k+r}, v{cur+4*k+r}")
        def C(k, base=cur):
            p(f"v_cvt_pk_bf16_f32 v{PP+2*k}, v{base+4*k}, v{base+4*k+1}")
            p(f"v_cvt_pk_bf16_f32 v{PP+2*k+1}, v{base+4*k+2}, v{base+4*k+3}")
        E(0); C(7, nxt)
        p("s_waitcnt lgkmcnt(0)")
        p(mfma32(nxt, km, QA, NM))
        E(1); C(0)
        p(mfma32(OO + 16, vprev + 4, PP + 12))
        E(2); C(1)
        p(mfma32(nxt + 16, km, QB, NM + 16))
        if j % 2 == 0:
            p("s_mov_b64 exec, s[46:47]")
            for l in rd_v(j) + rd_v(j + 1): p(l)
            p("s_mov_b64 exec, -1")
        E(3); C(2)
        D0 = int(O.get("d0", 4 if O.get("split") else 2))
        dl = dma_half(0) + dma_half(1)
        g = dl[2 * (j - D0)] if D0 <= j < D0 + 5 else []
        g2 = dl[2 * (j - D0) + 1] if D0 <= j < D0 + 5 else []
        if not O.get("split"):
            g = dl[j - D0] if D0 <= j < D0 + 10 else []
            g2 = []
        elif D0 <= 4:
            k = j - D0
            g = dl[2 * k] if 0 <= k < 2 else (dl[k + 2] if 2 <= k < 8 else [])
            g2 = dl[2 * k + 1] if 0 <= k < 2 else []
        if j == D0 - 2 and O.get("split"): p("buffer_load_dword v221, v220, s[60:63], 0 offen sc1")
        if j == D0 and O.get("split"):
            p("s_waitcnt vmcnt(0)")
            p("v_readfirstlane_b32 s58, v221")
            p("s_cmp_lt_u32 s58, s50")
            p("s_cbranch_scc1 AT_wait2")
            p.label("AT_back2")
        for l in g[:-1]:
            if l != "s_nop 0": p(l)
        p(mfma32(OO, vb, PP))
        for l in g[-1:]: p(l)
        E(4); C(3)
        p(m2b(nxt, kt, QT))
        p(rd_km(j))
        if j % 2 == 0: p(rd_kt(j))
        E(5); C(4); E(6, 0, 2)
        for l in g2[:-1]:
            if l != "s_nop 0": p(l)
        p(mfma32(OO, vb + 4, PP + 4))
        for l in g2[-1:]: p(l)
        E(6, 2, 4); C(5); E(7, 0, 2)
        p(mfma32(OO + 16, vb, PP + 8))
        E(7, 2, 4); C(6)
    p.raw(".p2align 6")
    p.label(f"{pre}_loop")
    p("s_waitcnt vmcnt(0) lgkmcnt(0)")
    p("s_barrier")
    p("v_add_u32 v5, s39, v5")
    p("v_add_u32 v7, s39, v7")
    p("v_add_u32 v13, s39, v13")
    p("s_sub_u32 s39, 0, s39")
    p(f"s_add_u32 s36, s36, {BIG}")
    p(f"s_sub_u32 s37, {BIG}, s37")
    iteration(0); iteration(1)
    p("s_cmp_eq_u32 s38, 4")
    p(f"s_cbranch_scc1 {pre}_done")
    p.label(f"{pre}_mid")
    for j in range(2, 16): iteration(j)
    p("s_add_u32 s38, s38, 1")
    p(f"s_branch {pre}_loop")
    p.label(f"{pre}_done")
    S.stamp()
    cur = S0 + 32
    p(f"v_cvt_pk_bf16_f32 v{PP+14}, v{cur+28}, v{cur+29}")
    p(f"v_cvt_pk_bf16_f32 v{PP+15}, v{cur+30}, v{cur+31}")
    p("""
    s_lshl_b32 s30, s25, 3
    s_lshl_b32 s31, s28, 1
    """)
    p(mfma32(OO + 16, VV + 8 * 3 + 4, PP + 12))
    p(f"v_rcp_f32 v{OO+13}, v{OO+12}")
    p("""
    s_add_u32 s30, s30, s31
    s_mul_i32 s30, s30, 40960
    s_and_b32 s41, s24, 1
    s_mul_i32 s41, s41, 20480
    s_add_u32 s30, s30, s41
    s_lshr_b32 s42, s24, 1             ; h/2
    s_lshl_b32 s31, s42, 10
    s_add_u32 s31, s31, s30
    v_lshlrev_b32 v14, 4, v2
    v_add_u32 v14, s31, v14
    s_lshr_b32 s40, s42, 2
    s_add_u32 s40, s40, 16
    s_lshl_b32 s40, s40, 10
    s_add_u32 s40, s40, s30
    s_and_b32 s41, s42, 1
    s_lshl_b32 s41, s41, 9
    s_add_u32 s40, s40, s41
    s_and_b32 s41, s42, 2
    s_lshl_b32 s41, s41, 2
    s_add_u32 s40, s40, s41
    v_add_u32 v15, s40, v6
    s_mov_b32 s41, 40960
    """)
    p(f"s_mov_b32 s42, {hex(LTHRESH)}")
    for t in range(2):
        o = OO + 16 * t
        if t == 1: p(f"v_rcp_f32 v{o+13}, v{o+12}"); p("s_nop 0")
        for k in range(12): p(f"v_mul_f32 v{o+k}, v{o+k}, v{o+13}")
        for k in range(6): p(f"v_cvt_pk_bf16_f32 v{S0+8*t+k}, v{o+2*k}, v{o+2*k+1}")
        so = "0" if t == 0 else "s41"
        p(f"buffer_store_dwordx4 v[{S0+8*t}:{S0+8*t+3}], v14, s[32:35], {so} offen sc1")
    p("s_mov_b32 exec_hi, 0")
    for t in range(2):
        so = "0" if t == 0 else "s41"
        p(f"buffer_store_dwordx2 v[{S0+8*t+4}:{S0+8*t+5}], v15, s[32:35], {so} offen sc1")
    p("s_mov_b64 exec, -1")
    p(f"v_cmp_ngt_f32 vcc, s42, v{OO+12}")
    p(f"v_cmp_ngt_f32 s[48:49], s42, v{OO+16+12}")
    p("""
    s_or_b64 vcc, vcc, s[48:49]
    s_cmp_lg_u64 vcc, 0
    s_cselect_b32 s43, 1, 0
    s_cmp_eq_u32 s44, 1
    s_cselect_b32 s43, 0, s43
    v_mov_b32 v1, s43
    s_lshl_b32 s45, s28, 2
    v_mov_b32 v12, s45
    ds_write_b32 v12, v1
    s_lshl_b32 s30, s25, 2
    s_add_u32 s30, s30, s28
    s_bitcmp0_b32 s24, 0
    s_cselect_b32 s31, 64, 0
    s_add_u32 s30, s30, s31
    s_lshl_b32 s30, s30, 8
    s_add_u32 s100, s60, s30
    s_addc_u32 s101, s61, 0
    s_mov_b32 s95, 0x20000
    v_mov_b32 v12, 0
    s_waitcnt lgkmcnt(0)
    s_barrier
    ds_read_b128 v[172:175], v12
    s_waitcnt lgkmcnt(0)
    v_or_b32 v172, v172, v173
    v_or3_b32 v172, v172, v174, v175
    s_nop 0
    v_readfirstlane_b32 s43, v172
    s_waitcnt vmcnt(0)
    s_cmp_lg_u32 s43, 0
    """)
    p(f"s_cbranch_scc1 {pre}_fallback")
    p("s_atomic_add s95, s[100:101], 0")
    S.dump(10, 11, 28, region=0, vt=218)
    p("s_endpgm")
    if O.get("split"):
        p.label("AT_wait2")
        p("s_mov_b32 s59, 0")
        p.label("AT_wait2l")
        p("""
    s_sleep 4
    buffer_load_dword v221, v220, s[60:63], 0 offen sc1
    s_add_u32 s59, s59, 1
    s_waitcnt vmcnt(0)
    v_readfirstlane_b32 s58, v221
    s_cmp_ge_u32 s58, s50
    s_cbranch_scc1 AT_back2
    s_cmp_gt_u32 s59, 0x100000
    s_cbranch_scc1 AT_back2
    s_branch AT_wait2l
    """)
    p.label(f"{pre}_fallback")
    p("s_mov_b32 s36, 0")
    p("s_mov_b32 s37, 0")
    p("v_lshlrev_b32 v5, 4, v2")
    p("v_add_u32 v7, 8192, v6")
    p(f"v_mov_b32 v{NM}, 0xff800000")
    p(f"v_mov_b32 v{NM+16}, 0xff800000")
    p.label(f"{pre}_fb_chunk")
    p("s_barrier")
    emit(p, dma_half(0))
    p("s_waitcnt vmcnt(0)")
    p("s_barrier")
    for b in range(8):
        p(f"ds_read_b128 v[{KM}:{KM+3}], v5 offset:{1024*b}")
        p(f"ds_read_b128 v[{KT}:{KT+3}], v7 offset:{512*(b//2)}")
        p("s_waitcnt lgkmcnt(0)")
        p(mfma32(S0, KM, QA, "0")); p(mfma32(S0 + 16, KM, QB, "0"))
        p("s_nop 9")
        p(m2b(S0, KT + 2 * (b % 2), QT))
        p("s_nop 15"); p("s_nop 3")
        for t in range(2):
            bb = S0 + 16 * t; d = NM + 16 * t
            for k in range(0, 16, 2):
                p(f"v_max3_f32 v{d}, v{d}, v{bb+k}, v{bb+k+1}")
    p("s_add_u32 s36, s36, 20480")
    p("s_cmp_lt_u32 s36, 163840")
    p(f"s_cbranch_scc1 {pre}_fb_chunk")
    finish_max()
    p("s_mov_b32 s44, 1")
    p("s_barrier")
    p(f"s_branch {pre}_pass")

NST2 = 12
RS0 = 3
def sl1(st): return st % 4
def sl2(st): return st % 4
def w_list(st):
    slot = sl2(st) * 20480
    if st < NST2:
        h = ["s_mul_i32 s56, s55, 20480"]; t = ["s_add_u32 s55, s55, 1", "s_cmp_eq_u32 s55, 12", "s_cselect_b32 s55, 0, s55"]
    else:
        h = [f"s_mov_b32 s56, {st*20480}"]; t = ["s_nop 0"]
    g = [[f"s_add_u32 m0, s54, {slot}"] + h + ["buffer_load_dwordx4 v21, s[48:51], s56 offen sc1 lds"]]
    for k in (1, 2, 3):
        g.append([f"buffer_load_dwordx4 v21, s[48:51], s56 offen offset:{1024*k} sc1 lds"])
    g.append([f"s_add_u32 m0, s54, {slot + 4096}"] + t + ["buffer_load_dwordx4 v1, s[48:51], s56 offen sc1 lds"])
    return g

def gen_b(p, S):
    HP = O.get("hiprio", "3")
    p("""
    s_sub_u32 s3, s2, 256
    s_and_b32 s24, s3, 7
    s_lshr_b32 s25, s3, 3
    s_lshl_b32 s57, s2, 8
    v_mov_b32 v22, s57
    s_waitcnt lgkmcnt(0)
    """)
    flag_srd(p)
    srd(p, 20, 8, 9, 256)
    p("""
    s_load_dwordx16 s[64:79], s[0:1], 0
    """)
    p("""
    s_cmp_lg_u32 s3, 255
    s_cbranch_scc1 B_noclear
    v_lshlrev_b32 v24, 8, v0
    v_mov_b32 v28, 0
    s_mov_b32 s29, 0x10000
    buffer_store_dword v28, v24, s[60:63], 0 offen sc1
    buffer_store_dword v28, v24, s[60:63], s29 offen offset:4 sc1
    s_waitcnt vmcnt(0)
    s_barrier
    v_mov_b32 v25, 1
    v_lshlrev_b32 v24, 12, v0
    buffer_store_dword v25, v24, s[20:23], 0 offen sc1
    """)
    p.label("B_noclear")
    if not O.get("nocode"):
        p("""
        s_getpc_b64 s[12:13]
        BPC:
        s_sub_u32 s12, s12, BPC-{KNAME}
        s_subb_u32 s13, s13, 0
        s_mov_b32 s14, CODE_END-{KNAME}
        s_mov_b32 s15, 0x00020000
        s_lshl_b32 s29, s25, 11
        v_lshlrev_b32 v24, 3, v0
        v_add_u32 v24, s29, v24
        buffer_load_dwordx2 v[220:221], v24, s[12:15], 0 offen
        """.replace("{KNAME}", KNAME))
    real = p
    p = Prog()
    p("""
    s_mov_b64 s[4:5], s[64:65]
    s_mov_b64 s[44:45], s[72:73]
    s_mov_b64 s[46:47], s[74:75]
    s_mov_b64 s[48:49], s[68:69]
    s_mov_b64 s[50:51], s[76:77]
    """)
    p("""
    v_and_b32 v3, 31, v0
    v_bfe_u32 v4, v0, 5, 1
    s_lshl_b32 s57, s2, 8
    """)
    p("""
    """)
    if O.get("split"): p("""
    s_and_b32 s29, s24, 2
    s_lshl_b32 s29, s29, 1
    s_and_b32 s27, s25, 3
    s_add_u32 s29, s29, s27
    s_and_b32 s30, s24, 1
    s_lshl_b32 s26, s30, 1
    s_add_u32 s26, s26, s29
    s_mul_i32 s30, s30, 6
    s_add_u32 s30, s30, s29
    s_add_u32 s30, s30, 2
    s_cmp_lt_u32 s29, 2
    s_cselect_b32 s26, s26, s30        ; r
    """)
    else: p("""
    s_and_b32 s26, s24, 3
    s_lshl_b32 s26, s26, 2
    s_and_b32 s27, s25, 3
    s_add_u32 s26, s26, s27            ; r
    """)
    p("""
    s_lshr_b32 s27, s24, 2
    s_lshl_b32 s27, s27, 3
    s_lshr_b32 s29, s25, 2
    s_add_u32 s27, s27, s29            ; f
    s_and_b32 s35, s28, 1
    s_lshr_b32 s36, s28, 1
    v_lshrrev_b32 v6, 2, v2
    v_and_b32 v7, 3, v2
    v_lshrrev_b32 v8, 4, v2
    v_sub_u32 v8, 0, v8
    v_and_b32 v8, 3, v8
    v_xor_b32 v8, v8, v7
    s_lshl_b32 s29, s26, 7
    s_lshl_b32 s30, s28, 5
    s_add_u32 s29, s29, s30
    v_add_u32 v9, s29, v6
    v_mul_u32_u24 v9, 1280, v9
    v_lshl_add_u32 v5, v8, 4, v9
    s_lshl_b32 s29, s35, 4
    v_add_u32 v9, s29, v6
    v_mul_u32_u24 v9, 3072, v9
    v_xor_b32 v8, v4, v7
    s_mul_i32 s29, s27, 192
    v_lshl_add_u32 v9, v8, 4, v9
    v_add_u32 v6, s29, v9
    s_lshl_b32 s31, s28, 11
    s_mul_i32 s32, s28, 3072
    s_add_u32 s32, s32, 8192
    s_cmp_eq_u32 s36, 0
    s_cselect_b32 s6, s44, s46
    s_cselect_b32 s7, s45, s47
    s_and_b32 s38, s25, 3
    s_mul_i32 s38, s38, 5
    """)
    if O.get("rotf"):
        p("s_lshr_b32 s39, s25, 2"); p("s_add_u32 s38, s38, s39")
    if not O.get("norq"):
        p("s_and_b32 s39, s24, 3"); p("s_add_u32 s38, s38, s39")
    p("""
    s_cmp_ge_u32 s38, 20
    s_cselect_b32 s39, 20, 0
    s_sub_u32 s38, s38, s39
    """)
    srd(p, 12, 4, 5, 2048 * 640 * 2)
    srd(p, 16, 6, 7, 640 * 1536 * 2)
    srd_off(p, 40, 10, 11, hex(WS_H), 2048 * 1536 * 2)
    p("""
    v_and_b32 v3, 15, v2               ; m16
    v_lshrrev_b32 v23, 4, v2           ; q
    v_lshrrev_b32 v8, 2, v3
    v_sub_u32 v8, 0, v8
    v_and_b32 v8, 3, v8
    v_xor_b32 v8, v8, v23
    v_lshlrev_b32 v8, 4, v8
    v_lshl_add_u32 v8, v3, 6, v8
    s_lshl_b32 s29, s35, 12
    v_add_u32 v10, s29, v8
    v_and_b32 v7, 1, v2
    v_lshlrev_b32 v7, 3, v7
    v_bfe_u32 v9, v2, 1, 1
    v_lshl_add_u32 v7, v9, 5, v7
    v_bfe_u32 v9, v2, 2, 2
    v_lshl_add_u32 v7, v9, 6, v7
    v_mul_u32_u24 v8, 3072, v4
    v_add_u32 v7, v7, v8
    v_bfe_u32 v9, v2, 4, 1             ; q%2
    v_lshl_add_u32 v7, v9, 9, v7
    v_lshlrev_b32 v9, 4, v9
    v_add_u32 v7, 8192, v7
    s_lshl_b32 s30, s36, 11
    v_add3_u32 v11, v7, v9, s30
    v_xor_b32 v12, 16, v11
    s_lshl_b32 s29, s36, 4
    v_xor_b32 v8, s29, v9
    v_add_u32 v8, 1024, v8
    v_add_u32 v13, v7, v8
    """)
    for i in range(4): p(f"v_add_u32 v{14+i}, 40960, v{10+i}")
    p("""
    s_lshl_b32 s29, s26, 2
    s_lshl_b32 s30, s35, 1
    s_add_u32 s29, s29, s30
    s_mul_i32 s29, s29, 96
    s_mul_i32 s30, s27, 6
    s_add_u32 s29, s29, s30
    s_lshl_b32 s29, s29, 10
    v_lshlrev_b32 v18, 4, v3
    v_lshl_add_u32 v18, v23, 9, v18    ; q*512 + m16*16
    s_lshl_b32 s30, s36, 12
    s_add_u32 s30, s30, s29
    v_add_u32 v20, s30, v18
    s_lshl_b32 s30, s36, 3
    s_add_u32 s30, s30, s29
    s_add_u32 s30, s30, 2048
    v_add_u32 v19, s30, v18
    s_mov_b32 s37, 98304
    """)
    p("""
    s_mul_i32 s29, s3, 3856
    s_lshr_b32 s29, s29, 16
    s_mul_i32 s30, s29, 17
    s_sub_u32 s30, s3, s30             ; stage
    s_lshl_b32 s53, s30, 7
    s_lshl_b32 s54, s28, 5
    s_add_u32 s53, s53, s54
    s_mov_b32 s54, 0
    s_mov_b32 s55, 4
    s_mov_b32 s46, 1966080
    s_cmp_ge_u32 s30, 12
    s_cbranch_scc0 B_rp_wd
    s_sub_u32 s30, s30, 12
    s_lshl_b32 s30, s30, 2
    s_add_u32 s30, s30, s28            ; position 0..19
    s_cmp_ge_u32 s30, 10
    s_cselect_b32 s52, 20, 0           ; 20*parity
    s_cselect_b32 s53, 10, 0
    s_sub_u32 s30, s30, s53
    s_lshr_b32 s53, s29, 2
    s_add_u32 s53, s53, s29
    s_add_u32 s30, s30, s53
    s_cmp_ge_u32 s30, 10
    s_cselect_b32 s53, 10, 0
    s_sub_u32 s30, s30, s53
    s_mul_i32 s53, s30, 80
    s_mul_i32 s58, s30, 320
    s_sub_u32 s58, s58, 2544
    s_mov_b32 s54, 30720
    s_mov_b32 s50, s48
    s_mov_b32 s51, s49
    s_mov_b32 s46, 819200
    s_cmp_ge_u32 s30, 8
    s_cselect_b32 s53, s58, s53
    s_cselect_b32 s54, 46080, s54
    s_cselect_b32 s55, 2, s55
    s_add_u32 s53, s53, s52
    """)
    p.label("B_rp_wd")
    p("""
    s_mov_b32 s44, s50
    s_mov_b32 s45, s51
    s_mov_b32 s47, 0x00020000
    s_cmp_lt_u32 s3, 136
    s_cselect_b32 s46, s46, 0
    s_mul_i32 s53, s53, 1280
    s_mul_i32 s30, s29, 160
    s_add_u32 s53, s53, s30
    s_mul_i32 s30, s28, 320
    v_add_u32 v9, s30, v2
    s_add_u32 s96, s29, 96
    s_cmp_lt_u32 s3, 136
    s_cselect_b32 s96, s96, 200
    s_lshl_b32 s97, s26, 1
    s_add_u32 s97, s97, 32
    """)
    for kk in range(5):
        p(f"""
        v_add_u32 v24, {64*kk}, v2
        v_mul_u32_u24 v25, 6554, v24
        v_lshrrev_b32 v25, 16, v25
        v_mul_u32_u24 v7, 10, v25
        v_sub_u32 v7, v24, v7
        v_mul_u32_u24 v24, 1280, v25
        v_lshl_add_u32 v24, v7, 4, v24
        v_lshrrev_b32 v25, s55, v25
        v_mul_u32_u24 v25, s54, v25
        v_add_u32 v{208+kk}, v24, v25
        """)
    p(f"""
    s_mul_i32 s54, s28, 5120
    s_add_u32 s52, s54, 61440
    v_bfe_u32 v25, v2, 2, 3
    v_mul_u32_u24 v25, 160, v25
    v_and_b32 v7, 3, v2
    v_lshl_add_u32 v25, v7, 3, v25
    v_add_u32 v25, s52, v25
    v_mov_b32 v8, 2400
    """)
    for kk in range(5):
        p(f"""
        v_add_u32 v7, {2*kk}, v4
        v_cmp_lt_u32 vcc, 4, v7
        v_lshlrev_b32 v7, 5, v7
        s_nop 0
        v_cndmask_b32 v24, 0, v8, vcc
        v_add3_u32 v{213+kk}, v25, v7, v24
        """)
    p(f"""
    s_mul_i32 s29, s3, 20480
    v_lshlrev_b32 v218, 4, v9
    v_add_u32 v218, s29, v218
    v_add_u32 v219, 0x1000, v218
    v_lshlrev_b32 v21, 4, v2
    v_add_u32 v21, s54, v21
    v_add_u32 v1, 0x1000, v21
    s_lshr_b32 s29, s25, 2
    s_mul_i32 s29, s29, {WP_CB}
    s_add_u32 s29, s29, {hex(WS_W)}
    """)
    srd_off(p, 4, 10, 11, hex(WS_W), 8 * WP_CB)
    srd_off(p, 48, 10, 11, "s29", WP_CB)
    setup = p.lines
    p = real
    p("s_waitcnt lgkmcnt(0)")
    for l in setup: p.raw(l)
    if O.get("split"):
        p("s_cmp_ge_u32 s25, 30")
        p("s_cbranch_scc1 B_skipq")
        gen_params_b(p)
        p("s_mov_b64 s[4:5], s[64:65]")
        p("s_mov_b64 s[6:7], s[66:67]")
        poll(p, "B_start0", 60, "s57", 0, "lg", "s80", sleep=2, limit=40)
        p("s_barrier")
        S.n = 0; S.stamp()
        p("s_setprio %s" % O.get("q2prio", "0"))
        p("s_branch QKV_tile")
        p.label("B_after")
        S.n = 3 if common.STAMP else 0
        p("s_setprio 0")
        for l in setup:
            if l.strip().startswith("s_") or l.endswith(":"): p.raw(l.replace("B_rp_wd", "B_rp_wd2"))
        if O.get("f1go", "0") in ("0", "1"): poll(p, "B_start", 60, "s57", 4, "lg", "s81", sleep=2, limit=60)
        p("s_branch B_go")
        p.label("B_skipq")
        p("s_mov_b64 s[82:83], s[52:53]"); p("s_mov_b64 s[84:85], s[54:55]")
        vpoll_init(p, "B_init")
        p("s_mov_b64 s[52:53], s[82:83]"); p("s_mov_b64 s[54:55], s[84:85]")
        p.label("B_go")
    else:
        def erp():
            for kk in range(5):
                p(f"s_add_u32 m0, s52, {1024*kk}"); p("s_nop 0")
                p(f"buffer_load_dwordx4 v{208+kk}, s[44:47], s53 offen lds")
            p("s_waitcnt vmcnt(0)")
            for kk in range(5):
                for a in range(2):
                    p(f"ds_read_b64_tr_b16 v[{184+4*kk+2*a}:{184+4*kk+2*a+1}], v{213+kk} offset:{1280*a}")
            p("s_waitcnt lgkmcnt(0)")
            for kk in range(5):
                p(f"buffer_store_dwordx4 v[{184+4*kk}:{184+4*kk+3}], v{218 if kk < 4 else 219}, s[4:7], 0 offen offset:{1024*(kk%4)} sc1")
        if O.get("erp") == "1": erp()
        p("s_mov_b64 s[82:83], s[52:53]"); p("s_mov_b64 s[84:85], s[54:55]")
        vpoll_init(p, "B_init")
        p("s_mov_b64 s[52:53], s[82:83]"); p("s_mov_b64 s[54:55], s[84:85]")
        if O.get("erp") == "2":
            p("s_barrier")
            erp()
        p("s_cmp_eq_u32 s27, 15")
        p("s_cbranch_scc1 B_start_done")
        assert O.get("f1go", "0") in ("0", "1", "2", "4")
        if O.get("f1go", "0") != "2": poll(p, "B_start", 60, "s57", 4, "lg", "0", sleep=2, limit=200)
        else: p.label("B_start_done")
    p("s_barrier")
    S.n = 0
    S.stamp()
    p("""
    s_lshr_b32 s29, s25, 2
    s_add_u32 s55, s25, s29
    s_and_b32 s55, s55, 3
    s_mul_i32 s55, s55, 3
    s_add_u32 s57, s29, 96
    s_lshl_b32 s57, s57, 8
    """)
    NST = 20
    def dma_list(st):
        if st == "rp":
            return [[f"s_add_u32 m0, s52, {1024*kk}", "s_nop 0", f"buffer_load_dwordx4 v{208+kk}, s[44:47], s53 offen lds"] for kk in range(5)]
        if st >= NST: return w_list(st - NST)
        slot = sl1(st) * 20480
        g = []
        for pc in range(2):
            g.append([f"s_add_u32 m0, s31, {slot + pc*1024}", ("s_lshl_b32 s33, s38, 6" if pc == 0 else "s_add_u32 s33, s33, 20480"),
                      "buffer_load_dwordx4 v5, s[12:15], s33 offen lds"])
        for j in range(3):
            off = f" offset:{64*j}" if j else ""
            mid = ["s_mul_i32 s34, s38, 98304"] if j == 0 else (["s_add_u32 s38, s38, 1"] if j == 1 else [])
            g.append([f"s_add_u32 m0, s32, {slot + j*960}"] + (mid if mid else ["s_cmp_eq_u32 s38, 20", "s_cselect_b32 s38, 0, s38"]) +
                      [f"buffer_load_dwordx4 v6, s[16:19], s34 offen{off} lds"])
        return g
    if O.get("erp"): emit(p, dma_list(0) + dma_list(1) + dma_list(2) + dma_list(3))
    else: emit(p, dma_list(0) + dma_list("rp") + dma_list(1) + dma_list(2))
    FR = 32; ACC = 112; RP = ACC + 76
    def m16(d, a, b, first):
        return f"v_mfma_f32_16x16x32_bf16 v[{d}:{d+3}], v[{a}:{a+3}], v[{b}:{b+3}], " + ("0" if first else f"v[{d}:{d+3}]")
    def acc(mat, tn, tm): return ACC + 4 * (4 * (2 * tn + mat) + tm)
    def reads(st):
        slot = sl1(st)
        k = slot // 2; so = (slot % 2) * 20480
        b = FR + 40 * (st % 2)
        out = [f"ds_read_b128 v[{b+4*tm}:{b+4*tm+3}], v{10+4*k} offset:{so + tm*1024}" for tm in range(4)]
        for tn in range(3):
            for mat in range(2):
                for a in range(2):
                    r = b + 16 + 4 * (2 * tn + mat) + 2 * a
                    out.append(f"ds_read_b64_tr_b16 v[{r}:{r+1}], v{11+4*k+tn} offset:{so + mat*6144 + a*256}")
        return out
    def mfmas(st):
        b = FR + 40 * (st % 2)
        return [m16(acc(mat, tn, tm), b + 16 + 4 * (2 * tn + mat), b + 4 * tm, st == 0) for tn in range(3) for mat in range(2) for tm in range(4)]
    rd = reads(0)
    if O.get("erp"):
        p("s_waitcnt vmcnt(10)")
        p("s_barrier")
        for l in rd[:12]: p(l)
        queue = []
    else:
        p("s_waitcnt vmcnt(10)")
        for kk in range(5):
            for a in range(2):
                p(f"ds_read_b64_tr_b16 v[{RP+4*kk+2*a}:{RP+4*kk+2*a+1}], v{213+kk} offset:{1280*a}")
        p("s_waitcnt vmcnt(5) lgkmcnt(0)")
        p("s_barrier")
        emit(p, dma_list(3))
        for l in rd[:12]: p(l)
        for kk in range(5):
            p(f"buffer_store_dwordx4 v[{RP+4*kk}:{RP+4*kk+3}], v{218 if kk < 4 else 219}, s[4:7], 0 offen offset:{1024*(kk%4)} sc1")
        queue = []
    p("s_waitcnt lgkmcnt(8)")
    for l in rd[12:]: p(l)
    for st in range(NST):
        pr = st // 2
        mf = mfmas(st)
        rd = reads(st + 1) if st < NST - 1 else []
        if st % 2 == 1 and st < NST - 1:
            assert not queue
            p("s_waitcnt vmcnt(0) lgkmcnt(0)")
            if pr == 8:
                p("v_readfirstlane_b32 s58, v22")
                p(f"s_cmp_ge_u32 s58, {17 << 17}")
                p("s_cbranch_scc1 B_pollw_done")
                poll(p, "B_pollw", 60, "s57", 0, "ge", 17 << 17, sleep=4)
            p("s_barrier")
            if pr == 0:
                p("s_cmp_ge_u32 s3, 136"); p("s_cbranch_scc1 B_sigw")
                signal(p, "B_sigw", "s96", 1)
            queue = dma_list(2 * pr + 4) + dma_list(2 * pr + 5)
            if pr == 7: queue.append(["buffer_load_dword v22, off, s[60:63], s57 sc1"])
            if O.get("f1st") and pr in (0, 4): S.stamp()
        else:
            p("s_waitcnt lgkmcnt(0)")
        for i, m in enumerate(mf):
            p(m)
            if i == 12 and rd: p("s_waitcnt lgkmcnt(8)")
            for l in rd[i:i + 1]: p(l)
            if queue and i % 2 == 1:
                for l in queue.pop(0): p(l)
    S.stamp()
    p(f"s_setprio {HP}")
    p(f"s_mov_b32 s44, {hex(f2u(-math.log2(math.e)))}")
    p(f"s_mov_b32 s45, {hex(f2u(-math.log2(math.e)))}")
    p("s_load_dwordx2 s[8:9], s[0:1], 64")
    p("s_nop 3")
    def silu(items, t):
        prs = [(g + 2 * i, u + 2 * i) for g, u in items for i in range(2)]
        n = len(prs)
        for i, (g, u) in enumerate(prs): p(f"v_pk_mul_f32 v[{t+2*i}:{t+2*i+1}], v[{g}:{g+1}], s[44:45]")
        for i in range(2 * n): p(f"v_exp_f32 v{t+i}, v{t+i}")
        for i, (g, u) in enumerate(prs): p(f"v_pk_mul_f32 v[{g}:{g+1}], v[{g}:{g+1}], v[{u}:{u+1}]")
        for i in range(n): p(f"v_pk_add_f32 v[{t+2*i}:{t+2*i+1}], v[{t+2*i}:{t+2*i+1}], 1.0 op_sel_hi:[1,0]")
        for i in range(2 * n): p(f"v_rcp_f32 v{t+i}, v{t+i}")
        p("s_nop 0")
        for i, (g, u) in enumerate(prs): p(f"v_pk_mul_f32 v[{g}:{g+1}], v[{g}:{g+1}], v[{t+2*i}:{t+2*i+1}]")
        for i, (g, u) in enumerate(prs): p(f"v_cvt_pk_bf16_f32 v{t+8+i}, v{g}, v{g+1}")
    for tm in range(4):
        t = FR + 12 * tm
        silu([(acc(0, 0, tm), acc(1, 0, tm)), (acc(0, 1, tm), acc(1, 1, tm))], t)
        so = "0" if tm < 2 else "s37"
        p(f"buffer_store_dwordx4 v[{t+8}:{t+11}], v20, s[40:43], {so} offen offset:{256*(tm%2)} sc1")
    for h in range(2):
        t = FR + 48 + 12 * h
        silu([(acc(0, 2, 2 * h), acc(1, 2, 2 * h)), (acc(0, 2, 2 * h + 1), acc(1, 2, 2 * h + 1))], t)
        so = "0" if h == 0 else "s37"
        p(f"buffer_store_dwordx2 v[{t+8}:{t+9}], v19, s[40:43], {so} offen sc1")
        p(f"buffer_store_dwordx2 v[{t+10}:{t+11}], v19, s[40:43], {so} offen offset:256 sc1")
    p("""
    s_lshl_b32 s26, s24, 2
    s_and_b32 s27, s25, 3
    s_add_u32 s26, s26, s27            ; mb
    s_lshr_b32 s27, s25, 2             ; cb
    s_add_u32 s57, s26, 32
    s_lshl_b32 s57, s57, 8
    s_mul_i32 s29, s27, 160
    v_lshlrev_b32 v9, 4, v2
    s_add_u32 s39, s25, s27
    s_and_b32 s39, s39, 3
    s_mul_i32 s39, s39, 3
    s_lshr_b32 s53, s27, 2
    s_add_u32 s53, s53, s27
    s_lshl_b32 s30, s26, 1
    s_add_u32 s30, s30, s35
    s_mul_i32 s32, s30, 96
    s_lshl_b32 s33, s36, 2
    s_add_u32 s32, s32, s33
    s_lshl_b32 s32, s32, 10
    v_add_u32 v25, s32, v18            ; H offset: + q*512 + m16*16
    v_lshrrev_b32 v7, 1, v23
    v_mul_u32_u24 v7, 2560, v7
    v_and_b32 v8, 1, v23
    v_lshl_add_u32 v7, v8, 8, v7
    v_lshl_add_u32 v26, v3, 4, v7
    v_add_u32 v27, 40960, v26
    s_mul_i32 s32, s36, 10240
    v_add_u32 v28, s32, v26
    v_add_u32 v29, s32, v27
    v_mov_b32 v4, v23
    s_lshl_b32 s32, s26, 6
    s_lshl_b32 s33, s35, 5
    s_add_u32 s32, s32, s33
    s_lshl_b32 s33, s36, 4
    s_add_u32 s32, s32, s33
    v_add_u32 v24, s32, v3
    v_lshlrev_b32 v22, 2, v24
    """)
    srd_off(p, 20, 10, 11, hex(WS_G), 8192)
    p("s_setprio 0")
    p("s_waitcnt vmcnt(0)")
    p("s_barrier")
    signal(p, "B_sigh", "s97", 2)
    emit(p, w_list(2) + w_list(3))
    poll(p, "B_pollh", 60, "s57", 0, "ge", 17 << 17)
    p("s_barrier")
    XR = 32; WF = 96; ACC = 136
    def x_list(st):
        g = []
        for ks in range(4):
            r = XR + 4 * ((4 * st + ks) % 16)
            pre = {0: ["s_lshl_b32 s33, s39, 13"], 1: ["s_add_u32 s39, s39, 1"], 2: ["s_cmp_eq_u32 s39, 12", "s_cselect_b32 s39, 0, s39"]}.get(ks, [])
            g.append(pre + [f"buffer_load_dwordx4 v[{r}:{r+3}], v25, s[40:43], s33 offen offset:{2048*(ks//2) + 256*(ks%2)} sc1"])
        return g
    for st in range(4): emit(p, x_list(st))
    p("buffer_load_dword v23, v22, s[20:23], 0 offen sc1")
    def reads2(t):
        st, ks = divmod(t, 2)
        slot = sl2(st)
        k = slot // 2; so = (slot % 2) * 20480
        b = WF + 20 * (t % 2)
        return [f"ds_read_b128 v[{b+4*u}:{b+4*u+3}], v{28+k} offset:{so + ks*5120 + u*512}" for u in range(5)]
    def mfmas2(t):
        b = WF + 20 * (t % 2)
        x = XR + 8 * (t % 8)
        return [m16(ACC + 20 * h + 4 * u, b + 4 * u, x + 4 * h, t == 0) for u in range(5) for h in range(2)]
    for l in reads2(0): p(l)
    T = 2 * NST2
    log = [("x", s) for s in range(4) for _ in range(4)] + [("g", 0)]
    def younger2(tags):
        last = max(i for i, e in enumerate(log) if e in tags)
        return len(log) - 1 - last
    queue = []
    for t in range(T):
        st, ks = divmod(t, 2)
        mf = mfmas2(t)
        rd = reads2(t + 1) if t < T - 1 else []
        if t % 4 == 3 and t < T - 1:
            assert not any(q[0][0] == "w" for q in queue)
            tags = [("w", st + 1), ("w", st + 2), ("x", 0)]
            p(f"s_waitcnt vmcnt({younger2(tags)}) lgkmcnt(0)")
            p("s_barrier")
            if st + 3 < NST2 + 2:
                queue = [(("w", s), g) for s in (st + 3, st + 4) for g in w_list(s)] + queue
        elif ks == 0:
            assert log.count(("x", st)) == 4
            p(f"s_waitcnt vmcnt({younger2([('x', st)])}) lgkmcnt(0)")
        else:
            p("s_waitcnt lgkmcnt(0)")
        if ks == 0 and st >= 1 and st + 3 < NST2:
            queue += [(("x", st + 3), g) for g in x_list(st + 3)]
        for i, m in enumerate(mf):
            p(m)
            for l in rd[i:i + 1]: p(l)
            if queue and i % 2 == 1:
                tag, g = queue.pop(0)
                for l in g: p(l)
                log.append(tag)
    assert not queue
    S.stamp()
    p(f"s_setprio {HP}")
    p("""
    s_mul_i32 s32, s28, 5120
    s_add_u32 s32, s32, 61440
    v_add_u32 v30, s32, v9
    s_xor_b32 s32, s28, 2
    s_mul_i32 s32, s32, 5120
    s_add_u32 s32, s32, 61440
    v_add_u32 v31, s32, v9
    s_lshl_b32 s30, s26, 1
    s_add_u32 s30, s30, s35
    s_mul_i32 s32, s30, 40960
    s_lshl_b32 s33, s36, 8
    s_add_u32 s32, s32, s33
    v_add_u32 v25, s32, v18            ; O offset
    s_waitcnt vmcnt(0)
    s_barrier
    s_cmp_eq_u32 s36, 0
    s_cbranch_scc1 B_keep0
    """)
    B2 = 200
    for kq in (1, 0):
        if kq == 0: p.label("B_keep0")
        for u in range(5):
            s_ = ACC + 20 * (1 - kq) + 4 * u
            p(f"ds_write_b128 v30, v[{s_}:{s_+3}] offset:{1024*u}")
        for r in range(20): p(f"v_mov_b32 v{B2+r}, v{ACC+20*kq+r}")
        if kq == 1: p("s_branch B_kept")
    p.label("B_kept")
    emit(p, w_list(NST2 + 2))
    p("""
    v_mul_u32_u24 v28, 1280, v24
    v_lshl_add_u32 v28, v4, 3, v28
    v_add_u32 v28, s29, v28
    v_sub_f32 v22, 1.0, v23
    """)
    srd_off(p, 12, 10, 11, hex(WS_O), 2048 * 640 * 2)
    p("s_waitcnt lgkmcnt(0)")
    srd(p, 40, 8, 9, 2048 * 640 * 2)
    p("s_barrier")
    B2 = 200; XO = 32; WR = 112; A2 = 10
    A2r = [10, 14, 192, 196, 18]
    A2r = [10, 14, 192, 196, 4]
    for u in range(5):
        p(f"ds_read_b128 v[{XO+4*u}:{XO+4*u+3}], v31 offset:{1024*u}")
    def oreads(i):
        sg, ks = divmod(i, 4)
        slot = sl2(sg)
        k = slot // 2; so = (slot % 2) * 20480
        b = WR + 20 * (i % 4)
        return [f"ds_read_b128 v[{b+4*u}:{b+4*u+3}], v{26+k} offset:{so + ks*5120 + u*512}" for u in range(5)]
    for i in range(4):
        for l in oreads(i): p(l)
        if i == 1:
            p("s_waitcnt lgkmcnt(10)")
            for u in range(5):
                a = B2 + 4 * u; b = XO + 4 * u
                p(f"v_pk_add_f32 v[{a}:{a+1}], v[{a}:{a+1}], v[{b}:{b+1}]")
                p(f"v_pk_add_f32 v[{a+2}:{a+3}], v[{a+2}:{a+3}], v[{b+2}:{b+3}]")
            for r in range(20): p(f"v_mul_f32 v{B2+r}, v{B2+r}, v22")
        if i % 2 == 1: p("s_waitcnt lgkmcnt(0)")
    p("s_barrier")
    p("s_setprio 0")
    emit(p, w_list(NST2 + 3) + w_list(NST2 + 4))
    poll(p, "B_polle", 60, "s57", 0x2000, "ge", 16 << 17)
    p("""
    s_sub_u32 s57, s57, 0x2000
    s_add_u32 s98, s60, s57
    s_addc_u32 s99, s61, 0
    s_barrier
    s_load_dword s56, s[98:99], 0 glc
    """)
    def xloads(half):
        for i in range(10 * half, 10 * half + 10):
            p("s_lshl_b32 s33, s53, 11")
            if half: p("s_add_u32 s33, s33, 20480")
            p("s_add_u32 s53, s53, 1"); p("s_cmp_eq_u32 s53, 10"); p("s_cselect_b32 s53, 0, s53")
            p(f"buffer_load_dwordx4 v[{XO+4*i}:{XO+4*i+3}], v25, s[12:15], s33 offen sc1")
    def steps(lo, hi, last):
        for i in range(lo, hi):
            b = WR + 20 * (i % 4); x = XO + 4 * i
            n = min(5 * (min(i + 3, 19) - i), 10)
            p(f"s_waitcnt vmcnt({last-i}) lgkmcnt({n})")
            if i == 4: p("s_barrier")
            for u in range(5):
                d = A2r[u]
                c = "0" if i == 0 else f"v[{d}:{d+3}]"
                p(f"v_mfma_f32_16x16x32_bf16 v[{d}:{d+3}], v[{b+4*u}:{b+4*u+3}], v[{x}:{x+3}], {c}")
            if i + 4 < 20:
                for l in oreads(i + 4): p(l)
    xloads(0)
    p("s_waitcnt lgkmcnt(0)")
    p(f"s_cmp_ge_u32 s56, {16 << 17}")
    p("s_cbranch_scc1 B_both")
    steps(0, 10, 9)
    poll(p, "B_pollo", 60, "s57", 0, "ge", 16 << 17)
    p("s_barrier")
    xloads(1)
    p("s_branch B_second")
    p.label("B_both")
    xloads(1)
    steps(0, 10, 19)
    p("s_barrier")
    p.label("B_second")
    steps(10, 20, 19)
    p("s_nop 3")
    for u in range(5):
        d = A2r[u]; b = B2 + 4 * u
        for r in range(4): p(f"v_fmac_f32 v{b+r}, v{d+r}, v23")
        p(f"v_cvt_pk_bf16_f32 v{XO+2*u}, v{b}, v{b+1}")
        p(f"v_cvt_pk_bf16_f32 v{XO+2*u+1}, v{b+2}, v{b+3}")
        p(f"buffer_store_dwordx2 v[{XO+2*u}:{XO+2*u+1}], v28, s[40:43], 0 offen offset:{32*u}")
    if O.get("span"):
        p("""
        s_waitcnt vmcnt(0)
        s_memrealtime s[66:67]
        s_load_dwordx2 s[68:69], s[0:1], 72
        s_waitcnt lgkmcnt(0)
        s_mov_b32 s72, s68
        s_mov_b32 s73, s69
        s_mov_b32 s74, 256
        s_mov_b32 s75, 0x00020000
        s_not_b32 s64, s64
        v_mov_b32 v60, s64
        v_mov_b32 v61, s66
        v_mov_b32 v62, 0
        s_mov_b64 exec, 1
        buffer_atomic_umax v60, v62, s[72:75], 0 offen offset:4 sc1
        buffer_atomic_umax v61, v62, s[72:75], 0 offen offset:8 sc1
        """)
    S.stamp()
    S.dump(10, 11, 28, region=0, vt=60)
    p("s_endpgm")

def gen_fused(p):
    name = KNAME
    head(p, name)
    p("s_cmp_ge_u32 s2, 512")
    p("s_cbranch_scc1 CODE_END")
    S = Stamps(p, base=82)
    S.stamp()
    if O.get("span"): p("s_memrealtime s[64:65]")
    p("s_load_dwordx4 s[4:7], s[0:1], 0")
    p("s_load_dwordx4 s[8:11], s[0:1], 72")
    p("""
    v_lshrrev_b32 v1, 6, v0
    v_and_b32 v2, 63, v0
    s_cmp_ge_u32 s2, 256
    v_readfirstlane_b32 s28, v1
    s_cbranch_scc1 B_role
    s_setprio 1
    """)
    n0 = S.n
    if O.get("split"):
        gen_params_a(p)
        gen_qkv(p, S)
    else:
        gen_qkv1(p, S)
    gen_att(p, S)
    p.raw(".p2align 6")
    p.label("B_role")
    S.n = n0; S.off = False
    gen_b(p, S)
    return kd(name, NVGPR), (f"; @launch kernel={name} " if not O.get("plain") else "; @launch ") + "grid=(512,1,1) block=(256,1,1) lds=81920"
```

```python
from common import *
import common
from att import S0, NM, OO, PP, QA, QB, QT, KM, KT, VV, NVGPR, LTHRESH, BIG, m2b

O = common.OPT
KNAME = "gated_mix__mha_block__swiglu_ffn__prompt_kernel"

def emit(p, gs):
    for g in gs:
        for l in g: p(l)

def flag_srd(p):
    srd_off(p, 60, 10, 11, hex(WS_F), 0x20000)

def poll(p, lab, srdn, off_s, imm, cmp, target, sleep=2, limit=1 << 20):
    p(f"""
    s_cmp_lg_u32 s28, 0
    s_cbranch_scc1 {lab}_done
    s_add_u32 s98, s{srdn}, {off_s}
    s_addc_u32 s99, s{srdn+1}, 0
    s_mov_b32 s59, 0
    """)
    p.label(lab)
    p(f"""
    s_load_dword s58, s[98:99], {imm} glc
    s_add_u32 s59, s59, 1
    s_waitcnt lgkmcnt(0)
    s_cmp_{cmp}_u32 s58, {target}
    s_cbranch_scc1 {lab}_done
    s_cmp_gt_u32 s59, {limit}
    s_cbranch_scc1 {lab}_done
    s_sleep {sleep}
    s_branch {lab}
    """)
    p.label(f"{lab}_done")

def vpoll_init(p, lab):
    srd(p, 52, 8, 9, 256)
    p(f"""
    s_cmp_lg_u32 s28, 0
    s_cbranch_scc1 {lab}_done
    v_mov_b32 v222, 0
    s_mov_b32 s59, 0
    """)
    p.label(lab)
    p(f"""
    buffer_load_dword v223, v222, s[52:55], 0 offen sc1
    s_add_u32 s59, s59, 1
    s_waitcnt vmcnt(0)
    v_readfirstlane_b32 s58, v223
    s_cmp_lg_u32 s58, 0
    s_cbranch_scc1 {lab}_done
    s_cmp_gt_u32 s59, 0x100000
    s_cbranch_scc1 {lab}_done
    s_sleep 8
    s_branch {lab}
    """)
    p.label(f"{lab}_done")

def sig_lines(lab, line_s, n, imm=0):
    out = ["s_cmp_lg_u32 s28, 0", f"s_cbranch_scc1 {lab}", f"s_lshl_b32 s58, {line_s}, 8", "s_add_u32 s100, s60, s58", "s_addc_u32 s101, s61, 0", "s_mov_b32 s95, 0x20000"]
    out += [f"s_atomic_add s95, s[100:101], {256*k + imm}" for k in range(n)]
    out.append(f"{lab}:")
    return out
def signal(p, lab, line_s, n, imm=0):
    for l in sig_lines(lab, line_s, n, imm): p(l)

def aux_prefetch(p, lo, hi, idx_s, srdn, vtmp):
    if not O.get("aux"): return
    srd(p, srdn, lo, hi, 640 * 1536 * 2)
    p(f"""
    s_mul_i32 s58, {idx_s}, 122880
    v_lshlrev_b32 v{vtmp}, 4, v0
    v_add_u32 v{vtmp}, s58, v{vtmp}
    """)
    for i in range(30):
        p(f"s_mov_b32 s58, {4096*i}")
        p(f"buffer_load_dwordx4 v[216:219], v{vtmp}, s[{srdn}:{srdn+3}], s58 offen")

STRADDLE = 0x12481248
def mod10(p, d, t):
    p(f"""
    s_cmp_ge_u32 {d}, 10
    s_cselect_b32 {t}, 10, 0
    s_sub_u32 {d}, {d}, {t}
    """)
def gen_params_a(p):
    p("""
    s_and_b32 s24, s2, 7
    s_lshr_b32 s25, s2, 3
    s_lshr_b32 s29, s24, 1             ; x/2
    s_and_b32 s30, s24, 1              ; x%2
    s_cmp_ge_u32 s25, 30
    s_cbranch_scc1 A_gate
    s_add_u32 s48, s2, 256
    s_mov_b32 s56, 136
    s_cmp_ge_u32 s25, 20
    s_cbranch_scc1 A_kv
    s_mul_i32 s31, s29, 20
    s_add_u32 s31, s31, s25            ; i
    s_lshr_b32 s27, s31, 3
    s_and_b32 s31, s31, 7
    s_lshl_b32 s26, s30, 1
    s_add_u32 s26, s26, s31
    s_mul_i32 s32, s30, 6
    s_add_u32 s32, s32, s31
    s_add_u32 s32, s32, 2
    s_cmp_lt_u32 s31, 2
    s_cselect_b32 s26, s26, s32        ; mt
    s_lshr_b32 s32, s25, 3
    s_lshl_b32 s32, s32, 1
    s_mov_b32 s38, s31
    s_branch A_par
    A_kv:
    s_sub_u32 s32, s25, 20
    s_and_b32 s31, s32, 1
    s_lshr_b32 s32, s32, 1
    s_lshl_b32 s26, s30, 1
    s_add_u32 s26, s26, s31
    s_mul_i32 s27, s29, 5
    s_add_u32 s27, s27, s32
    s_add_u32 s27, s27, 10
    s_mul_i32 s38, s31, 5
    A_par:
    s_lshl_b32 s32, s32, 1
    s_add_u32 s38, s38, s32
    """)
def gen_params_b(p):
    p("""
    s_lshr_b32 s29, s24, 1
    s_and_b32 s30, s24, 1
    s_mul_i32 s32, s25, 43
    s_lshr_b32 s32, s32, 8             ; j/6
    s_mul_i32 s31, s32, 6
    s_sub_u32 s31, s25, s31            ; j%6
    s_mul_i32 s26, s30, 6
    s_add_u32 s26, s26, s31
    s_add_u32 s26, s26, 4
    s_mul_i32 s27, s29, 5
    s_add_u32 s27, s27, s32
    s_add_u32 s27, s27, 10
    s_lshl_b32 s38, s32, 1
    s_add_u32 s38, s38, s31
    s_mov_b32 s48, 200
    s_mov_b32 s56, 104
    """)
def gen_qkv(p, S):
    p.label("QKV_tile")
    mod10(p, "s38", "s39")
    p("""
    s_lshl_b32 s29, s26, 7
    s_lshl_b32 s30, s28, 5
    s_add_u32 s30, s30, s29
    v_lshrrev_b32 v101, 3, v2
    v_and_b32 v102, 7, v2
    v_lshrrev_b32 v103, 1, v101
    v_xor_b32 v102, v102, v103
    v_lshlrev_b32 v102, 4, v102
    v_add_u32 v101, s30, v101
    v_mul_u32_u24 v101, 1280, v101
    v_add_u32 v99, v101, v102
    v_xor_b32 v100, 64, v99
    v_add_u32 v100, 10240, v100
    s_lshl_b32 s31, s28, 12
    v_lshrrev_b32 v101, 2, v2
    s_lshl_b32 s32, s28, 4
    v_add_u32 v101, s32, v101
    v_mul_u32_u24 v101, 3840, v101
    v_and_b32 v102, 3, v2
    v_lshlrev_b32 v102, 4, v102
    s_lshl_b32 s32, s27, 7
    v_add3_u32 v104, v101, v102, s32
    s_lshl_b32 s32, s28, 11
    s_add_u32 s32, s32, 49152
    s_mov_b32 s37, s38
    s_waitcnt lgkmcnt(0)
    """)
    srd(p, 12, 4, 5, 2048 * 640 * 2)
    srd(p, 16, 6, 7, 640 * 1920 * 2)
    def item(it):
        if it[0] == "x":
            _, sg, hf = it
            base = (sg % 3) * 16384 + hf * 2048
            a = "s_lshl_b32 s33, s38, 7" if hf == 0 else "s_add_u32 s33, s33, 20480"
            b = ["s_nop 0"] if hf == 0 else ["s_add_u32 s38, s38, 1", "s_cmp_eq_u32 s38, 10", "s_cselect_b32 s38, 0, s38"]
            return [[f"s_add_u32 m0, s31, {base}", a, "buffer_load_dwordx4 v99, s[12:15], s33 offen lds"],
                    [f"s_add_u32 m0, s31, {base + 1024}"] + b + ["buffer_load_dwordx4 v100, s[12:15], s33 offen lds"]]
        _, h = it
        base = (h % 4) * 8192
        return [[f"s_add_u32 m0, s32, {base}", "s_mul_i32 s34, s37, 245760", "buffer_load_dwordx4 v104, s[16:19], s34 offen lds"],
                [f"s_add_u32 m0, s32, {base + 960}", "s_add_u32 s37, s37, 1", "s_cmp_eq_u32 s37, 10", "s_cselect_b32 s37, 0, s37",
                 "buffer_load_dwordx4 v104, s[16:19], s34 offen offset:64 lds"]]
    order = []
    for h in range(10): order += [("w", h), ("x", h, 0), ("x", h, 1)]
    def need(it): return it[1]
    def free_after(it): return it[1] - 3 if it[0] == "x" else it[1] - 4
    NPRO = int(O.get("qpro", 6))
    for it in order[:NPRO]: emit(p, item(it))
    p("""
    s_and_b32 s35, s28, 1              ; wm
    s_lshr_b32 s36, s28, 1             ; wn
    v_and_b32 v101, 31, v2               ; l32
    v_lshrrev_b32 v102, 5, v2            ; hh
    v_lshrrev_b32 v103, 1, v101
    v_and_b32 v103, 7, v103
    v_xor_b32 v103, v103, v102
    v_lshlrev_b32 v103, 4, v103
    s_lshl_b32 s40, s35, 13
    v_lshlrev_b32 v105, 7, v101
    v_add3_u32 v106, v105, v103, s40
    v_xor_b32 v107, 32, v106
    v_xor_b32 v108, 64, v106
    v_xor_b32 v109, 96, v106
    v_bfe_u32 v105, v2, 2, 2
    v_lshlrev_b32 v103, 6, v105
    v_bfe_u32 v105, v2, 4, 1
    v_lshl_add_u32 v103, v105, 5, v103
    v_lshl_add_u32 v103, v102, 9, v103
    s_lshl_b32 s40, s36, 10
    s_add_u32 s40, s40, 49152
    v_add_u32 v110, s40, v103
    s_cmp_ge_u32 s27, 10
    s_cselect_b32 s39, 1, 0
    s_cmp_ge_u32 s27, 20
    s_cselect_b32 s39, 2, s39          ; section
    s_mul_i32 s40, s39, 10
    s_sub_u32 s45, s27, s40            ; block within the section
    s_lshl_b32 s40, s45, 6
    s_lshl_b32 s41, s36, 5
    s_add_u32 s40, s40, s41            ; nbase
    s_lshr_b32 s41, s26, 1
    s_mul_i32 s41, s41, 20480
    s_and_b32 s42, s26, 1
    s_lshl_b32 s42, s42, 1
    s_add_u32 s42, s42, s35            ; pair
    s_cmp_eq_u32 s39, 0
    s_cselect_b32 s43, {WS_Q}, {WS_KV}
    s_mov_b32 s44, 163840
    ; counters of this tile: heads h0..h0+3
    s_mul_i32 s46, s45, 3277
    s_lshr_b32 s46, s46, 10
    s_add_u32 s46, s46, s56
    v_mov_b32 v144, 0x40000000
    """.replace("{WS_Q}", hex(WS_Q)).replace("{WS_KV}", hex(WS_KV)))
    srd_off(p, 20, 10, 11, "s43", 32 * HEAD_STRIDE)
    flag_srd(p)
    srd(p, 52, 8, 9, 256)
    p("v_mov_b32 v114, 0")
    p("s_cmp_eq_u32 s39, 2")
    p("s_cbranch_scc1 A_vpath")
    ACC = 184; FR = 32; OFF = 128
    def reads(t):
        sg, ks = divmod(t, 4)
        b = FR + 12 * (t % 4)
        out = []
        for tm in range(2):
            out.append(f"ds_read_b128 v[{b+4*tm}:{b+4*tm+3}], v{106+ks} offset:{(sg % 3)*16384 + tm*4096}")
        for a in range(2):
            r = b + 8 + 2 * a
            out.append(f"ds_read_b64_tr_b16 v[{r}:{r+1}], v110 offset:{(sg % 4)*8192 + ks*2048 + a*256}")
        return out
    def mfmas(t, vrole):
        b = FR + 12 * (t % 4)
        out = []
        for tm in range(2):
            x = b + 4 * tm; w = b + 8
            a_, b_ = (x, w) if vrole else (w, x)
            out.append(mfma32(ACC + 16 * tm, a_, b_, "0" if t == 0 else None))
        return out
    def mainloop(vrole):
        log = [need(it) for it in order[:NPRO] for _ in range(2)]
        nxt = NPRO
        def younger(h):
            assert log.count(h) == 6
            last = max(i for i, e in enumerate(log) if e <= h)
            return len(log) - 1 - last
        p(f"s_waitcnt vmcnt({younger(0)})")
        p("s_barrier")
        for l in reads(0) + reads(1): p(l)
        for u in range(20):
            sg, k2 = divmod(u, 2)
            mf = mfmas(2 * u, vrole) + mfmas(2 * u + 1, vrole)
            rd = (reads(2 * u + 2) + reads(2 * u + 3)) if u < 19 else []
            extra = []
            if k2 == 1 and u < 19:
                p(f"s_waitcnt vmcnt({younger(sg + 1)}) lgkmcnt(0)")
                p("s_barrier")
                done = sg
            else:
                p("s_waitcnt lgkmcnt(0)")
                done = sg - 1
            cnt = 0
            while nxt < len(order) and free_after(order[nxt]) <= done and cnt < 2:
                extra += item(order[nxt]); log += [need(order[nxt])] * 2; nxt += 1; cnt += 1
            if 2 * u == int(O.get("b2start", 16)):
                lab = "A_go" + ("v" if vrole else "q")
                extra.append(["s_cmp_ge_u32 s2, 256", f"s_cbranch_scc1 {lab}"] + sig_lines(lab, "s48", 1))
            for l in rd[0:3]: p(l)
            fill = [rd[3:6], rd[6:8], sum(extra[:2], []), sum(extra[2:], [])]
            for i, m in enumerate(mf):
                p(m)
                for l in fill[i]: p(l)
        S.stamp()
        p("buffer_load_dword v115, v114, s[52:55], 0 offen sc1")
    p("""
    v_and_b32 v103, 1, v2
    v_lshl_add_u32 v110, v103, 4, v110
    v_bfe_u32 v103, v2, 1, 1
    v_lshl_add_u32 v110, v103, 3, v110
    v_lshlrev_b32 v122, 4, v101
    v_add_u32 v122, s41, v122
    s_lshl_b32 s56, s42, 11
    s_lshl_b32 s57, s42, 9
    s_add_u32 s57, s57, 8192
    s_lshr_b32 s47, s40, 3
    v_add_u32 v123, s47, v102
    s_lshl_b32 s47, s44, 1
    """)
    MK = [40, 42]
    for k in range(2):
        m = MK[k]
        p(f"""
        v_add_u32 v124, {2*k}, v123
        v_mul_u32_u24 v125, 13108, v124
        v_lshrrev_b32 v125, 16, v125
        v_mul_u32_u24 v126, 5, v125
        v_sub_u32 v126, v124, v126
        v_mul_lo_u32 v125, v125, s47
        v_add_u32 v125, v125, v122
        v_cmp_lt_u32 vcc, 2, v126
        v_mov_b32 v124, s44
        v_add_u32 v127, 1, v126
        v_cndmask_b32 v124, 0, v124, vcc
        v_cndmask_b32 v127, v126, v127, vcc
        v_and_b32 v127, 1, v127
        v_lshl_add_u32 v124, v127, 9, v124
        v_add3_u32 v124, v124, v125, s56
        v_cmp_eq_u32 s[{m}:{m+1}], 2, v126
        v_add_u32 v125, s57, v125
        s_nop 0
        v_cndmask_b32 v{OFF+k}, v124, v144, s[{m}:{m+1}]
        v_cndmask_b32 v{OFF+4+k}, v144, v125, s[{m}:{m+1}]
        """)
    p("s_cmp_eq_u32 s39, 0")
    p(f"s_cselect_b32 s56, {hex(QSCALE)}, 1.0")
    p("s_mov_b32 s57, s56")
    n0 = S.n
    mainloop(False)
    p("s_nop 7")
    p("s_nop 1")
    for i in range(16):
        p(f"v_pk_mul_f32 v[{ACC+2*i}:{ACC+2*i+1}], v[{ACC+2*i}:{ACC+2*i+1}], s[56:57]")
    for k in range(2):
        for tm in range(2):
            d = ACC + 16 * tm + 8 * k
            t0 = FR + 4 * (2 * k + tm)
            for i in range(4): p(f"v_cvt_pk_bf16_f32 v{t0+i}, v{d+2*i}, v{d+2*i+1}")
            p(f"buffer_store_dwordx4 v[{t0}:{t0+3}], v{OFF+k}, s[20:23], 0 offen offset:{1024*tm} sc1")
    for k in range(2):
        a = FR + 8 * k; b = a + 4
        t = 148 + 8 * k; m = MK[k]
        p(f"s_cmp_eq_u64 s[{m}:{m+1}], 0")
        p(f"s_cbranch_scc1 A_notail{k}")
        for i, src in enumerate((a, a + 1, b, b + 1, a + 2, a + 3, b + 2, b + 3)):
            p(f"v_mov_b32 v{t+i}, v{src}")
        p(f"buffer_store_dwordx4 v[{t}:{t+3}], v{OFF+4+k}, s[20:23], 0 offen sc1")
        p(f"buffer_store_dwordx4 v[{t+4}:{t+7}], v{OFF+4+k}, s[20:23], s44 offen sc1")
        p.label(f"A_notail{k}")
    p("s_branch A_publish")
    p.label("A_vpath")
    p(f"""
    v_and_b32 v103, 3, v2
    v_lshl_add_u32 v110, v103, 3, v110
    s_mul_i32 s45, s42, 2560
    s_add_u32 s45, s45, s41
    s_add_u32 s45, s45, 10240
    v_mul_u32_u24 v122, 320, v102
    v_add_u32 v122, s45, v122
    v_add_u32 v124, s40, v101
    v_mul_u32_u24 v125, 3277, v124
    v_lshrrev_b32 v125, 16, v125
    v_mul_u32_u24 v126, 20, v125
    v_sub_u32 v126, v124, v126
    v_mul_lo_u32 v125, v125, s44
    v_lshl_add_u32 v126, v126, 4, v122
    v_add_u32 v{OFF}, v125, v126
    """)
    S.n = n0
    mainloop(True)
    p("s_nop 7")
    p("s_nop 2")
    for tm in range(2):
        d = ACC + 16 * tm
        for half in range(2):
            t0 = FR + 4 * (2 * tm + half)
            for i in range(4):
                p(f"v_cvt_pk_bf16_f32 v{t0+i}, v{d+8*half+2*i}, v{d+8*half+2*i+1}")
            p(f"buffer_store_dwordx4 v[{t0}:{t0+3}], v{OFF}, s[20:23], 0 offen offset:{(2*tm+half)*640} sc1")
    p("s_branch A_publish")
    p.label("A_gate")
    p("s_load_dwordx2 s[34:35], s[0:1], 56")
    p("""
    s_lshl_b32 s31, s29, 1
    s_add_u32 s31, s31, s25
    s_sub_u32 s31, s31, 30
    s_lshl_b32 s26, s30, 1
    s_add_u32 s26, s26, s31
    s_mul_i32 s32, s30, 6
    s_add_u32 s32, s32, s31
    s_add_u32 s32, s32, 2
    s_cmp_lt_u32 s31, 2
    s_cselect_b32 s26, s26, s32        ; mt
    s_lshl_b32 s29, s26, 7
    s_lshl_b32 s30, s28, 5
    s_add_u32 s30, s30, s29
    s_waitcnt lgkmcnt(0)
    """)
    srd(p, 12, 4, 5, 2048 * 640 * 2)
    srd(p, 16, 34, 35, 1280)
    srd_off(p, 20, 10, 11, hex(WS_G), 8192)
    flag_srd(p)
    p("""
    v_and_b32 v5, 15, v2
    v_lshrrev_b32 v6, 4, v2
    v_lshlrev_b32 v7, 4, v5
    v_add_u32 v8, s30, v6
    v_mul_u32_u24 v9, 1280, v8
    v_add_u32 v9, v9, v7
    v_lshlrev_b32 v8, 2, v8
    """)
    GW = 20; XR = 40; NR = 8; Z = 200
    for j in range(5):
        p(f"buffer_load_dwordx4 v[{GW+4*j}:{GW+4*j+3}], v7, s[16:19], 0 offen offset:{256*j}")
    for rg in range(NR):
        p(f"s_mov_b32 s33, {rg*4*1280}")
        for j in range(5):
            r = XR + 20 * rg + 4 * j
            p(f"buffer_load_dwordx4 v[{r}:{r+3}], v9, s[12:15], s33 offen offset:{256*j}")
    for rg in range(NR): p(f"v_mov_b32 v{Z+rg}, 0")
    for rg in range(NR):
        p(f"s_waitcnt vmcnt({5*(NR-1-rg)})")
        for j in range(20):
            p(f"v_dot2_f32_bf16 v{Z+rg}, v{XR+20*rg+j}, v{GW+j}, v{Z+rg}")
    p("s_nop 3")
    for sh in (8, 4, 2, 1):
        for rg in range(NR):
            p(f"v_add_f32_dpp v{Z+rg}, v{Z+rg}, v{Z+rg} row_ror:{sh} row_mask:0xf bank_mask:0xf")
    p(f"s_mov_b32 s34, {hex(f2u(-math.log2(math.e)))}")
    for rg in range(NR): p(f"v_mul_f32 v{Z+rg}, s34, v{Z+rg}")
    for rg in range(NR): p(f"v_exp_f32 v{Z+rg}, v{Z+rg}")
    for rg in range(NR): p(f"v_add_f32 v{Z+rg}, 1.0, v{Z+rg}")
    for rg in range(NR): p(f"v_rcp_f32 v{Z+rg}, v{Z+rg}")
    p("v_cmp_eq_u32 vcc, 0, v5")
    p("s_and_saveexec_b64 s[56:57], vcc")
    for rg in range(NR):
        p(f"buffer_store_dword v{Z+rg}, v8, s[20:23], 0 offen offset:{16*rg} sc1")
    p("s_mov_b64 exec, -1")
    p("s_lshl_b32 s46, s26, 1")
    p("s_add_u32 s46, s46, 32")
    p("s_waitcnt vmcnt(0)")
    p("s_barrier")
    vpoll_init(p, "G_init")
    signal(p, "G_sig", "s46", 2)
    p("s_branch AT_start")
    p.label("A_publish")
    p("s_waitcnt vmcnt(0)")
    p("v_readfirstlane_b32 s49, v115")
    p("s_barrier")
    p("s_cmp_lg_u32 s49, 0")
    p("s_cbranch_scc1 A_init_done")
    vpoll_init(p, "A_init")
    signal(p, "A_sig", "s46", 4)
    S.stamp()
    p("s_cmp_ge_u32 s2, 256")
    p("s_cbranch_scc1 B_after")
    p.label("AT_start")

def gen_qkv1(p, S):
    p("""
    s_and_b32 s24, s2, 7
    s_lshr_b32 s25, s2, 3
    s_and_b32 s26, s24, 3
    s_lshl_b32 s26, s26, 2
    s_and_b32 s27, s25, 3
    s_add_u32 s26, s26, s27            ; mt
    s_lshr_b32 s27, s24, 2
    s_lshl_b32 s27, s27, 3
    s_lshr_b32 s29, s25, 2
    s_add_u32 s27, s27, s29            ; nt
    s_lshl_b32 s29, s26, 7             ; 128*mt
    s_lshl_b32 s30, s28, 5
    s_add_u32 s30, s30, s29
    s_cmp_eq_u32 s27, 15
    s_cbranch_scc1 A_gate
    v_lshrrev_b32 v5, 3, v2
    v_and_b32 v6, 7, v2
    v_lshrrev_b32 v7, 1, v5
    v_xor_b32 v6, v6, v7
    v_lshlrev_b32 v6, 4, v6
    v_add_u32 v5, s30, v5
    v_mul_u32_u24 v5, 1280, v5
    v_add_u32 v3, v5, v6
    v_xor_b32 v4, 64, v3
    v_add_u32 v4, 10240, v4
    s_lshl_b32 s31, s28, 12
    s_and_b32 s35, s28, 1              ; wm
    s_lshr_b32 s36, s28, 1             ; wn
    v_lshrrev_b32 v5, 2, v2
    s_lshl_b32 s32, s36, 4
    v_add_u32 v5, s32, v5
    v_mul_u32_u24 v5, 3840, v5
    v_and_b32 v6, 3, v2
    v_lshlrev_b32 v6, 4, v6
    s_lshl_b32 s32, s27, 8
    s_lshl_b32 s33, s35, 7
    s_add_u32 s32, s32, s33
    v_add3_u32 v8, v5, v6, s32
    s_lshl_b32 s32, s28, 11
    s_add_u32 s32, s32, 49152
    s_and_b32 s38, s25, 3
    s_mul_i32 s38, s38, 3
    s_lshr_b32 s39, s25, 2
    s_add_u32 s38, s38, s39
    s_cmp_ge_u32 s38, 10
    s_cselect_b32 s39, 10, 0
    s_sub_u32 s38, s38, s39
    s_lshl_b32 s37, s38, 1
    s_waitcnt lgkmcnt(0)
    """)
    srd(p, 12, 4, 5, 2048 * 640 * 2)
    srd(p, 16, 6, 7, 640 * 1920 * 2)
    def item(it):
        if it[0] == "x":
            _, sg, hf = it
            base = (sg % 3) * 16384 + hf * 2048
            a = "s_lshl_b32 s33, s38, 7" if hf == 0 else "s_add_u32 s33, s33, 20480"
            b = ["s_nop 0"] if hf == 0 else ["s_add_u32 s38, s38, 1", "s_cmp_eq_u32 s38, 10", "s_cselect_b32 s38, 0, s38"]
            return [[f"s_add_u32 m0, s31, {base}", a, "buffer_load_dwordx4 v3, s[12:15], s33 offen lds"],
                    [f"s_add_u32 m0, s31, {base + 1024}"] + b + ["buffer_load_dwordx4 v4, s[12:15], s33 offen lds"]]
        _, h = it
        base = (h % 4) * 8192
        return [[f"s_add_u32 m0, s32, {base}", "s_mul_i32 s34, s37, 122880", "buffer_load_dwordx4 v8, s[16:19], s34 offen lds"],
                [f"s_add_u32 m0, s32, {base + 960}", "s_add_u32 s37, s37, 1", "s_cmp_eq_u32 s37, 20", "s_cselect_b32 s37, 0, s37",
                 "buffer_load_dwordx4 v8, s[16:19], s34 offen offset:64 lds"]]
    order = []
    for h in range(20):
        if h % 2 == 0: order += [("x", h // 2, 0), ("x", h // 2, 1)]
        order.append(("w", h))
    def need(it): return 2 * it[1] if it[0] == "x" else it[1]
    def free_after(it): return 2 * (it[1] - 3) + 1 if it[0] == "x" else it[1] - 4
    NPRO = int(O.get("qpro", 7))
    if O.get("qst"): S.stamp()
    for n_, it in enumerate(order[:NPRO]):
        emit(p, item(it))
        if O.get("qst") and n_ == 2: S.stamp()
    if O.get("qst"): S.stamp()
    p("""
    v_and_b32 v5, 31, v2               ; l32
    v_lshrrev_b32 v6, 5, v2            ; hh
    v_lshrrev_b32 v7, 1, v5
    v_and_b32 v7, 7, v7
    v_xor_b32 v7, v7, v6
    v_lshlrev_b32 v7, 4, v7
    s_lshl_b32 s40, s35, 13
    v_lshlrev_b32 v9, 7, v5
    v_add3_u32 v10, v9, v7, s40
    v_xor_b32 v11, 32, v10
    v_xor_b32 v12, 64, v10
    v_xor_b32 v13, 96, v10
    v_bfe_u32 v9, v2, 2, 2
    v_lshlrev_b32 v7, 6, v9
    v_bfe_u32 v9, v2, 4, 1
    v_lshl_add_u32 v7, v9, 5, v7
    v_lshl_add_u32 v7, v6, 9, v7
    s_lshl_b32 s40, s36, 11
    s_add_u32 s40, s40, 49152
    v_add_u32 v14, s40, v7
    s_cmp_ge_u32 s27, 5
    s_cselect_b32 s39, 1, 0
    s_cmp_ge_u32 s27, 10
    s_cselect_b32 s39, 2, s39          ; section
    s_mul_i32 s40, s39, 5
    s_sub_u32 s45, s27, s40            ; nt'
    s_lshl_b32 s40, s45, 7
    s_lshl_b32 s41, s36, 6
    s_add_u32 s40, s40, s41            ; nbase
    s_lshr_b32 s41, s26, 1
    s_mul_i32 s41, s41, 20480
    s_and_b32 s42, s26, 1
    s_lshl_b32 s42, s42, 1
    s_add_u32 s42, s42, s35            ; pair
    s_cmp_eq_u32 s39, 0
    s_cselect_b32 s43, {WS_Q}, {WS_KV}
    s_mov_b32 s44, 163840
    s_mul_i32 s96, s45, 6554
    s_lshr_b32 s96, s96, 10            ; h0 = 128nt'/20 ; the tile feeds 7 heads (8 for nt' = 2)
    s_lshl_b32 s97, s39, 5
    s_add_u32 s96, s96, s97
    s_add_u32 s96, s96, 136
    s_mov_b32 s97, s45
    v_mov_b32 v144, 0x40000000
    v_mov_b32 v18, 0
    s_add_u32 s3, s2, 256
    """.replace("{WS_Q}", hex(WS_Q)).replace("{WS_KV}", hex(WS_KV)))
    srd_off(p, 20, 10, 11, "s43", 32 * HEAD_STRIDE)
    flag_srd(p)
    p("s_cmp_eq_u32 s39, 2")
    p("s_cbranch_scc1 A_vpath")
    ACC = 64; FR = 32; OFF = 128
    def reads(t):
        h, k2 = divmod(t, 2); sg, ks = divmod(t, 4)
        b = FR + 16 * (t % 2)
        out = []
        for tm in range(2):
            out.append(f"ds_read_b128 v[{b+4*tm}:{b+4*tm+3}], v{10+ks} offset:{(sg % 3)*16384 + tm*4096}")
        for tn in range(2):
            for a in range(2):
                r = b + 8 + 4 * tn + 2 * a
                out.append(f"ds_read_b64_tr_b16 v[{r}:{r+1}], v14 offset:{(h % 4)*8192 + k2*4096 + tn*1024 + a*256}")
        return out
    def mfmas(t, vrole):
        b = FR + 16 * (t % 2)
        out = []
        for tm in range(2):
            for tn in range(2):
                d = ACC + 16 * (2 * tm + tn)
                x = b + 4 * tm; w = b + 8 + 4 * tn
                a_, b_ = (x, w) if vrole else (w, x)
                out.append(mfma32(d, a_, b_, "0" if t == 0 else None))
        return out
    def mainloop(vrole, lab):
        log = [need(it) for it in order[:NPRO] for _ in range(2)]
        nxt = NPRO
        def younger(h):
            last = max(i for i, e in enumerate(log) if e <= h)
            return len(log) - 1 - last
        if O.get("qst"): S.stamp()
        p(f"s_waitcnt vmcnt({younger(0)})")
        p("s_barrier")
        if O.get("qst"): S.stamp(); S.off = True
        for l in reads(0): p(l)
        started = False
        for t in range(40):
            h, k2 = divmod(t, 2)
            mf = mfmas(t, vrole)
            rd = reads(t + 1) if t < 39 else []
            extra = []
            if k2 == 1 and t < 39:
                p(f"s_waitcnt vmcnt({younger(h + 1)}) lgkmcnt(0)")
                p("s_barrier")
                done = h
            else:
                p("s_waitcnt lgkmcnt(0)")
                done = h - 1
            cnt = 0
            while nxt < len(order) and free_after(order[nxt]) <= done and cnt < (2 if k2 == 1 else 1):
                extra += item(order[nxt]); log += [need(order[nxt])] * 2; nxt += 1; cnt += 1
            if t == 24 and O.get("two"):
                extra.insert(0, ["buffer_load_dword v20, v18, s[52:55], 0 offen sc1"])
            if t == 2 * int(O.get("bstart", 99)):
                extra.append(sig_lines("A_go" + lab, "s3", 1, 4))
            for l in rd[0:2]: p(l)
            fill = [rd[2:4], rd[4:6], sum(extra[:2], []), sum(extra[2:], [])]
            for i, m in enumerate(mf):
                p(m)
                for l in fill[i]: p(l)
        S.stamp()
        p("buffer_load_dword v19, v18, s[52:55], 0 offen sc1")
    srd(p, 52, 8, 9, 256)
    p("""
    v_and_b32 v7, 1, v2
    v_lshl_add_u32 v14, v7, 4, v14
    v_bfe_u32 v7, v2, 1, 1
    v_lshl_add_u32 v14, v7, 3, v14
    v_lshlrev_b32 v26, 4, v5
    v_add_u32 v26, s41, v26
    s_lshl_b32 s45, s42, 11
    s_lshl_b32 s46, s42, 9
    s_add_u32 s46, s46, 8192
    s_lshr_b32 s47, s40, 3
    v_add_u32 v27, s47, v6
    s_lshl_b32 s47, s44, 1
    """)
    MK = [40, 42, 48, 50]
    p("s_mov_b32 s56, s45"); p("s_mov_b32 s57, s46")
    for k in range(4):
        m = MK[k]
        p(f"""
        v_add_u32 v28, {2*k}, v27
        v_mul_u32_u24 v29, 13108, v28
        v_lshrrev_b32 v29, 16, v29
        v_mul_u32_u24 v30, 5, v29
        v_sub_u32 v30, v28, v30
        v_mul_lo_u32 v29, v29, s47
        v_add_u32 v29, v29, v26
        v_cmp_lt_u32 vcc, 2, v30
        v_mov_b32 v28, s44
        v_add_u32 v31, 1, v30
        v_cndmask_b32 v28, 0, v28, vcc
        v_cndmask_b32 v31, v30, v31, vcc
        v_and_b32 v31, 1, v31
        v_lshl_add_u32 v28, v31, 9, v28
        v_add3_u32 v28, v28, v29, s56
        v_cmp_eq_u32 s[{m}:{m+1}], 2, v30
        v_add_u32 v29, s57, v29
        s_nop 0
        v_cndmask_b32 v{OFF+k}, v28, v144, s[{m}:{m+1}]
        v_cndmask_b32 v{OFF+4+k}, v144, v29, s[{m}:{m+1}]
        """)
    n0 = S.n
    mainloop(False, "Aq")
    p("s_cmp_lg_u32 s39, 0")
    p("s_cbranch_scc1 A_noscale")
    p(f"s_mov_b32 s56, {hex(QSCALE)}")
    p(f"s_mov_b32 s57, {hex(QSCALE)}")
    p("s_nop 6")
    for i in range(32):
        p(f"v_pk_mul_f32 v[{ACC+2*i}:{ACC+2*i+1}], v[{ACC+2*i}:{ACC+2*i+1}], s[56:57]")
    p.label("A_noscale")
    p("s_nop 7")
    p("s_nop 1")
    for k in range(4):
        tn, half = divmod(k, 2)
        for tm in range(2):
            d = ACC + 16 * (2 * tm + tn) + 8 * half
            t0 = FR + 4 * (2 * k + tm)
            for i in range(4): p(f"v_cvt_pk_bf16_f32 v{t0+i}, v{d+2*i}, v{d+2*i+1}")
            p(f"buffer_store_dwordx4 v[{t0}:{t0+3}], v{OFF+k}, s[20:23], 0 offen offset:{1024*tm} sc1")
    for k in range(4):
        a = FR + 8 * k; b = a + 4
        t = 148 + 8 * k; m = MK[k]
        p(f"s_cmp_eq_u64 s[{m}:{m+1}], 0")
        p(f"s_cbranch_scc1 A_notail{k}")
        for i, src in enumerate((a, a + 1, b, b + 1, a + 2, a + 3, b + 2, b + 3)):
            p(f"v_mov_b32 v{t+i}, v{src}")
        p(f"buffer_store_dwordx4 v[{t}:{t+3}], v{OFF+4+k}, s[20:23], 0 offen sc1")
        p(f"buffer_store_dwordx4 v[{t+4}:{t+7}], v{OFF+4+k}, s[20:23], s44 offen sc1")
        p.label(f"A_notail{k}")
    p("s_branch A_publish")
    p.label("A_vpath")
    srd(p, 52, 8, 9, 256)
    p("""
    v_and_b32 v7, 3, v2
    v_lshl_add_u32 v14, v7, 3, v14
    s_mul_i32 s45, s42, 2560
    s_add_u32 s45, s45, s41
    s_add_u32 s45, s45, 10240
    v_mul_u32_u24 v26, 320, v6
    v_add_u32 v26, s45, v26
    v_add_u32 v27, s40, v5
    """)
    for tn in range(2):
        p(f"""
        v_add_u32 v28, {32*tn}, v27
        v_mul_u32_u24 v29, 3277, v28
        v_lshrrev_b32 v29, 16, v29
        v_mul_u32_u24 v30, 20, v29
        v_sub_u32 v30, v28, v30
        v_mul_lo_u32 v29, v29, s44
        v_lshl_add_u32 v30, v30, 4, v26
        v_add_u32 v{OFF+tn}, v29, v30
        """)
    S.n = n0; S.off = False
    mainloop(True, "Av")
    p("s_nop 7")
    p("s_nop 2")
    for tm in range(2):
        for tn in range(2):
            d = ACC + 16 * (2 * tm + tn)
            for half in range(2):
                t0 = FR + 4 * (4 * tm + 2 * tn + half)
                for i in range(4):
                    p(f"v_cvt_pk_bf16_f32 v{t0+i}, v{d+8*half+2*i}, v{d+8*half+2*i+1}")
                p(f"buffer_store_dwordx4 v[{t0}:{t0+3}], v{OFF+tn}, s[20:23], 0 offen offset:{(2*tm+half)*640} sc1")
    p("s_branch A_publish")
    p.label("A_gate")
    p("s_load_dwordx2 s[34:35], s[0:1], 56")
    p("s_waitcnt lgkmcnt(0)")
    srd(p, 12, 4, 5, 2048 * 640 * 2)
    srd(p, 16, 34, 35, 1280)
    srd_off(p, 20, 10, 11, hex(WS_G), 8192)
    flag_srd(p)
    srd(p, 52, 8, 9, 256)
    p("""
    v_and_b32 v5, 15, v2
    v_lshrrev_b32 v6, 4, v2
    v_lshlrev_b32 v7, 4, v5
    v_add_u32 v8, s30, v6
    v_mul_u32_u24 v9, 1280, v8
    v_add_u32 v9, v9, v7
    v_lshlrev_b32 v8, 2, v8
    """)
    GW = 20; XR = 40; NR = 8; Z = 200
    for j in range(5):
        p(f"buffer_load_dwordx4 v[{GW+4*j}:{GW+4*j+3}], v7, s[16:19], 0 offen offset:{256*j}")
    for rg in range(NR):
        p(f"s_mov_b32 s33, {rg*4*1280}")
        for j in range(5):
            r = XR + 20 * rg + 4 * j
            p(f"buffer_load_dwordx4 v[{r}:{r+3}], v9, s[12:15], s33 offen offset:{256*j}")
    for rg in range(NR): p(f"v_mov_b32 v{Z+rg}, 0")
    for rg in range(NR):
        p(f"s_waitcnt vmcnt({5*(NR-1-rg)})")
        for j in range(20):
            p(f"v_dot2_f32_bf16 v{Z+rg}, v{XR+20*rg+j}, v{GW+j}, v{Z+rg}")
    p("s_nop 3")
    for sh in (8, 4, 2, 1):
        for rg in range(NR):
            p(f"v_add_f32_dpp v{Z+rg}, v{Z+rg}, v{Z+rg} row_ror:{sh} row_mask:0xf bank_mask:0xf")
    p(f"s_mov_b32 s34, {hex(f2u(-math.log2(math.e)))}")
    for rg in range(NR): p(f"v_mul_f32 v{Z+rg}, s34, v{Z+rg}")
    for rg in range(NR): p(f"v_exp_f32 v{Z+rg}, v{Z+rg}")
    for rg in range(NR): p(f"v_add_f32 v{Z+rg}, 1.0, v{Z+rg}")
    for rg in range(NR): p(f"v_rcp_f32 v{Z+rg}, v{Z+rg}")
    p("v_cmp_eq_u32 vcc, 0, v5")
    p("s_and_saveexec_b64 s[50:51], vcc")
    for rg in range(NR):
        p(f"buffer_store_dword v{Z+rg}, v8, s[20:23], 0 offen offset:{16*rg} sc1")
    p("s_mov_b64 exec, -1")
    p("s_lshl_b32 s46, s26, 1")
    p("s_add_u32 s46, s46, 32")
    p("s_waitcnt vmcnt(0)")
    p("s_barrier")
    vpoll_init(p, "G_init")
    signal(p, "G_sig", "s46", 2)
    p("s_branch AT_start")
    p.label("A_publish")
    if O.get("two"):
        p("v_readfirstlane_b32 s49, v20")
        p("s_cmp_eq_u32 s49, 0")
        p("s_cbranch_scc1 A_go3")
        signal(p, "A_go3", "s3", 1, 4)
    p("s_waitcnt vmcnt(0)")
    p("v_readfirstlane_b32 s49, v19")
    p("s_barrier")
    p("s_cmp_lg_u32 s49, 0")
    p("s_cbranch_scc1 A_init_done")
    vpoll_init(p, "A_init")
    L = sig_lines("A_sig", "s96", 8)
    for l in L[:-2] + ["s_cmp_lg_u32 s97, 2", "s_cbranch_scc1 A_sig"] + L[-2:]: p(l)
    if O.get("f1go", "0") == "4": signal(p, "A_go4", "s3", 1, 4)
    S.stamp()
    p.label("AT_start")

def gen_att(p, S):
    pre = "AT"
    p("""
    s_and_b32 s24, s2, 31              ; head
    s_lshr_b32 s25, s2, 5              ; qb
    v_and_b32 v3, 31, v0               ; l32
    v_bfe_u32 v4, v0, 5, 1             ; hh
    s_mul_i32 s26, s24, 163840
    s_mul_i32 s27, s25, 20480
    s_add_u32 s27, s27, s26
    v_lshlrev_b32 v5, 4, v2
    v_lshlrev_b32 v6, 4, v3
    s_mul_i32 s29, s28, 5120
    v_add_u32 v8, s29, v5
    v_add_u32 v9, 0x1000, v8
    s_lshl_b32 s30, s28, 11
    v_add_u32 v10, s30, v5
    s_lshl_b32 s30, s28, 9
    s_add_u32 s30, s30, 8192
    v_lshl_add_u32 v11, v4, 3, v6
    v_add_u32 v11, s30, v11
    s_mov_b32 s44, 0                   ; 0 = first attempt, 1 = exact max known
    s_mov_b32 s46, 0x000fffff
    s_mov_b32 s47, 0x000fffff
    s_bitcmp1_b32 {STR}, s24      ; heads that come from two column blocks
    s_cselect_b32 s50, {T2}, {T1}
    s_lshl_b32 s50, s50, 17
    s_lshl_b32 s43, s24, 8
    s_add_u32 s51, s43, 0x6800         ; counter of the later keys (line 104 + head)
    v_mov_b32 v220, s51
    s_add_u32 s51, s2, 256
    """.replace("{STR}", "0x12481248" if O.get("split") else "0x02081040").replace("{T2}", "48" if O.get("split") else "96").replace("{T1}", "24" if O.get("split") else "48"))
    p(f"s_add_u32 s27, s27, {hex(WS_Q)}")
    srd_off(p, 16, 10, 11, "s27", CHUNK)
    srd_off(p, 12, 10, 11, "s26", HEAD_STRIDE)
    srd_off(p, 32, 10, 11, hex(WS_O), 2048 * 640 * 2)
    def dma_half(h):
        out = []
        if h == 0:
            out.append(["s_add_u32 m0, s37, s29", "s_nop 0", "buffer_load_dwordx4 v8, s[12:15], s36 offen sc1 lds"])
            so = "s36"
        else:
            out.append([f"s_add_u32 m0, m0, {20480-4096}", "s_add_u32 s45, s36, 20480", "buffer_load_dwordx4 v8, s[12:15], s45 offen sc1 lds"])
            so = "s45"
        for j in (1, 2, 3):
            out.append([f"buffer_load_dwordx4 v8, s[12:15], {so} offen offset:{1024*j} sc1 lds"])
        out.append(["s_add_u32 m0, m0, 0x1000", "s_nop 0", f"buffer_load_dwordx4 v9, s[12:15], {so} offen sc1 lds"])
        return out
    p.label(f"{pre}_pass")
    p("""
    v_lshlrev_b32 v5, 4, v2
    v_add_u32 v7, 8192, v6
    v_mul_u32_u24 v13, 320, v4
    v_add_u32 v13, v13, v6
    v_add_u32 v13, 10240, v13
    v_or_b32 v1, 4, v3
    v_cmp_eq_u32 vcc, 28, v1           ; rows 24 and 28 of V^T carry the ones (row sums)
    v_mov_b32 v1, 0x3f803f80
    s_mov_b32 s36, 0
    v_cndmask_b32 v1, 0, v1, vcc
    s_mov_b32 s37, 0
    """)
    for i in range(32): p(f"v_mov_b32 v{VV+i}, v1")
    for i in range(32): p(f"v_mov_b32 v{OO+i}, 0")
    for i in range(4): p(f"v_mov_b32 v{S0+32+28+i}, 0")
    for i in range(2): p(f"v_mov_b32 v{PP+12+i}, 0")
    p("s_cmp_eq_u32 s44, 1")
    p(f"s_cbranch_scc1 {pre}_nowait")
    if O.get("split"): poll(p, "AT_poll", 60, "s43", 136 * 256, "ge", "s50")
    else:
        p(f"""
        s_cmp_lg_u32 s28, 0
        s_cbranch_scc1 AT_poll_done
        s_add_u32 s98, s60, s43
        s_addc_u32 s99, s61, 0
        s_mov_b32 s59, 0
        AT_poll:
        s_load_dword s56, s[98:99], {136*256} glc
        s_load_dword s57, s[98:99], {168*256} glc
        s_load_dword s58, s[98:99], {200*256} glc
        s_add_u32 s59, s59, 1
        s_waitcnt lgkmcnt(0)
        s_add_u32 s58, s58, s56
        s_add_u32 s58, s58, s57
        s_cmp_ge_u32 s58, s50
        s_cbranch_scc1 AT_poll_done
        s_cmp_gt_u32 s59, 0x100000
        s_cbranch_scc1 AT_poll_done
        s_sleep 2
        s_branch AT_poll
        AT_poll_done:
        """)
    if O.get("f1go", "0") == "0":
        L_ = sig_lines("AT_go", "s51", 1, 4)
        for l in (L_[:-1] + [L_[-2]] + L_[-1:] if O.get("two") else L_): p(l)
    p("s_barrier")
    S.stamp()
    p(f"buffer_load_dwordx4 v[{QA}:{QA+3}], v10, s[16:19], 0 offen sc1")
    p(f"buffer_load_dwordx4 v[{QB}:{QB+3}], v10, s[16:19], 0 offen offset:1024 sc1")
    p(f"buffer_load_dwordx2 v[{QT}:{QT+1}], v11, s[16:19], 0 offen sc1")
    p.label(f"{pre}_nowait")
    emit(p, dma_half(0) + dma_half(1))
    if O.get("pre2", "1") == "1" and O.get("p2at", "0") == "0":
        p(f"s_mov_b32 s36, {BIG}")
        p(f"s_mov_b32 s37, {BIG}")
        emit(p, dma_half(0) + dma_half(1))
    if O.get("f1go", "0") == "1": signal(p, "AT_go", "s51", 1, 4)
    p("s_waitcnt vmcnt(%d)" % (15 if O.get("pre2", "1") == "1" and O.get("p2at", "0") == "0" else 5))
    p("s_barrier")
    def hb(b): return 20480 * (b // 8)
    def rd_km(b):
        r = KM + 4 * (b % 2)
        return f"ds_read_b128 v[{r}:{r+3}], v5 offset:{hb(b) + 1024*(b%8)}"
    def rd_kt(b):
        r = KT + 4 * ((b // 2) % 2)
        return f"ds_read_b128 v[{r}:{r+3}], v7 offset:{hb(b) + 512*((b%8)//2)}"
    def rd_v(b):
        out = []
        for g in range(2):
            r = VV + 8 * (b % 4) + 4 * g
            out.append(f"ds_read_b128 v[{r}:{r+3}], v13 offset:{hb(b) + 640*(2*(b%8)+g)}")
        return out
    p(rd_kt(0)); p(rd_km(0)); p(rd_km(1))
    p("s_mov_b64 exec, s[46:47]")
    for l in rd_v(0) + rd_v(1): p(l)
    p("s_mov_b64 exec, -1")
    p(f"s_mov_b32 s36, {BIG}")
    p(f"s_mov_b32 s37, {BIG}")
    if O.get("pre2", "1") == "1" and O.get("p2at", "0") == "1":
        emit(p, dma_half(0) + dma_half(1))
        if O.get("f1go", "0") == "5": signal(p, "AT_go", "s51", 1, 4)
    p("s_cmp_eq_u32 s44, 1")
    p(f"s_cbranch_scc1 {pre}_havemax")
    p("s_waitcnt lgkmcnt(5)")
    p(mfma32(S0, KM, QA, "0")); p(mfma32(S0 + 16, KM, QB, "0"))
    p("s_nop 9")
    p(m2b(S0, KT, QT))
    p("s_nop 15"); p("s_nop 3")
    def finish_max():
        for t in range(2):
            d = NM + 16 * t
            p(f"v_mov_b32 v{d+1}, v{d}")
        p("s_nop 1")
        for t in range(2):
            d = NM + 16 * t
            p(f"v_permlane32_swap_b32 v{d}, v{d+1}")
        for t in range(2):
            d = NM + 16 * t
            p(f"v_max_f32 v{d}, v{d}, v{d+1}")
            p(f"v_sub_f32 v{d}, 0, v{d}")
        for k in range(1, 16):
            for t in range(2): p(f"v_mov_b32 v{NM+16*t+k}, v{NM+16*t}")
    for t in range(2):
        b = S0 + 16 * t; d = NM + 16 * t
        p(f"v_max3_f32 v{d}, v{b}, v{b+1}, v{b+2}")
        for k in range(3, 15, 2):
            p(f"v_max3_f32 v{d}, v{d}, v{b+k}, v{b+k+1}")
        p(f"v_max_f32 v{d}, v{d}, v{b+15}")
    finish_max()
    p.label(f"{pre}_havemax")
    p("s_waitcnt lgkmcnt(0)")
    p("s_nop 0")
    p(mfma32(S0, KM, QA, NM)); p(mfma32(S0 + 16, KM, QB, NM + 16))
    p("s_mov_b32 s38, 0")
    p(f"s_mov_b32 s39, {BIG}")
    p("s_waitcnt vmcnt(%d)" % (10 if O.get("pre2", "1") == "1" else 0))
    p("s_barrier")
    p("s_nop 5")
    p(m2b(S0, KT, QT))
    p("s_nop 15"); p("s_nop 2")
    S.stamp()
    p(f"s_branch {pre}_mid")
    def iteration(j):
        i = j - 2
        cur = S0 + 32 * (i % 2); nxt = S0 + 32 * ((i + 1) % 2)
        km = KM + 4 * ((i + 1) % 2)
        kt = KT + 4 * (((i + 1) // 2) % 2) + 2 * ((i + 1) % 2)
        vb = VV + 8 * (i % 4); vprev = VV + 8 * ((i - 1) % 4)
        def E(k, lo=0, hi=4):
            for r in range(lo, hi): p(f"v_exp_f32 v{cur+4*k+r}, v{cur+4*k+r}")
        def C(k, base=cur):
            p(f"v_cvt_pk_bf16_f32 v{PP+2*k}, v{base+4*k}, v{base+4*k+1}")
            p(f"v_cvt_pk_bf16_f32 v{PP+2*k+1}, v{base+4*k+2}, v{base+4*k+3}")
        E(0); C(7, nxt)
        p("s_waitcnt lgkmcnt(0)")
        p(mfma32(nxt, km, QA, NM))
        E(1); C(0)
        p(mfma32(OO + 16, vprev + 4, PP + 12))
        E(2); C(1)
        p(mfma32(nxt + 16, km, QB, NM + 16))
        if j % 2 == 0:
            p("s_mov_b64 exec, s[46:47]")
            for l in rd_v(j) + rd_v(j + 1): p(l)
            p("s_mov_b64 exec, -1")
        E(3); C(2)
        D0 = int(O.get("d0", 4 if O.get("split") else 2))
        dl = dma_half(0) + dma_half(1)
        g = dl[2 * (j - D0)] if D0 <= j < D0 + 5 else []
        g2 = dl[2 * (j - D0) + 1] if D0 <= j < D0 + 5 else []
        if not O.get("split"):
            g = dl[j - D0] if D0 <= j < D0 + 10 else []
            g2 = []
        elif D0 <= 4:
            k = j - D0
            g = dl[2 * k] if 0 <= k < 2 else (dl[k + 2] if 2 <= k < 8 else [])
            g2 = dl[2 * k + 1] if 0 <= k < 2 else []
        if j == D0 - 2 and O.get("split"): p("buffer_load_dword v221, v220, s[60:63], 0 offen sc1")
        if j == D0 and O.get("split"):
            p("s_waitcnt vmcnt(0)")
            p("v_readfirstlane_b32 s58, v221")
            p("s_cmp_lt_u32 s58, s50")
            p("s_cbranch_scc1 AT_wait2")
            p.label("AT_back2")
        if O.get("pre2", "1") == "1":
            NG = int(O.get("ng", 1))
            k = j - D0
            gg = dl[NG * k: NG * k + NG] if 0 <= k < (10 + NG - 1) // NG else []
            if gg: p("s_bitcmp1_b32 9, s38" if O.get("skip3", "1") == "1" else "s_cmp_eq_u32 s38, 0")
            p(mfma32(OO, vb, PP))
            if gg:
                p(f"s_cbranch_scc1 AT_nd{j}")
                emit(p, gg)
                p.label(f"AT_nd{j}")
        else:
            for l in g[:-1]:
                if l != "s_nop 0": p(l)
            p(mfma32(OO, vb, PP))
            for l in g[-1:]: p(l)
        E(4); C(3)
        p(m2b(nxt, kt, QT))
        p(rd_km(j))
        if j % 2 == 0: p(rd_kt(j))
        E(5); C(4); E(6, 0, 2)
        for l in g2[:-1]:
            if l != "s_nop 0": p(l)
        p(mfma32(OO, vb + 4, PP + 4))
        for l in g2[-1:]: p(l)
        E(6, 2, 4); C(5); E(7, 0, 2)
        p(mfma32(OO + 16, vb, PP + 8))
        E(7, 2, 4); C(6)
    p.raw(".p2align 6")
    p.label(f"{pre}_loop")
    p("s_waitcnt vmcnt(0) lgkmcnt(0)")
    p("s_barrier")
    p("v_add_u32 v5, s39, v5")
    p("v_add_u32 v7, s39, v7")
    p("v_add_u32 v13, s39, v13")
    p("s_sub_u32 s39, 0, s39")
    p(f"s_add_u32 s36, s36, {BIG}")
    p(f"s_sub_u32 s37, {BIG}, s37")
    iteration(0); iteration(1)
    p("s_cmp_eq_u32 s38, 4")
    p(f"s_cbranch_scc1 {pre}_done")
    p.label(f"{pre}_mid")
    for j in range(2, 16): iteration(j)
    p("s_add_u32 s38, s38, 1")
    p(f"s_branch {pre}_loop")
    p.label(f"{pre}_done")
    if O.get("tst"): S.n = 1
    S.stamp()
    cur = S0 + 32
    p(f"v_cvt_pk_bf16_f32 v{PP+14}, v{cur+28}, v{cur+29}")
    p(f"v_cvt_pk_bf16_f32 v{PP+15}, v{cur+30}, v{cur+31}")
    p("""
    s_lshl_b32 s30, s25, 3
    s_lshl_b32 s31, s28, 1
    """)
    p(mfma32(OO + 16, VV + 8 * 3 + 4, PP + 12))
    p(f"v_rcp_f32 v{OO+13}, v{OO+12}")
    p("""
    s_add_u32 s30, s30, s31
    s_mul_i32 s30, s30, 40960
    s_and_b32 s41, s24, 1
    s_mul_i32 s41, s41, 20480
    s_add_u32 s30, s30, s41
    s_lshr_b32 s42, s24, 1             ; h/2
    s_lshl_b32 s31, s42, 10
    s_add_u32 s31, s31, s30
    v_lshlrev_b32 v14, 4, v2
    v_add_u32 v14, s31, v14
    s_lshr_b32 s40, s42, 2
    s_add_u32 s40, s40, 16
    s_lshl_b32 s40, s40, 10
    s_add_u32 s40, s40, s30
    s_and_b32 s41, s42, 1
    s_lshl_b32 s41, s41, 9
    s_add_u32 s40, s40, s41
    s_and_b32 s41, s42, 2
    s_lshl_b32 s41, s41, 2
    s_add_u32 s40, s40, s41
    v_add_u32 v15, s40, v6
    s_mov_b32 s41, 40960
    """)
    p(f"s_mov_b32 s42, {hex(LTHRESH)}")
    for t in range(2):
        o = OO + 16 * t
        if t == 1: p(f"v_rcp_f32 v{o+13}, v{o+12}"); p("s_nop 0")
        for k in range(12): p(f"v_mul_f32 v{o+k}, v{o+k}, v{o+13}")
        for k in range(6): p(f"v_cvt_pk_bf16_f32 v{S0+8*t+k}, v{o+2*k}, v{o+2*k+1}")
        so = "0" if t == 0 else "s41"
        p(f"buffer_store_dwordx4 v[{S0+8*t}:{S0+8*t+3}], v14, s[32:35], {so} offen sc1")
    p("s_mov_b32 exec_hi, 0")
    for t in range(2):
        so = "0" if t == 0 else "s41"
        p(f"buffer_store_dwordx2 v[{S0+8*t+4}:{S0+8*t+5}], v15, s[32:35], {so} offen sc1")
    p("s_mov_b64 exec, -1")
    if O.get("tst"): S.stamp()
    p(f"v_cmp_ngt_f32 vcc, s42, v{OO+12}")
    p(f"v_cmp_ngt_f32 s[48:49], s42, v{OO+16+12}")
    p("""
    s_or_b64 vcc, vcc, s[48:49]
    s_cmp_lg_u64 vcc, 0
    s_cselect_b32 s43, 1, 0
    s_cmp_eq_u32 s44, 1
    s_cselect_b32 s43, 0, s43
    v_mov_b32 v1, s43
    s_lshl_b32 s45, s28, 2
    v_mov_b32 v12, s45
    ds_write_b32 v12, v1
    s_lshl_b32 s30, s25, 2
    s_add_u32 s30, s30, s28
    s_bitcmp0_b32 s24, 0
    s_cselect_b32 s31, 64, 0
    s_add_u32 s30, s30, s31
    s_lshl_b32 s30, s30, 8
    s_add_u32 s100, s60, s30
    s_addc_u32 s101, s61, 0
    s_mov_b32 s95, 0x20000
    v_mov_b32 v12, 0
    s_waitcnt lgkmcnt(0)
    s_barrier
    ds_read_b128 v[172:175], v12
    s_waitcnt lgkmcnt(0)
    v_or_b32 v172, v172, v173
    v_or3_b32 v172, v172, v174, v175
    s_nop 0
    v_readfirstlane_b32 s43, v172
    s_waitcnt vmcnt(0)
    s_cmp_lg_u32 s43, 0
    """)
    p(f"s_cbranch_scc1 {pre}_fallback")
    p("s_atomic_add s95, s[100:101], 0")
    if O.get("tst"): S.stamp()
    S.dump(10, 11, 28, region=0, vt=218)
    p("s_endpgm")
    if O.get("split"):
        p.label("AT_wait2")
        p("s_mov_b32 s59, 0")
        p.label("AT_wait2l")
        p("""
    s_sleep 4
    buffer_load_dword v221, v220, s[60:63], 0 offen sc1
    s_add_u32 s59, s59, 1
    s_waitcnt vmcnt(0)
    v_readfirstlane_b32 s58, v221
    s_cmp_ge_u32 s58, s50
    s_cbranch_scc1 AT_back2
    s_cmp_gt_u32 s59, 0x100000
    s_cbranch_scc1 AT_back2
    s_branch AT_wait2l
    """)
    p.label(f"{pre}_fallback")
    p("s_mov_b32 s36, 0")
    p("s_mov_b32 s37, 0")
    p("v_lshlrev_b32 v5, 4, v2")
    p("v_add_u32 v7, 8192, v6")
    p(f"v_mov_b32 v{NM}, 0xff800000")
    p(f"v_mov_b32 v{NM+16}, 0xff800000")
    p.label(f"{pre}_fb_chunk")
    p("s_barrier")
    emit(p, dma_half(0))
    p("s_waitcnt vmcnt(0)")
    p("s_barrier")
    for b in range(8):
        p(f"ds_read_b128 v[{KM}:{KM+3}], v5 offset:{1024*b}")
        p(f"ds_read_b128 v[{KT}:{KT+3}], v7 offset:{512*(b//2)}")
        p("s_waitcnt lgkmcnt(0)")
        p(mfma32(S0, KM, QA, "0")); p(mfma32(S0 + 16, KM, QB, "0"))
        p("s_nop 9")
        p(m2b(S0, KT + 2 * (b % 2), QT))
        p("s_nop 15"); p("s_nop 3")
        for t in range(2):
            bb = S0 + 16 * t; d = NM + 16 * t
            for k in range(0, 16, 2):
                p(f"v_max3_f32 v{d}, v{d}, v{bb+k}, v{bb+k+1}")
    p("s_add_u32 s36, s36, 20480")
    p("s_cmp_lt_u32 s36, 163840")
    p(f"s_cbranch_scc1 {pre}_fb_chunk")
    finish_max()
    p("s_mov_b32 s44, 1")
    p("s_barrier")
    p(f"s_branch {pre}_pass")

NST2 = 12
RS0 = 3
def sl1(st): return st % 4
def sl2(st): return st % 4
def w_list(st):
    slot = sl2(st) * 20480
    if st < NST2:
        h = ["s_mul_i32 s56, s55, 20480"]; t = ["s_add_u32 s55, s55, 1", "s_cmp_eq_u32 s55, 12", "s_cselect_b32 s55, 0, s55"]
    else:
        h = [f"s_mov_b32 s56, {st*20480}"]; t = ["s_nop 0"]
    g = [[f"s_add_u32 m0, s54, {slot}"] + h + ["buffer_load_dwordx4 v21, s[48:51], s56 offen sc1 lds"]]
    for k in (1, 2, 3):
        g.append([f"buffer_load_dwordx4 v21, s[48:51], s56 offen offset:{1024*k} sc1 lds"])
    g.append([f"s_add_u32 m0, s54, {slot + 4096}"] + t + ["buffer_load_dwordx4 v1, s[48:51], s56 offen sc1 lds"])
    return g

def gen_b(p, S):
    HP = O.get("hiprio", "3")
    p("""
    s_sub_u32 s3, s2, 256
    s_and_b32 s24, s3, 7
    s_lshr_b32 s25, s3, 3
    s_lshl_b32 s57, s2, 8
    v_mov_b32 v22, s57
    s_waitcnt lgkmcnt(0)
    """)
    flag_srd(p)
    srd(p, 20, 8, 9, 256)
    p("""
    s_load_dwordx16 s[64:79], s[0:1], 0
    """)
    p("""
    s_cmp_lg_u32 s3, 255
    s_cbranch_scc1 B_noclear
    v_lshlrev_b32 v24, 8, v0
    v_mov_b32 v28, 0
    s_mov_b32 s29, 0x10000
    buffer_store_dword v28, v24, s[60:63], 0 offen sc1
    buffer_store_dword v28, v24, s[60:63], s29 offen offset:4 sc1
    s_waitcnt vmcnt(0)
    s_barrier
    v_mov_b32 v25, 1
    v_lshlrev_b32 v24, 12, v0
    buffer_store_dword v25, v24, s[20:23], 0 offen sc1
    """)
    p.label("B_noclear")
    if not O.get("nocode"):
        p("""
        s_getpc_b64 s[12:13]
        BPC:
        s_sub_u32 s12, s12, BPC-{KNAME}
        s_subb_u32 s13, s13, 0
        s_mov_b32 s14, CODE_END-{KNAME}
        s_mov_b32 s15, 0x00020000
        s_lshl_b32 s29, s25, 11
        v_lshlrev_b32 v24, 3, v0
        v_add_u32 v24, s29, v24
        buffer_load_dwordx2 v[220:221], v24, s[12:15], 0 offen
        """.replace("{KNAME}", KNAME))
    real = p
    p = Prog()
    p("""
    s_mov_b64 s[4:5], s[64:65]
    s_mov_b64 s[44:45], s[72:73]
    s_mov_b64 s[46:47], s[74:75]
    s_mov_b64 s[48:49], s[68:69]
    s_mov_b64 s[50:51], s[76:77]
    """)
    p("""
    v_and_b32 v3, 31, v0
    v_bfe_u32 v4, v0, 5, 1
    s_lshl_b32 s57, s2, 8
    """)
    p("""
    """)
    if O.get("split"): p("""
    s_and_b32 s29, s24, 2
    s_lshl_b32 s29, s29, 1
    s_and_b32 s27, s25, 3
    s_add_u32 s29, s29, s27
    s_and_b32 s30, s24, 1
    s_lshl_b32 s26, s30, 1
    s_add_u32 s26, s26, s29
    s_mul_i32 s30, s30, 6
    s_add_u32 s30, s30, s29
    s_add_u32 s30, s30, 2
    s_cmp_lt_u32 s29, 2
    s_cselect_b32 s26, s26, s30        ; r
    """)
    else: p("""
    s_and_b32 s26, s24, 3
    s_lshl_b32 s26, s26, 2
    s_and_b32 s27, s25, 3
    s_add_u32 s26, s26, s27            ; r
    """)
    p("""
    s_lshr_b32 s27, s24, 2
    s_lshl_b32 s27, s27, 3
    s_lshr_b32 s29, s25, 2
    s_add_u32 s27, s27, s29            ; f
    s_and_b32 s35, s28, 1
    s_lshr_b32 s36, s28, 1
    v_lshrrev_b32 v6, 2, v2
    v_and_b32 v7, 3, v2
    v_lshrrev_b32 v8, 4, v2
    v_sub_u32 v8, 0, v8
    v_and_b32 v8, 3, v8
    v_xor_b32 v8, v8, v7
    s_lshl_b32 s29, s26, 7
    s_lshl_b32 s30, s28, 5
    s_add_u32 s29, s29, s30
    v_add_u32 v9, s29, v6
    v_mul_u32_u24 v9, 1280, v9
    v_lshl_add_u32 v5, v8, 4, v9
    s_lshl_b32 s29, s35, 4
    v_add_u32 v9, s29, v6
    v_mul_u32_u24 v9, 3072, v9
    v_xor_b32 v8, v4, v7
    s_mul_i32 s29, s27, 192
    v_lshl_add_u32 v9, v8, 4, v9
    v_add_u32 v6, s29, v9
    s_lshl_b32 s31, s28, 11
    s_mul_i32 s32, s28, 3072
    s_add_u32 s32, s32, 8192
    s_cmp_eq_u32 s36, 0
    s_cselect_b32 s6, s44, s46
    s_cselect_b32 s7, s45, s47
    s_and_b32 s38, s25, 3
    s_mul_i32 s38, s38, 5
    """)
    if O.get("rotf"):
        p("s_lshr_b32 s39, s25, 2"); p("s_add_u32 s38, s38, s39")
    if not O.get("norq"):
        p("s_and_b32 s39, s24, 3"); p("s_add_u32 s38, s38, s39")
    p("""
    s_cmp_ge_u32 s38, 20
    s_cselect_b32 s39, 20, 0
    s_sub_u32 s38, s38, s39
    """)
    if O.get("evenrot", "1") == "1": p("s_and_b32 s38, s38, 30")
    srd(p, 12, 4, 5, 2048 * 640 * 2)
    srd(p, 16, 6, 7, 640 * 1536 * 2)
    srd_off(p, 40, 10, 11, hex(WS_H), 2048 * 1536 * 2)
    p("""
    v_and_b32 v3, 15, v2               ; m16
    v_lshrrev_b32 v23, 4, v2           ; q
    v_lshrrev_b32 v8, 2, v3
    v_sub_u32 v8, 0, v8
    v_and_b32 v8, 3, v8
    v_xor_b32 v8, v8, v23
    v_lshlrev_b32 v8, 4, v8
    v_lshl_add_u32 v8, v3, 6, v8
    s_lshl_b32 s29, s35, 12
    v_add_u32 v10, s29, v8
    v_and_b32 v7, 1, v2
    v_lshlrev_b32 v7, 3, v7
    v_bfe_u32 v9, v2, 1, 1
    v_lshl_add_u32 v7, v9, 5, v7
    v_bfe_u32 v9, v2, 2, 2
    v_lshl_add_u32 v7, v9, 6, v7
    v_mul_u32_u24 v8, 3072, v4
    v_add_u32 v7, v7, v8
    v_bfe_u32 v9, v2, 4, 1             ; q%2
    v_lshl_add_u32 v7, v9, 9, v7
    v_lshlrev_b32 v9, 4, v9
    v_add_u32 v7, 8192, v7
    s_lshl_b32 s30, s36, 11
    v_add3_u32 v11, v7, v9, s30
    v_xor_b32 v12, 16, v11
    s_lshl_b32 s29, s36, 4
    v_xor_b32 v8, s29, v9
    v_add_u32 v8, 1024, v8
    v_add_u32 v13, v7, v8
    """)
    for i in range(4): p(f"v_add_u32 v{14+i}, 40960, v{10+i}")
    p("""
    s_lshl_b32 s29, s26, 2
    s_lshl_b32 s30, s35, 1
    s_add_u32 s29, s29, s30
    s_mul_i32 s29, s29, 96
    s_mul_i32 s30, s27, 6
    s_add_u32 s29, s29, s30
    s_lshl_b32 s29, s29, 10
    v_lshlrev_b32 v18, 4, v3
    v_lshl_add_u32 v18, v23, 9, v18    ; q*512 + m16*16
    s_lshl_b32 s30, s36, 12
    s_add_u32 s30, s30, s29
    v_add_u32 v20, s30, v18
    s_lshl_b32 s30, s36, 3
    s_add_u32 s30, s30, s29
    s_add_u32 s30, s30, 2048
    v_add_u32 v19, s30, v18
    s_mov_b32 s37, 98304
    """)
    p("""
    s_mul_i32 s29, s3, 3856
    s_lshr_b32 s29, s29, 16
    s_mul_i32 s30, s29, 17
    s_sub_u32 s30, s3, s30             ; stage
    s_lshl_b32 s53, s30, 7
    s_lshl_b32 s54, s28, 5
    s_add_u32 s53, s53, s54
    s_mov_b32 s54, 0
    s_mov_b32 s55, 4
    s_mov_b32 s46, 1966080
    s_cmp_ge_u32 s30, 12
    s_cbranch_scc0 B_rp_wd
    s_sub_u32 s30, s30, 12
    s_lshl_b32 s30, s30, 2
    s_add_u32 s30, s30, s28            ; position 0..19
    s_cmp_ge_u32 s30, 10
    s_cselect_b32 s52, 20, 0           ; 20*parity
    s_cselect_b32 s53, 10, 0
    s_sub_u32 s30, s30, s53
    s_lshr_b32 s53, s29, 2
    s_add_u32 s53, s53, s29
    s_add_u32 s30, s30, s53
    s_cmp_ge_u32 s30, 10
    s_cselect_b32 s53, 10, 0
    s_sub_u32 s30, s30, s53
    s_mul_i32 s53, s30, 80
    s_mul_i32 s58, s30, 320
    s_sub_u32 s58, s58, 2544
    s_mov_b32 s54, 30720
    s_mov_b32 s50, s48
    s_mov_b32 s51, s49
    s_mov_b32 s46, 819200
    s_cmp_ge_u32 s30, 8
    s_cselect_b32 s53, s58, s53
    s_cselect_b32 s54, 46080, s54
    s_cselect_b32 s55, 2, s55
    s_add_u32 s53, s53, s52
    """)
    p.label("B_rp_wd")
    p("""
    s_mov_b32 s44, s50
    s_mov_b32 s45, s51
    s_mov_b32 s47, 0x00020000
    s_cmp_lt_u32 s3, 136
    s_cselect_b32 s46, s46, 0
    s_mul_i32 s53, s53, 1280
    s_mul_i32 s30, s29, 160
    s_add_u32 s53, s53, s30
    s_mul_i32 s30, s28, 320
    v_add_u32 v9, s30, v2
    s_add_u32 s96, s29, 96
    s_cmp_lt_u32 s3, 136
    s_cselect_b32 s96, s96, 200
    s_lshl_b32 s97, s26, 1
    s_add_u32 s97, s97, 32
    """)
    for kk in range(5):
        p(f"""
        v_add_u32 v24, {64*kk}, v2
        v_mul_u32_u24 v25, 6554, v24
        v_lshrrev_b32 v25, 16, v25
        v_mul_u32_u24 v7, 10, v25
        v_sub_u32 v7, v24, v7
        v_mul_u32_u24 v24, 1280, v25
        v_lshl_add_u32 v24, v7, 4, v24
        v_lshrrev_b32 v25, s55, v25
        v_mul_u32_u24 v25, s54, v25
        v_add_u32 v{208+kk}, v24, v25
        """)
    p(f"""
    s_mul_i32 s54, s28, 5120
    s_add_u32 s52, s54, 61440
    v_bfe_u32 v25, v2, 2, 3
    v_mul_u32_u24 v25, 160, v25
    v_and_b32 v7, 3, v2
    v_lshl_add_u32 v25, v7, 3, v25
    v_add_u32 v25, s52, v25
    v_mov_b32 v8, 2400
    """)
    for kk in range(5):
        p(f"""
        v_add_u32 v7, {2*kk}, v4
        v_cmp_lt_u32 vcc, 4, v7
        v_lshlrev_b32 v7, 5, v7
        s_nop 0
        v_cndmask_b32 v24, 0, v8, vcc
        v_add3_u32 v{213+kk}, v25, v7, v24
        """)
    p(f"""
    s_mul_i32 s29, s3, 20480
    v_lshlrev_b32 v218, 4, v9
    v_add_u32 v218, s29, v218
    v_add_u32 v219, 0x1000, v218
    v_lshlrev_b32 v21, 4, v2
    v_add_u32 v21, s54, v21
    v_add_u32 v1, 0x1000, v21
    s_lshr_b32 s29, s25, 2
    s_mul_i32 s29, s29, {WP_CB}
    s_add_u32 s29, s29, {hex(WS_W)}
    """)
    srd_off(p, 4, 10, 11, hex(WS_W), 8 * WP_CB)
    srd_off(p, 48, 10, 11, "s29", WP_CB)
    setup = p.lines
    p = real
    p("s_waitcnt lgkmcnt(0)")
    for l in setup: p.raw(l)
    if O.get("split"):
        p("s_cmp_ge_u32 s25, 30")
        p("s_cbranch_scc1 B_skipq")
        gen_params_b(p)
        p("s_mov_b64 s[4:5], s[64:65]")
        p("s_mov_b64 s[6:7], s[66:67]")
        poll(p, "B_start0", 60, "s57", 0, "lg", "s80", sleep=2, limit=40)
        p("s_barrier")
        S.n = 0; S.stamp()
        p("s_setprio %s" % O.get("q2prio", "0"))
        p("s_branch QKV_tile")
        p.label("B_after")
        S.n = 3 if common.STAMP else 0
        p("s_setprio 0")
        for l in setup:
            if l.strip().startswith("s_") or l.endswith(":"): p.raw(l.replace("B_rp_wd", "B_rp_wd2"))
        if O.get("f1go", "0") in ("0", "1"): poll(p, "B_start", 60, "s57", 4, "lg", "s81", sleep=2, limit=60)
        p("s_branch B_go")
        p.label("B_skipq")
        p("s_mov_b64 s[82:83], s[52:53]"); p("s_mov_b64 s[84:85], s[54:55]")
        vpoll_init(p, "B_init")
        p("s_mov_b64 s[52:53], s[82:83]"); p("s_mov_b64 s[54:55], s[84:85]")
        p.label("B_go")
    else:
        def erp():
            for kk in range(5):
                p(f"s_add_u32 m0, s52, {1024*kk}"); p("s_nop 0")
                p(f"buffer_load_dwordx4 v{208+kk}, s[44:47], s53 offen lds")
            p("s_waitcnt vmcnt(0)")
            for kk in range(5):
                for a in range(2):
                    p(f"ds_read_b64_tr_b16 v[{184+4*kk+2*a}:{184+4*kk+2*a+1}], v{213+kk} offset:{1280*a}")
            p("s_waitcnt lgkmcnt(0)")
            for kk in range(5):
                p(f"buffer_store_dwordx4 v[{184+4*kk}:{184+4*kk+3}], v{218 if kk < 4 else 219}, s[4:7], 0 offen offset:{1024*(kk%4)} sc1")
        if O.get("erp") == "1": erp()
        p("s_mov_b64 s[82:83], s[52:53]"); p("s_mov_b64 s[84:85], s[54:55]")
        vpoll_init(p, "B_init")
        p("s_mov_b64 s[52:53], s[82:83]"); p("s_mov_b64 s[54:55], s[84:85]")
        if O.get("erp") == "2":
            p("s_barrier")
            erp()
        p("s_cmp_eq_u32 s27, 15")
        p("s_cbranch_scc1 B_start_done")
        assert O.get("f1go", "0") in ("0", "1", "2", "4", "5")
        if O.get("f1go", "0") != "2": poll(p, "B_start", 60, "s57", 4, "lg", "0", sleep=2, limit=200)
        else: p.label("B_start_done")
    p("s_barrier")
    S.n = 0
    S.stamp()
    p("""
    s_lshr_b32 s29, s25, 2
    s_add_u32 s55, s25, s29
    s_and_b32 s55, s55, 3
    s_mul_i32 s55, s55, 3
    s_add_u32 s57, s29, 96
    s_lshl_b32 s57, s57, 8
    """)
    NST = 20
    def dma_list(st):
        if st == "rp":
            return [[f"s_add_u32 m0, s52, {1024*kk}", "s_nop 0", f"buffer_load_dwordx4 v{208+kk}, s[44:47], s53 offen lds"] for kk in range(5)]
        if st >= NST: return w_list(st - NST)
        slot = sl1(st) * 20480
        g = []
        for pc in range(2):
            g.append([f"s_add_u32 m0, s31, {slot + pc*1024}", ("s_lshl_b32 s33, s38, 6" if pc == 0 else "s_add_u32 s33, s33, 20480"),
                      "buffer_load_dwordx4 v5, s[12:15], s33 offen lds"])
        for j in range(3):
            off = f" offset:{64*j}" if j else ""
            mid = ["s_mul_i32 s34, s38, 98304"] if j == 0 else (["s_add_u32 s38, s38, 1"] if j == 1 else [])
            g.append([f"s_add_u32 m0, s32, {slot + j*960}"] + (mid if mid else ["s_cmp_eq_u32 s38, 20", "s_cselect_b32 s38, 0, s38"]) +
                      [f"buffer_load_dwordx4 v6, s[16:19], s34 offen{off} lds"])
        return g
    if O.get("erp"): emit(p, dma_list(0) + dma_list(1) + dma_list(2) + dma_list(3))
    else: emit(p, dma_list(0) + dma_list("rp") + dma_list(1) + dma_list(2))
    FR = 32; ACC = 112; RP = ACC + 76
    def m16(d, a, b, first):
        return f"v_mfma_f32_16x16x32_bf16 v[{d}:{d+3}], v[{a}:{a+3}], v[{b}:{b+3}], " + ("0" if first else f"v[{d}:{d+3}]")
    def acc(mat, tn, tm): return ACC + 4 * (4 * (2 * tn + mat) + tm)
    def reads(st):
        slot = sl1(st)
        k = slot // 2; so = (slot % 2) * 20480
        b = FR + 40 * (st % 2)
        out = [f"ds_read_b128 v[{b+4*tm}:{b+4*tm+3}], v{10+4*k} offset:{so + tm*1024}" for tm in range(4)]
        for tn in range(3):
            for mat in range(2):
                for a in range(2):
                    r = b + 16 + 4 * (2 * tn + mat) + 2 * a
                    out.append(f"ds_read_b64_tr_b16 v[{r}:{r+1}], v{11+4*k+tn} offset:{so + mat*6144 + a*256}")
        return out
    def mfmas(st):
        b = FR + 40 * (st % 2)
        return [m16(acc(mat, tn, tm), b + 16 + 4 * (2 * tn + mat), b + 4 * tm, st == 0) for tn in range(3) for mat in range(2) for tm in range(4)]
    rd = reads(0)
    if O.get("erp"):
        p("s_waitcnt vmcnt(10)")
        p("s_barrier")
        for l in rd[:12]: p(l)
        queue = []
    else:
        p("s_waitcnt vmcnt(10)")
        for kk in range(5):
            for a in range(2):
                p(f"ds_read_b64_tr_b16 v[{RP+4*kk+2*a}:{RP+4*kk+2*a+1}], v{213+kk} offset:{1280*a}")
        if O.get("two"):
            p("s_cmp_eq_u32 s27, 15")
            p("s_cbranch_scc1 B_start2_done")
            p("s_lshl_b32 s29, s2, 8")
            poll(p, "B_start2", 60, "s29", 4, "ge", 2 << 17, sleep=2, limit=200)
        p("s_waitcnt vmcnt(5) lgkmcnt(0)")
        p("s_barrier")
        emit(p, dma_list(3))
        for l in rd[:12]: p(l)
        for kk in range(5):
            p(f"buffer_store_dwordx4 v[{RP+4*kk}:{RP+4*kk+3}], v{218 if kk < 4 else 219}, s[4:7], 0 offen offset:{1024*(kk%4)} sc1")
        queue = []
    p("s_waitcnt lgkmcnt(8)")
    for l in rd[12:]: p(l)
    for st in range(NST):
        pr = st // 2
        mf = mfmas(st)
        rd = reads(st + 1) if st < NST - 1 else []
        if st % 2 == 1 and st < NST - 1:
            assert not queue
            p("s_waitcnt vmcnt(0) lgkmcnt(0)")
            if pr == 8:
                p("v_readfirstlane_b32 s58, v22")
                p(f"s_cmp_ge_u32 s58, {17 << 17}")
                p("s_cbranch_scc1 B_pollw_done")
                poll(p, "B_pollw", 60, "s57", 0, "ge", 17 << 17, sleep=4)
            p("s_barrier")
            if pr == 0:
                p("s_cmp_ge_u32 s3, 136"); p("s_cbranch_scc1 B_sigw")
                signal(p, "B_sigw", "s96", 1)
            queue = dma_list(2 * pr + 4) + dma_list(2 * pr + 5)
            if pr == 7: queue.append(["buffer_load_dword v22, off, s[60:63], s57 sc1"])
            if O.get("f1st") and pr in (0, 4): S.stamp()
        else:
            p("s_waitcnt lgkmcnt(0)")
        B1 = int(O.get("boost1", 0)); BP = int(O.get("bper", 24))
        for i, m in enumerate(mf):
            if B1 and i % BP == 0: p("s_setprio 2")
            p(m)
            if B1 and i % BP == B1 - 1: p("s_setprio 0")
            if i == 12 and rd: p("s_waitcnt lgkmcnt(8)")
            for l in rd[i:i + 1]: p(l)
            if queue and i % 2 == 1:
                for l in queue.pop(0): p(l)
    S.stamp()
    p(f"s_setprio {HP}")
    p(f"s_mov_b32 s44, {hex(f2u(-math.log2(math.e)))}")
    p(f"s_mov_b32 s45, {hex(f2u(-math.log2(math.e)))}")
    p("s_load_dwordx2 s[8:9], s[0:1], 64")
    p("s_nop 3")
    def silu(items, t):
        prs = [(g + 2 * i, u + 2 * i) for g, u in items for i in range(2)]
        n = len(prs)
        for i, (g, u) in enumerate(prs): p(f"v_pk_mul_f32 v[{t+2*i}:{t+2*i+1}], v[{g}:{g+1}], s[44:45]")
        for i in range(2 * n): p(f"v_exp_f32 v{t+i}, v{t+i}")
        for i, (g, u) in enumerate(prs): p(f"v_pk_mul_f32 v[{g}:{g+1}], v[{g}:{g+1}], v[{u}:{u+1}]")
        for i in range(n): p(f"v_pk_add_f32 v[{t+2*i}:{t+2*i+1}], v[{t+2*i}:{t+2*i+1}], 1.0 op_sel_hi:[1,0]")
        for i in range(2 * n): p(f"v_rcp_f32 v{t+i}, v{t+i}")
        p("s_nop 0")
        for i, (g, u) in enumerate(prs): p(f"v_pk_mul_f32 v[{g}:{g+1}], v[{g}:{g+1}], v[{t+2*i}:{t+2*i+1}]")
        for i, (g, u) in enumerate(prs): p(f"v_cvt_pk_bf16_f32 v{t+8+i}, v{g}, v{g+1}")
    for tm in range(4):
        t = FR + 12 * tm
        silu([(acc(0, 0, tm), acc(1, 0, tm)), (acc(0, 1, tm), acc(1, 1, tm))], t)
        so = "0" if tm < 2 else "s37"
        p(f"buffer_store_dwordx4 v[{t+8}:{t+11}], v20, s[40:43], {so} offen offset:{256*(tm%2)} sc1")
    for h in range(2):
        t = FR + 48 + 12 * h
        silu([(acc(0, 2, 2 * h), acc(1, 2, 2 * h)), (acc(0, 2, 2 * h + 1), acc(1, 2, 2 * h + 1))], t)
        so = "0" if h == 0 else "s37"
        p(f"buffer_store_dwordx2 v[{t+8}:{t+9}], v19, s[40:43], {so} offen sc1")
        p(f"buffer_store_dwordx2 v[{t+10}:{t+11}], v19, s[40:43], {so} offen offset:256 sc1")
    p("""
    s_lshl_b32 s26, s24, 2
    s_and_b32 s27, s25, 3
    s_add_u32 s26, s26, s27            ; mb
    s_lshr_b32 s27, s25, 2             ; cb
    s_add_u32 s57, s26, 32
    s_lshl_b32 s57, s57, 8
    s_mul_i32 s29, s27, 160
    v_lshlrev_b32 v9, 4, v2
    s_add_u32 s39, s25, s27
    s_and_b32 s39, s39, 3
    s_mul_i32 s39, s39, 3
    s_lshr_b32 s53, s27, 2
    s_add_u32 s53, s53, s27
    s_lshl_b32 s30, s26, 1
    s_add_u32 s30, s30, s35
    s_mul_i32 s32, s30, 96
    s_lshl_b32 s33, s36, 2
    s_add_u32 s32, s32, s33
    s_lshl_b32 s32, s32, 10
    v_add_u32 v25, s32, v18            ; H offset: + q*512 + m16*16
    v_lshrrev_b32 v7, 1, v23
    v_mul_u32_u24 v7, 2560, v7
    v_and_b32 v8, 1, v23
    v_lshl_add_u32 v7, v8, 8, v7
    v_lshl_add_u32 v26, v3, 4, v7
    v_add_u32 v27, 40960, v26
    s_mul_i32 s32, s36, 10240
    v_add_u32 v28, s32, v26
    v_add_u32 v29, s32, v27
    s_mul_i32 s32, s36, 5120
    v_add_u32 v26, s32, v26
    v_add_u32 v27, s32, v27
    v_mov_b32 v4, v23
    s_lshl_b32 s32, s26, 6
    s_lshl_b32 s33, s35, 5
    s_add_u32 s32, s32, s33
    v_add_u32 v24, s32, v3
    v_lshlrev_b32 v22, 2, v24
    s_lshl_b32 s33, s36, 4
    v_add_u32 v24, s33, v24
    """)
    srd_off(p, 20, 10, 11, hex(WS_G), 8192)
    p("s_setprio 0")
    p("s_waitcnt vmcnt(0)")
    p("s_barrier")
    signal(p, "B_sigh", "s97", 2)
    emit(p, w_list(2) + w_list(3))
    poll(p, "B_pollh", 60, "s57", 0, "ge", 17 << 17)
    p("s_barrier")
    XR = 32; XO = 32; ACC = 112; ACA = 152; WF = 192
    def x_list(st):
        g = []
        for ks in range(4):
            r = XR + 4 * ((4 * st + ks) % 16)
            pre = {0: ["s_lshl_b32 s33, s39, 13"], 1: ["s_add_u32 s39, s39, 1"], 2: ["s_cmp_eq_u32 s39, 12", "s_cselect_b32 s39, 0, s39"]}.get(ks, [])
            g.append(pre + [f"buffer_load_dwordx4 v[{r}:{r+3}], v25, s[40:43], s33 offen offset:{2048*(ks//2) + 256*(ks%2)} sc1"])
        return g
    for st in range(4): emit(p, x_list(st))
    p("buffer_load_dword v10, v22, s[20:23], 0 offen sc1")
    p("buffer_load_dword v11, v22, s[20:23], 0 offen offset:64 sc1")
    T = 2 * NST2
    def reads2(t):
        st, ks = divmod(t, 2)
        slot = sl2(st)
        k = slot // 2; so = (slot % 2) * 20480
        b = WF + 20 * (t % 3)
        if t < T: return [f"ds_read_b128 v[{b+4*u}:{b+4*u+3}], v{28+k} offset:{so + ks*5120 + u*512}" for u in range(5)]
        return [f"ds_read_b128 v[{b+4*u}:{b+4*u+3}], v{26+k} offset:{so + ks*10240 + u*512}" for u in range(5)]
    def mfmas2(t):
        b = WF + 20 * (t % 3)
        if t < T: return [m16(ACC + 20 * h + 4 * u, b + 4 * u, XR + 8 * (t % 8) + 4 * h, t == 0) for u in range(5) for h in range(2)]
        return [m16(ACA + 20 * h + 4 * u, b + 4 * u, XO + 8 * (t - T) + 4 * h, t == T) for u in range(5) for h in range(2)]
    for l in reads2(0): p(l)
    log = [("x", s) for s in range(4) for _ in range(4)] + [("g", 0)] * 2
    def younger2(tags):
        last = max(i for i, e in enumerate(log) if e in tags)
        return len(log) - 1 - last
    queue = []
    for t in range(T):
        st, ks = divmod(t, 2)
        mf = mfmas2(t)
        rd = reads2(t + 1) + (reads2(t + 2) if t == T - 1 else [])
        if t % 4 == 3:
            assert not any(q[0][0] == "w" for q in queue)
            tags = [("w", st + 1), ("w", st + 2), ("x", 0)]
            p(f"s_waitcnt vmcnt({younger2(tags)}) lgkmcnt(0)")
            p("s_barrier")
            queue = [(("w", s), g) for s in (st + 3, st + 4) for g in w_list(s)] + queue
        elif ks == 0:
            assert log.count(("x", st)) == 4
            p(f"s_waitcnt vmcnt({younger2([('x', st)])}) lgkmcnt(0)")
        else:
            p("s_waitcnt lgkmcnt(0)")
        if ks == 0 and st >= 1 and st + 3 < NST2:
            queue += [(("x", st + 3), g) for g in x_list(st + 3)]
        if t == 17 and O.get("touch", "1") == "1":
            queue += [(("t", 0), ([f"s_and_b32 s32, s25, 3", "s_mul_i32 s32, s32, 15360", f"s_add_u32 s32, s32, {14*20480}", "s_mul_i32 s34, s28, 1280", "s_sub_u32 s32, s32, s34"] if k == 0 else []) +
                       [f"buffer_load_dwordx4 v[252:255], v21, s[48:51], s32 offen offset:{1024*k} sc1"]) for k in range(4)]
        if t == T - 1:
            p("""
            s_sub_u32 s57, s57, 0x2000
            s_add_u32 s100, s60, s57
            s_addc_u32 s101, s61, 0
            s_load_dword s52, s[100:101], 0x4000 glc
            s_load_dword s34, s[100:101], 0 glc
            """)
        for i, m in enumerate(mf):
            p(m)
            for l in rd[i:i + 1]: p(l)
            if queue and (i % 2 == 1 or t == T - 1):
                tag, g = queue.pop(0)
                for l in g: p(l)
                log.append(tag)
    assert not queue
    if O.get("tst"): S.n = 0
    S.stamp()
    p(f"s_setprio {HP}")
    p("""
    s_lshl_b32 s30, s26, 1
    s_add_u32 s30, s30, s35
    s_mul_i32 s32, s30, 40960
    v_add_u32 v25, s32, v18            ; O offset
    s_add_u32 s53, s53, s36
    s_cmp_ge_u32 s53, 10
    s_cselect_b32 s32, 10, 0
    s_sub_u32 s53, s53, s32
    """)
    srd_off(p, 12, 10, 11, hex(WS_O), 2048 * 640 * 2)
    p("s_waitcnt lgkmcnt(0)")
    p("s_barrier")
    emit(p, w_list(NST2 + 4))
    def xloads(half):
        for i in range(5 * half, 5 * half + 5):
            p("s_lshl_b32 s33, s53, 11")
            if half: p("s_add_u32 s33, s33, 20480")
            p("s_add_u32 s53, s53, 2"); p("s_cmp_ge_u32 s53, 10"); p("s_cselect_b32 s32, 10, 0")
            p(f"buffer_load_dwordx4 v[{XO+8*i}:{XO+8*i+3}], v25, s[12:15], s33 offen sc1")
            p("s_sub_u32 s53, s53, s32")
            p(f"buffer_load_dwordx4 v[{XO+8*i+4}:{XO+8*i+7}], v25, s[12:15], s33 offen offset:256 sc1")
    def side():
        p("""
        v_sub_f32 v12, 1.0, v10
        v_sub_f32 v13, 1.0, v11
        s_mul_i32 s32, s28, 5120
        s_add_u32 s32, s32, 20480
        v_add_u32 v30, s32, v9
        s_xor_b32 s32, s28, 2
        s_mul_i32 s32, s32, 5120
        s_add_u32 s32, s32, 20480
        v_add_u32 v31, s32, v9
        v_mul_u32_u24 v28, 1280, v24
        v_lshl_add_u32 v28, v4, 3, v28
        v_add_u32 v28, s29, v28
        """)
        for h in range(2):
            for r in range(20): p(f"v_mul_f32 v{ACC+20*h+r}, v{ACC+20*h+r}, v{12+h}")
        srd(p, 40, 8, 9, 2048 * 640 * 2)
    def steps(lo, hi, last):
        for i in range(lo, hi):
            p(f"s_waitcnt vmcnt({2*(last-i)}) lgkmcnt({5 if i < 9 else 0})")
            if i == 2: p("s_barrier")
            rd = reads2(T + i + 2) if i + 2 < 10 else []
            for k, m in enumerate(mfmas2(T + i)):
                p(m)
                for l in rd[k:k + 1]: p(l)
    p(f"s_cmp_ge_u32 s52, {16 << 17}")
    p("s_cbranch_scc1 B_early")
    side()
    p("s_setprio 0")
    poll(p, "B_polle", 60, "s57", 0x4000, "ge", 16 << 17)
    p("s_barrier")
    p("s_load_dword s34, s[100:101], 0 glc")
    xloads(0)
    p("s_waitcnt lgkmcnt(0)")
    p(f"s_cmp_ge_u32 s34, {16 << 17}")
    p("s_cbranch_scc0 B_slow")
    xloads(1)
    p("s_branch B_both")
    p.label("B_early")
    xloads(0)
    p(f"s_cmp_ge_u32 s34, {16 << 17}")
    p("s_cbranch_scc1 B_early2")
    p("s_load_dword s34, s[100:101], 0 glc")
    side()
    p("s_barrier")
    p("s_waitcnt lgkmcnt(0)")
    p(f"s_cmp_ge_u32 s34, {16 << 17}")
    p("s_cbranch_scc0 B_slow")
    xloads(1)
    p("s_branch B_both")
    p.label("B_early2")
    xloads(1)
    side()
    p("s_barrier")
    p.label("B_both")
    steps(0, 5, 9)
    p("s_barrier")
    p("s_branch B_second")
    p.label("B_slow")
    p("s_setprio 0")
    steps(0, 5, 4)
    poll(p, "B_pollo", 60, "s57", 0, "ge", 16 << 17)
    p("s_barrier")
    xloads(1)
    p.label("B_second")
    if O.get("tst"): S.stamp()
    steps(5, 10, 9)
    if O.get("tst"): S.stamp()
    p("s_cmp_eq_u32 s36, 0")
    p("s_cbranch_scc1 B_keep0")
    for kq in (1, 0):
        if kq == 0: p.label("B_keep0")
        p("s_nop 5")
        snd = 1 - kq
        for u in range(5):
            for r in range(4): p(f"v_fmac_f32 v{ACC+20*snd+4*u+r}, v{ACA+20*snd+4*u+r}, v{10+snd}")
            p(f"ds_write_b128 v30, v[{ACC+20*snd+4*u}:{ACC+20*snd+4*u+3}] offset:{1024*u}")
        for r in range(20): p(f"v_fma_f32 v{XO+r}, v{ACA+20*kq+r}, v{10+kq}, v{ACC+20*kq+r}")
        if kq == 1: p("s_branch B_kept")
    p.label("B_kept")
    p("s_waitcnt lgkmcnt(0)")
    p("s_barrier")
    for u in range(5): p(f"ds_read_b128 v[{XO+20+4*u}:{XO+23+4*u}], v31 offset:{1024*u}")
    for u in range(5):
        a_ = XO + 4 * u; b_ = XO + 20 + 4 * u
        p(f"s_waitcnt lgkmcnt({4-u})")
        p(f"v_pk_add_f32 v[{a_}:{a_+1}], v[{a_}:{a_+1}], v[{b_}:{b_+1}]")
        p(f"v_pk_add_f32 v[{a_+2}:{a_+3}], v[{a_+2}:{a_+3}], v[{b_+2}:{b_+3}]")
        p(f"v_cvt_pk_bf16_f32 v{a_}, v{a_}, v{a_+1}")
        p(f"v_cvt_pk_bf16_f32 v{a_+1}, v{a_+2}, v{a_+3}")
        p(f"buffer_store_dwordx2 v[{a_}:{a_+1}], v28, s[40:43], 0 offen offset:{32*u}")
    if O.get("span"):
        p("""
        s_waitcnt vmcnt(0)
        s_memrealtime s[66:67]
        s_load_dwordx2 s[68:69], s[0:1], 72
        s_waitcnt lgkmcnt(0)
        s_mov_b32 s72, s68
        s_mov_b32 s73, s69
        s_mov_b32 s74, 256
        s_mov_b32 s75, 0x00020000
        s_not_b32 s64, s64
        v_mov_b32 v60, s64
        v_mov_b32 v61, s66
        v_mov_b32 v62, 0
        s_mov_b64 exec, 1
        buffer_atomic_umax v60, v62, s[72:75], 0 offen offset:4 sc1
        buffer_atomic_umax v61, v62, s[72:75], 0 offen offset:8 sc1
        """)
    S.stamp()
    S.dump(10, 11, 28, region=0, vt=100)
    p("s_endpgm")

def gen_fused(p):
    name = KNAME
    head(p, name)
    p("s_cmp_ge_u32 s2, 512")
    p("s_cbranch_scc1 CODE_END")
    S = Stamps(p, base=82)
    S.stamp()
    if O.get("span"): p("s_memrealtime s[64:65]")
    p("s_load_dwordx4 s[4:7], s[0:1], 0")
    p("s_load_dwordx4 s[8:11], s[0:1], 72")
    p("""
    v_lshrrev_b32 v1, 6, v0
    v_and_b32 v2, 63, v0
    s_cmp_ge_u32 s2, 256
    v_readfirstlane_b32 s28, v1
    s_cbranch_scc1 B_role
    s_setprio 1
    """)
    n0 = S.n
    if O.get("split"):
        gen_params_a(p)
        gen_qkv(p, S)
    else:
        gen_qkv1(p, S)
    gen_att(p, S)
    p.raw(".p2align 6")
    p.label("B_role")
    S.n = n0; S.off = False
    gen_b(p, S)
    return kd(name, 256), (f"; @launch kernel={name} " if not O.get("plain") else "; @launch ") + "grid=(512,1,1) block=(256,1,1) lds=81920"
```
